```python
import torch

def _softmax(x, axis=-1):
    return torch.softmax(x, dim=axis)
def _gelu(x):
    return torch.nn.functional.gelu(x, approximate="tanh")
def _silu(x):
    return torch.nn.functional.silu(x)
def _sigmoid(x):
    return torch.sigmoid(x)
def _layernorm(x, axis=-1, eps=1e-5):
    m = x.mean(dim=axis, keepdim=True)
    v = x.var(dim=axis, keepdim=True, unbiased=False)
    return (x - m) / torch.sqrt(v + eps)
def _scatter_add(tgt, idx, src, axis=0):
    return tgt.clone().index_add_(axis, idx, src)
def _segment_sum(src, seg, n):
    out = torch.zeros((n,) + src.shape[1:], dtype=src.dtype)
    return out.index_add_(0, seg, src)
def _pad(x, pw):
    flat = tuple(v for pair in reversed(pw) for v in pair)
    return torch.nn.functional.pad(x, flat)

kernel_name = 'concat_heads__mha_block_cached__gqa_block_cached__decode'

def setup_inputs():

    _w = (lambda a: (lambda t: t.to(torch.bfloat16) if t.is_floating_point() else t)(torch.as_tensor(a)))
    def _A_setup():
        B, Sq, D = 2, 1, 512
        H, Sk, Dh = 32, 16384, 128
        return {
            "x": _w((lambda *s: torch.randn(*s, dtype=torch.bfloat16) * 0.8)(B, Sq, D)),
            "k_cache": _w((lambda *s: torch.randn(*s, dtype=torch.bfloat16) * 0.8)(B, H, Sk, Dh)),
            "v_cache": _w((lambda *s: torch.randn(*s, dtype=torch.bfloat16) * 0.05)(B, H, Sk, Dh)),
            "wq": _w((lambda *s: torch.randn(*s, dtype=torch.bfloat16) * 0.8)(D, H * Dh) * (D ** -0.5)),
            "wo": _w((lambda *s: torch.randn(*s, dtype=torch.bfloat16) * 0.05)(H * Dh, D) * ((H * Dh) ** -0.5)),
        }
    _A_in = _A_setup()

    def _B_setup():
        B, Sq, D = 2, 1, 512
        Hq, Hkv, Sk, Dh = 32, 8, 16384, 128
        assert Hq % Hkv == 0, (Hq, Hkv)
        return {
            "x": _w((lambda *s: torch.randn(*s, dtype=torch.bfloat16) * 0.8)(B, Sq, D)),
            "k_cache": _w((lambda *s: torch.randn(*s, dtype=torch.bfloat16) * 0.8)(B, Hkv, Sk, Dh)),
            "v_cache": _w((lambda *s: torch.randn(*s, dtype=torch.bfloat16) * 0.05)(B, Hkv, Sk, Dh)),
            "wq": _w((lambda *s: torch.randn(*s, dtype=torch.bfloat16) * 0.8)(D, Hq * Dh) * (D ** -0.5)),
            "wo": _w((lambda *s: torch.randn(*s, dtype=torch.bfloat16) * 0.05)(Hq * Dh, D) * ((Hq * Dh) ** -0.5)),
        }
    _B_in = _B_setup()

    return {
        "A_x": _A_in["x"],
        "A_k_cache": _A_in["k_cache"],
        "A_v_cache": _A_in["v_cache"],
        "A_wq": _A_in["wq"],
        "A_wo": _A_in["wo"],
        "B_x": _B_in["x"],
        "B_k_cache": _B_in["k_cache"],
        "B_v_cache": _B_in["v_cache"],
        "B_wq": _B_in["wq"],
        "B_wo": _B_in["wo"],
    }

def reference(A_x, A_k_cache, A_v_cache, A_wq, A_wo, B_x, B_k_cache, B_v_cache, B_wq, B_wo):
    def _A_ref(x, k_cache, v_cache, wq, wo):
        B, Sq, D = x.shape
        H, Dh = 32, 128
        q = (lambda x, *d: x.permute(*d))((x @ wq).reshape(B, Sq, H, Dh), 0, 2, 1, 3)
        scores = torch.einsum("bhqd,bhkd->bhqk", q, k_cache) * (Dh ** -0.5)
        p = _softmax(scores, axis=-1)
        o = torch.einsum("bhqk,bhkd->bhqd", p, v_cache)
        return (lambda x, *d: x.permute(*d))(o, 0, 2, 1, 3).reshape(B, Sq, H * Dh) @ wo

    def _B_ref(x, k_cache, v_cache, wq, wo):
        B, Sq, D = x.shape
        Hq, Dh = 32, 128
        Hkv = k_cache.shape[1]
        rep = Hq // Hkv
        q = (lambda x, *d: x.permute(*d))((x @ wq).reshape(B, Sq, Hq, Dh), 0, 2, 1, 3)
        k = (lambda x, n, axis: torch.repeat_interleave(x, n, dim=axis))(k_cache, rep, axis=1)
        v = (lambda x, n, axis: torch.repeat_interleave(x, n, dim=axis))(v_cache, rep, axis=1)
        scores = torch.einsum("bhqd,bhkd->bhqk", q, k) * (Dh ** -0.5)
        p = _softmax(scores, axis=-1)
        o = torch.einsum("bhqk,bhkd->bhqd", p, v)
        return (lambda x, *d: x.permute(*d))(o, 0, 2, 1, 3).reshape(B, Sq, Hq * Dh) @ wo

    a = _A_ref(A_x, A_k_cache, A_v_cache, A_wq, A_wo)
    b = _B_ref(B_x, B_k_cache, B_v_cache, B_wq, B_wo)
    return torch.concatenate([a, b], axis=-1)
```

```python
import sys, struct
NAME = 'concat_heads__mha_block_cached__gqa_block_cached__decode_kernel'

def f32(x): return struct.unpack('<I', struct.pack('<f', x))[0]

HEADER = open('concat_heads__mha_block_cached__gqa_block_cached__decode.s.ref').read().split('; Override launch')[0] \
    if __import__('os').path.exists('concat_heads__mha_block_cached__gqa_block_cached__decode.s.ref') else ''

def gen(WS=2, NB=4, itB=12, skewA=16384, skewB=16384, DIAG=0, pol='nt', wqpol='', wpol='nt', lds=16384, lastexec=1):
    NW = 8
    REC = 640
    WBLK = 5 * REC
    YA = WS * WBLK
    YB = YA + 1024
    QBO = YB + 1024
    STRIDE = QBO + 1024
    CLR = QBO
    WSBYTES = 256 * STRIDE
    L_QA = 8192; L_QB = L_QA + 256; L_FLAG = L_QB + 1024
    NIT_A = 256 // (WS * NB); NIT_B = 64 // (WS * NB)
    assert 256 % (WS * NB) == 0 and 64 % (WS * NB) == 0
    assert 1 <= itB < NIT_A
    step = WS * 4096
    VM = 8 * NB - 1
    SPIN = 1 << 18
    L = []
    def e(s): L.append('    ' + s)
    def lab(s): L.append(s + ':')
    def c(s): L.append('    ; ' + s)
    L.append(HEADER.rstrip('\n'))
    L.append(f'; @launch grid=(256,1,1) block=({NW*64},1,1) lds={lds}')
    L.append('.amdgcn_target "amdgcn-amd-amdhsa--gfx950"')
    L.append('.text'); L.append(f'.globl {NAME}'); L.append('.p2align 8'); L.append(f'.type {NAME},@function')
    lab(NAME)
    ndiag = [0]
    def stamp(idx):
        if not DIAG: return
        e('s_memrealtime s[70:71]'); e('s_waitcnt lgkmcnt(0)'); e(f'v_writelane_b32 v63, s70, {idx}')
    def srd(d, lo, size, off=None):
        if off is None:
            e(f's_mov_b32 s{d}, s{lo}'); e(f's_mov_b32 s{d+1}, s{lo+1}')
        else:
            e(f's_add_u32 s{d}, s{lo}, {off}'); e(f's_addc_u32 s{d+1}, s{lo+1}, 0')
        e(f's_mov_b32 s{d+2}, {size}'); e(f's_mov_b32 s{d+3}, 0x20000')
    SK, SV, SW, SX, SWS = 32, 36, 40, 44, 48
    RING = 64; WT = 192; XP = 16; SEL = 24; RR = 32; DD = 40; QQ = 44
    e('s_cmp_ge_u32 s2, 256'); e('s_cbranch_scc1 L_end')
    e('s_load_dwordx16 s[4:19], s[0:1], 0')
    e('s_load_dwordx8 s[20:27], s[0:1], 64')
    e('s_load_dwordx2 s[28:29], s[0:1], 96')
    if DIAG:
        e('v_mov_b32 v63, 0')
        e('s_memrealtime s[72:73]')
    e('v_lshrrev_b32 v1, 6, v0')
    e('v_and_b32 v0, 63, v0')
    e('v_readfirstlane_b32 s3, v1')
    e('s_and_b32 s30, s2, 7')
    e('s_lshr_b32 s31, s2, 3')
    e('s_lshr_b32 s60, s31, 3')
    e('s_lshl_b32 s52, s30, 2')
    e('s_add_u32 s52, s52, s60')
    e('s_bfe_u32 s53, s31, 0x10002')
    e('v_lshrrev_b32 v2, 4, v0')
    e('v_and_b32 v3, 15, v0')
    e('v_lshlrev_b32 v14, 4, v0')
    e('v_lshlrev_b32 v4, 4, v3')
    e('v_lshl_add_u32 v5, v2, 17, v4')
    e('v_bfe_u32 v7, v0, 3, 1')
    e('v_lshlrev_b32 v6, 5, v2')
    e('v_lshl_add_u32 v6, v7, 10, v6')
    e('s_mov_b32 s61, s3')
    e('s_mov_b32 s64, 0')
    e('s_waitcnt lgkmcnt(0)')
    if DIAG: e('v_writelane_b32 v63, s72, 0')
    srd(SW, 10, 1 << 22); srd(SX, 4, 2048); srd(SWS, 28, WSBYTES)
    lab('L_projload')
    c('x and wq loads for (part s61, head s52)')
    e('s_lshl_b32 s60, s61, 7')
    e(f'buffer_load_dwordx4 v[{XP}:{XP+3}], v6, s[{SX}:{SX+3}], s60 offen')
    e(f'buffer_load_dwordx4 v[{XP+4}:{XP+7}], v6, s[{SX}:{SX+3}], s60 offen offset:16')
    e('s_lshl_b32 s60, s61, 19')
    e('s_lshl_b32 s62, s52, 8')
    e('s_add_u32 s60, s60, s62')
    for t in range(16):
        e(f'buffer_load_dwordx4 v[{WT+4*t}:{WT+4*t+3}], v5, s[{SW}:{SW+3}], s60 offen {wqpol}')
        if t < 15: e('s_addk_i32 s60, 0x2000')
    e('s_cmp_lg_u32 s64, 0')
    e('s_cbranch_scc1 L_projwait')
    e('s_lshl_b32 s60, s53, 5'); e('s_add_u32 s60, s60, s52'); e('s_lshl_b32 s60, s60, 2')
    e('s_and_b32 s62, s31, 3'); e('s_add_u32 s65, s60, s62')
    e('s_lshl_b32 s60, s65, 20')
    srd(SK, 6, 1 << 20, 's60'); srd(SV, 8, 1 << 20, 's60')
    e('v_and_b32 v8, 3, v0'); e('v_bfe_u32 v9, v0, 2, 2')
    e('v_lshl_add_u32 v8, v8, 2, v9')
    e('v_lshlrev_b32 v9, 4, v2')
    e('v_lshl_add_u32 v13, v8, 8, v9')
    e(f's_cmp_ge_u32 s3, {WS}')
    e('s_cbranch_scc1 L_sel')
    c('streaming waves: ring prefetch')
    e(f's_mul_i32 s54, s65, {skewA}')
    e('s_lshl_b32 s60, s3, 12')
    e('s_add_u32 s54, s54, s60')
    e(f's_mov_b32 s55, {(1<<20)-1}')
    e('s_and_b32 s54, s54, s55')
    def kload(slot, j): e(f'buffer_load_dwordx4 v[{RING+32*slot+4*j}:{RING+32*slot+4*j+3}], v13, s[{SK}:{SK+3}], s54 offen offset:{64*j} {pol}')
    def vload(slot, r): e(f'buffer_load_dwordx4 v[{RING+32*slot+16+4*r}:{RING+32*slot+16+4*r+3}], v14, s[{SV}:{SV+3}], s54 offen offset:{1024*r} {pol}')
    for s in range(NB):
        for j in range(4): kload(s, j)
        for r in range(4): vload(s, r)
        e(f's_add_u32 s54, s54, {step}'); e('s_and_b32 s54, s54, s55')
    lab('L_sel')
    c('byte selectors for v_perm')
    e('s_mov_b32 s62, 0xaaaaaaaa'); e('s_mov_b32 s63, 0xaaaaaaaa')
    e('v_mov_b32 v8, 0x0c0c0100'); e('v_mov_b32 v9, 0x01000c0c')
    e('v_cndmask_b32 v60, v8, v9, s[62:63]')
    e('v_mov_b32 v8, 0x0c0c0302'); e('v_mov_b32 v9, 0x03020c0c')
    e('v_cndmask_b32 v61, v8, v9, s[62:63]')
    e('v_mov_b32 v62, 0x0c0c0c0c')
    e('s_mov_b32 s62, 0x03030303'); e('s_mov_b32 s63, 0x03030303')
    for k in range(4):
        e(f'v_cndmask_b32 v{SEL+2*k}, v62, v60, s[62:63]')
        e(f'v_cndmask_b32 v{SEL+2*k+1}, v62, v61, s[62:63]')
        if k < 3: e('s_lshl_b64 s[62:63], s[62:63], 2')
    e('v_mov_b32 v8, 0'); e(f'v_mov_b32 v9, {L_FLAG}')
    e('ds_write_b32 v9, v8'); e('ds_write_b32 v9, v8 offset:4')
    e(f's_cmp_ge_u32 s3, {WS}')
    e('s_cbranch_scc1 L_projwait')
    e(f's_waitcnt vmcnt({8*NB})')
    e('s_branch L_projmm')
    lab('L_projwait')
    e('s_waitcnt vmcnt(0)')
    lab('L_projmm')
    c('D[chunk][(b,i)] = sum_t W_t x delta(XP_t)')
    for t in range(16):
        r = RR + 4 * (t & 1)
        for k in range(4):
            e(f'v_perm_b32 v{r+k}, v{XP+(t>>1)}, v{XP+(t>>1)}, v{SEL+2*k+(t&1)}')
        if t > 0:
            tp = t - 1; rp = RR + 4 * (tp & 1)
            cc = '0' if tp == 0 else f'v[{DD}:{DD+3}]'
            e(f'v_mfma_f32_16x16x32_bf16 v[{DD}:{DD+3}], v[{WT+4*tp}:{WT+4*tp+3}], v[{rp}:{rp+3}], {cc}')
    e('s_nop 0')
    e(f'v_mfma_f32_16x16x32_bf16 v[{DD}:{DD+3}], v[{WT+60}:{WT+63}], v[{RR+4}:{RR+7}], v[{DD}:{DD+3}]')
    e('s_cmp_eq_u32 s64, 1'); e('s_cbranch_scc1 L_ret_qb')
    e('s_cmp_eq_u32 s64, 2'); e('s_cbranch_scc1 L_ret_fin')
    e('v_and_b32 v8, 7, v0'); e('v_lshlrev_b32 v8, 2, v8')
    e('v_lshl_add_u32 v8, v2, 7, v8'); e('v_lshl_add_u32 v8, v7, 9, v8')
    e('s_lshl_b32 s60, s3, 10'); e('v_add_u32 v8, s60, v8')
    e('s_nop 2')
    for r in range(4): e(f'ds_write_b32 v8, v{DD+r} offset:{32*r}')
    e('s_waitcnt lgkmcnt(0)')
    stamp(1)
    e('s_barrier')
    e(f's_cmp_ge_u32 s3, {WS+2}'); e('s_cbranch_scc1 L_exit')
    e(f's_cmp_ge_u32 s3, {WS}'); e('s_cbranch_scc1 L_service')
    e('s_lshl_b32 s60, s53, 9')
    e('v_lshl_add_u32 v8, v0, 3, s60')
    for p in range(8): e(f'ds_read_b64 v[{QQ+2*p}:{QQ+2*p+1}], v8 offset:{1024*p}')
    c('X/Y selectors, publish offset')
    e('s_mov_b32 s62, 0x33333333'); e('s_mov_b32 s63, 0x33333333')
    e('v_cndmask_b32 v34, v62, v60, s[62:63]'); e('v_cndmask_b32 v35, v62, v61, s[62:63]')
    e('v_cndmask_b32 v36, v60, v62, s[62:63]'); e('v_cndmask_b32 v37, v61, v62, s[62:63]')
    e('v_bfe_u32 v9, v0, 2, 2')
    e(f'v_mul_u32_u24 v15, {REC}, v9')
    e('v_and_b32 v10, 3, v0'); e('v_lshl_add_u32 v10, v2, 2, v10')
    e('v_lshl_add_u32 v15, v10, 4, v15')
    e(f'v_lshlrev_b32 v38, 4, v2'); e(f'v_add_u32 v38, {L_QA}, v38')
    e(f'v_lshl_add_u32 v39, v9, 8, v38'); e(f'v_add_u32 v39, {L_QB-L_QA}, v39')
    e(f'v_mov_b32 v40, {L_FLAG}'); e('v_mov_b32 v41, 1')
    e(f's_mov_b32 s59, 0x{f32(128**-0.5*1.4426950408889634):08x}')
    e('s_waitcnt lgkmcnt(0)')
    for p in range(1, 8):
        e(f'v_add_f32 v{QQ}, v{QQ}, v{QQ+2*p}'); e(f'v_add_f32 v{QQ+1}, v{QQ+1}, v{QQ+2*p+1}')
    e(f'v_cvt_pk_bf16_f32 v8, v{QQ}, v{QQ+1}')
    e(f'v_lshlrev_b32 v9, 2, v0')
    e(f'ds_write_b32 v9, v8 offset:{L_QA}')
    e(f's_mov_b32 s56, {itB}'); e('s_mov_b32 s57, 0')
    e('s_mov_b64 s[66:67], -1')
    e('v_mov_b32 v42, v38')
    lab('L_newphase')
    c('load Q fragments from LDS address v42, reset state')
    for j in range(4): e(f'ds_read_b128 v[{QQ+4*j}:{QQ+4*j+3}], v42 offset:{64*j}')
    e('s_cmp_eq_u32 s57, 2'); e('s_cbranch_scc1 L_restore')
    e(f'v_mov_b32 v10, 0x{f32(-3.0e38):08x}')
    e('v_mul_f32 v11, s59, v10'); e('v_sub_f32 v11, 0, v11')
    e('v_mov_b32 v12, 0')
    for r in range(8): e(f'v_mov_b32 v{16+r}, 0')
    e('s_branch L_go')
    lab('L_restore')
    for r in range(3): e(f'v_mov_b32 v{10+r}, v{WT+r}')
    for r in range(8): e(f'v_mov_b32 v{16+r}, v{WT+4+r}')
    lab('L_go')
    e('s_waitcnt lgkmcnt(0)')
    if DIAG:
        e('s_memrealtime s[70:71]'); e('s_add_u32 s60, s57, 2'); e('s_mov_b32 m0, s60'); e('s_waitcnt lgkmcnt(0)'); e('v_writelane_b32 v63, s70, m0')
    lab('L_loop')
    e('s_cmp_eq_u32 s56, 1'); e('s_cbranch_scc1 L_switch')
    lab('L_body')
    def ld(fn, *a):
        if lastexec: e('s_mov_b64 exec, s[66:67]')
        fn(*a)
        if lastexec: e('s_mov_b64 exec, -1')
    for s in range(NB):
        K = RING + 32 * s; V = K + 16
        for j in range(4):
            e(f's_waitcnt vmcnt({VM})')
            cc = '0' if j == 0 else 'v[4:7]'
            e(f'v_mfma_f32_16x16x32_bf16 v[4:7], v[{K+4*j}:{K+4*j+3}], v[{QQ+4*j}:{QQ+4*j+3}], {cc}')
            ld(kload, s, j)
        e('s_nop 6' if not lastexec else 's_nop 4')
        e('v_max3_f32 v8, v4, v5, v6'); e('v_max_f32 v8, v8, v7')
        e('v_cmp_gt_f32 vcc, v8, v10')
        e(f's_cbranch_vccz L_nors{s}')
        e('v_max_f32 v8, v8, v10')
        e('v_mov_b32 v9, v8'); e('s_nop 1'); e('v_permlane32_swap_b32 v8, v9'); e('v_max_f32 v8, v8, v9')
        e('v_mov_b32 v9, v8'); e('s_nop 1'); e('v_permlane16_swap_b32 v8, v9'); e('v_max_f32 v8, v8, v9')
        e('v_sub_f32 v9, v10, v8'); e('v_mul_f32 v9, s59, v9'); e('v_exp_f32 v9, v9')
        e('v_mov_b32 v10, v8'); e('v_mul_f32 v11, s59, v8'); e('v_sub_f32 v11, 0, v11')
        e('v_mul_f32 v12, v12, v9')
        for r in range(8): e(f'v_mul_f32 v{16+r}, v{16+r}, v9')
        lab(f'L_nors{s}')
        for r in range(4): e(f'v_fma_f32 v{4+r}, v{4+r}, s59, v11')
        for r in range(4): e(f'v_exp_f32 v{4+r}, v{4+r}')
        e('s_nop 0')
        e('v_cvt_pk_bf16_f32 v24, v4, v5'); e('v_cvt_pk_bf16_f32 v25, v6, v7')
        e('v_add_f32 v8, v4, v5'); e('v_add_f32 v9, v6, v7')
        for r in range(4):
            e(f'v_perm_b32 v{26+2*r}, v{24+(r>>1)}, v{24+(r>>1)}, v{34+(r&1)}')
            e(f'v_perm_b32 v{27+2*r}, v{24+(r>>1)}, v{24+(r>>1)}, v{36+(r&1)}')
        e('v_add_f32 v8, v8, v9'); e('v_add_f32 v12, v12, v8')
        for r in range(4):
            e(f's_waitcnt vmcnt({VM})')
            e(f'v_mfma_f32_16x16x16_bf16 v[16:19], v[{V+4*r}:{V+4*r+1}], v[{26+2*r}:{27+2*r}], v[16:19]')
            e(f'v_mfma_f32_16x16x16_bf16 v[20:23], v[{V+4*r+2}:{V+4*r+3}], v[{26+2*r}:{27+2*r}], v[20:23]')
            ld(vload, s, r)
        e(f's_add_u32 s54, s54, {step}'); e('s_and_b32 s54, s54, s55')
    e('s_sub_u32 s56, s56, 1'); e('s_cmp_lg_u32 s56, 0'); e('s_cbranch_scc1 L_loop')
    e('s_cmp_eq_u32 s57, 0'); e('s_cbranch_scc1 L_endA1')
    c('publish partial (phase 1 = B: all slots, phase 2 = A: slot 0)')
    e('v_mov_b32 v9, v12'); e('v_mul_f32 v8, s59, v10'); e('s_nop 0'); e('v_permlane32_swap_b32 v12, v9'); e('v_add_f32 v12, v12, v9')
    e('v_mov_b32 v9, v12'); e(f's_mul_i32 s60, s2, {STRIDE}'); e(f's_mul_i32 s61, s3, {WBLK}'); e('v_permlane16_swap_b32 v12, v9'); e('v_add_f32 v9, v12, v9')
    e('s_add_u32 s60, s60, s61')
    e('s_cmp_eq_u32 s57, 1')
    e(f's_cselect_b32 s61, {REC}, 0'); e('s_cselect_b32 s62, -1, 0x000f000f'); e('s_mov_b32 s63, s62')
    e('s_add_u32 s60, s60, s61')
    for r in list(range(16, 24)) + [8, 9]: e(f'v_min_u32 v{r}, -2, v{r}')
    e('s_mov_b64 exec, s[62:63]')
    e(f'buffer_store_dwordx4 v[16:19], v15, s[{SWS}:{SWS+3}], s60 offen sc1')
    e(f'buffer_store_dwordx4 v[20:23], v15, s[{SWS}:{SWS+3}], s60 offen offset:256 sc1')
    e('s_and_b32 exec_lo, s62, 0x1111'); e('s_mov_b32 exec_hi, 0')
    e(f'buffer_store_dwordx2 v[8:9], v15, s[{SWS}:{SWS+3}], s60 offen offset:512 sc1')
    e('s_mov_b64 exec, -1')
    e('s_cmp_eq_u32 s57, 2'); e('s_cbranch_scc1 L_exit')
    e('s_mov_b32 s57, 2'); e(f's_mov_b32 s56, {NIT_A - itB}')
    e('v_mov_b32 v42, v38')
    e('s_branch L_newphase')
    lab('L_endA1')
    e('s_nop 4')
    for r in range(3): e(f'v_mov_b32 v{WT+r}, v{10+r}')
    for r in range(8): e(f'v_mov_b32 v{WT+4+r}, v{16+r}')
    e(f's_mov_b32 s60, {SPIN}')
    lab('L_waitqb')
    e('ds_read_b32 v8, v40'); e('s_waitcnt lgkmcnt(0)'); e('v_readfirstlane_b32 s61, v8')
    e('s_sub_u32 s60, s60, 1'); e('s_cbranch_scc1 L_exit')
    e('s_cmp_eq_u32 s61, 0'); e('s_cbranch_scc1 L_waitqb')
    e('s_mov_b32 s57, 1'); e(f's_mov_b32 s56, {NIT_B}')
    e('v_mov_b32 v42, v39')
    e('s_branch L_newphase')
    lab('L_switch')
    c('switch load side to the next phase')
    e('s_cmp_eq_u32 s57, 0'); e('s_cbranch_scc1 L_sw_toB')
    e('s_mov_b64 exec, 1'); e('ds_add_u32 v40, v41 offset:4'); e('s_mov_b64 exec, -1')
    e('s_cmp_eq_u32 s57, 1'); e('s_cbranch_scc1 L_sw_toA')
    e(f's_mov_b32 s{SK+2}, 0'); e(f's_mov_b32 s{SV+2}, 0'); e('s_mov_b64 s[66:67], 1')
    e('s_branch L_body')
    lab('L_sw_toA')
    e('s_lshl_b32 s60, s65, 20')
    srd(SK, 6, 1 << 20, 's60'); srd(SV, 8, 1 << 20, 's60')
    e('s_mov_b32 s54, s58'); e(f's_mov_b32 s55, {(1<<20)-1}')
    e('s_branch L_body')
    lab('L_sw_toB')
    e('s_mov_b32 s58, s54')
    e('s_lshl_b32 s60, s53, 3'); e('s_add_u32 s60, s60, s30'); e('s_lshl_b32 s60, s60, 4')
    e('s_lshr_b32 s61, s31, 3'); e('s_lshl_b32 s61, s61, 2'); e('s_add_u32 s60, s60, s61')
    e('s_and_b32 s61, s31, 3'); e('s_add_u32 s60, s60, s61')
    e(f's_mul_i32 s54, s60, {skewB}'); e('s_lshl_b32 s61, s3, 12'); e('s_add_u32 s54, s54, s61')
    e(f's_mov_b32 s55, {(1<<18)-1}'); e('s_and_b32 s54, s54, s55')
    e('s_lshl_b32 s60, s60, 18')
    srd(SK, 16, 1 << 18, 's60'); srd(SV, 18, 1 << 18, 's60')
    e('s_branch L_body')
    lab('L_service')
    e(f'v_mov_b32 v44, {L_FLAG}')
    e(f's_mul_i32 s68, s2, {STRIDE}')
    e(f's_cmp_eq_u32 s3, {WS}'); e('s_cbranch_scc1 L_s0')
    c('S1: clear outboxes, qB partial')
    e('v_mov_b32 v8, -1'); e('v_mov_b32 v9, -1'); e('v_mov_b32 v10, -1'); e('v_mov_b32 v11, -1')
    e('s_mov_b32 s60, s68')
    nfull = CLR // 1024; rem = CLR % 1024
    for n in range(nfull):
        e(f'buffer_store_dwordx4 v[8:11], v14, s[{SWS}:{SWS+3}], s60 offen offset:{(n%4)*1024} sc1')
        if n % 4 == 3: e('s_addk_i32 s60, 0x1000')
    if rem:
        e(f's_mov_b64 exec, {(1 << (rem // 16)) - 1}')
        e(f'buffer_store_dwordx4 v[8:11], v14, s[{SWS}:{SWS+3}], s60 offen offset:{(nfull%4)*1024} sc1')
        e('s_mov_b64 exec, -1')
    srd(SW, 20, 1 << 22); srd(SX, 14, 2048)
    e('s_and_b32 s61, s31, 7'); e('s_mov_b32 s64, 1')
    e('s_branch L_projload')
    lab('L_ret_qb')
    e(f's_add_u32 s60, s68, {QBO}')
    srd(SX, 26, 256)
    e('s_nop 2')
    e(f'buffer_store_dwordx4 v[{DD}:{DD+3}], v14, s[{SWS}:{SWS+3}], s60 offen sc1')
    e('v_mov_b32 v8, 1'); e('v_mov_b32 v9, 0')
    e('s_waitcnt vmcnt(0)')
    e('s_mov_b64 exec, 1')
    e(f'buffer_atomic_add v8, v9, s[{SX}:{SX+3}], 0 offen sc1')
    e('s_mov_b64 exec, -1')
    stamp(2)
    srd(SW, 22, 1 << 22)
    e('s_branch L_woload')
    lab('L_s0')
    srd(SW, 12, 1 << 22)
    lab('L_woload')
    e('v_lshl_add_u32 v5, v2, 15, v4')
    e('s_lshl_b32 s60, s52, 17'); e('s_lshl_b32 s61, s53, 12'); e('s_add_u32 s60, s60, s61')
    e('s_and_b32 s61, s31, 3'); e('s_lshl_b32 s61, s61, 8'); e('s_add_u32 s60, s60, s61')
    for t3 in range(4):
        for t2 in range(4):
            t = t2 * 4 + t3
            e(f'buffer_load_dwordx4 v[{WT+4*t}:{WT+4*t+3}], v5, s[{SW}:{SW+3}], s60 offen offset:{1024*t2} {wpol}')
        if t3 < 3: e('s_addk_i32 s60, 0x2000')
    c('gather lane offsets')
    e('v_bfe_u32 v8, v0, 1, 3')
    e(f's_mov_b32 s60, {8*STRIDE}'); e('v_mul_lo_u32 v8, v8, s60')
    e('v_and_b32 v9, 1, v0'); e(f'v_mul_u32_u24 v9, {WBLK}, v9')
    e('v_add_u32 v13, v8, v9')
    e('s_lshl_b32 s60, s53, 8')
    e('v_lshl_add_u32 v15, v2, 6, v13'); e('v_add_u32 v15, s60, v15')
    e('v_and_b32 v8, 7, v0'); e('v_lshrrev_b32 v9, 3, v0'); e('v_lshl_add_u32 v8, v9, 5, v8')
    e(f's_mov_b32 s60, {STRIDE}'); e('v_mul_lo_u32 v12, v8, s60')
    e(f's_cmp_eq_u32 s3, {WS}'); e('s_cbranch_scc1 L_s0b')
    c('S1: wait for all workgroups ready, gather qB')
    e('v_mov_b32 v9, 0')
    e(f's_mov_b32 s60, {SPIN}')
    lab('L_waitready')
    e('s_sleep 8')
    e(f'buffer_load_dword v8, v9, s[{SX}:{SX+3}], 0 offen sc1')
    e('s_waitcnt vmcnt(0)'); e('v_readfirstlane_b32 s61, v8')
    e('s_sub_u32 s60, s60, 1'); e('s_cbranch_scc1 L_exit')
    e('s_cmp_lt_u32 s61, 256'); e('s_cbranch_scc1 L_waitready')
    stamp(3)
    e('v_lshrrev_b32 v8, 5, v0'); e(f's_mov_b32 s60, {64*STRIDE}'); e('v_mul_lo_u32 v10, v8, s60')
    e('v_bfe_u32 v9, v0, 3, 2'); e('v_lshl_add_u32 v10, v9, 8, v10')
    e('v_and_b32 v11, 7, v0'); e('v_lshl_add_u32 v10, v11, 4, v10')
    e(f's_mul_i32 s60, s30, {STRIDE}'); e('s_lshl_b32 s61, s53, 7'); e('s_add_u32 s60, s60, s61'); e(f's_add_u32 s60, s60, {QBO}')
    for a in range(2):
        for p in range(8):
            n = a * 8 + p
            e(f'buffer_load_dwordx4 v[{64+4*n}:{64+4*n+3}], v10, s[{SWS}:{SWS+3}], s60 offen sc1')
            if p < 7: e(f's_add_u32 s60, s60, {8*STRIDE}')
        if a == 0: e(f's_add_u32 s60, s60, {(128-56)*STRIDE}')
    e('v_lshlrev_b32 v8, 8, v8'); e('v_lshl_add_u32 v8, v9, 6, v8'); e('v_lshl_add_u32 v8, v11, 1, v8')
    e('s_waitcnt vmcnt(0)')
    for a in range(2):
        for p in range(1, 8):
            for r in range(4): e(f'v_add_f32 v{64+32*a+r}, v{64+32*a+r}, v{64+32*a+4*p+r}')
        for r in range(4):
            e(f'v_cvt_pk_bf16_f32 v{64+32*a+r}, v{64+32*a+r}, v{64+32*a+r}')
        for r in range(4):
            e(f'ds_write_b16 v8, v{64+32*a+r} offset:{L_QB + 512*a + 16*r}')
    e('v_mov_b32 v8, 1')
    e('s_waitcnt lgkmcnt(0)')
    e('ds_write_b32 v44, v8')
    stamp(4)
    c('FIN params for B')
    e(f's_mul_i32 s74, s30, {STRIDE}'); e('s_lshr_b32 s60, s31, 3'); e(f's_mul_i32 s60, s60, {REC}')
    e('s_add_u32 s74, s74, s60'); e(f's_add_u32 s74, s74, {REC}')
    e(f's_mov_b32 s75, {4*(WS//2)}'); e(f's_mov_b32 s76, {YB}'); e('s_mov_b32 s77, 1024'); e(f's_mov_b32 s78, {WS}')
    e('s_branch L_fin')
    lab('L_s0b')
    e('s_and_b32 s60, s2, 0xc7'); e(f's_mul_i32 s74, s60, {STRIDE}')
    e(f's_mov_b32 s75, {WS//2}'); e(f's_mov_b32 s76, {YA}'); e('s_mov_b32 s77, 0'); e(f's_mov_b32 s78, {2*WS}')
    lab('L_fin')
    c('wait until own streaming waves are in the last iteration of the phase')
    e(f's_mov_b32 s60, {SPIN*4}')
    lab('L_waitown')
    e('s_sleep 2')
    e('ds_read_b32 v8, v44 offset:4'); e('s_waitcnt lgkmcnt(0)'); e('v_readfirstlane_b32 s61, v8')
    e('s_sub_u32 s60, s60, 1'); e('s_cbranch_scc1 L_exit')
    e('s_cmp_lt_u32 s61, s78'); e('s_cbranch_scc1 L_waitown')
    stamp(5)
    srd(SX, 24, 4096)
    ACC = 64; ML = 80; TM = 84; TML = 100
    def gather(label, A, M, soff):
        e(f's_mov_b32 s60, {SPIN}')
        lab(label)
        for k in range(4): e(f'buffer_load_dwordx4 v[{A+4*k}:{A+4*k+3}], v15, s[{SWS}:{SWS+3}], {soff} offen offset:{16*k} sc1')
        e(f'buffer_load_dwordx2 v[{M}:{M+1}], v13, s[{SWS}:{SWS+3}], {soff} offen offset:512 sc1')
        e('s_sub_u32 s60, s60, 1'); e('s_cbranch_scc1 L_exit')
        e('s_waitcnt vmcnt(0)')
        e(f'v_max3_u32 v8, v{M}, v{M+1}, v{A}')
        e(f'v_max3_u32 v9, v{A+1}, v{A+2}, v{A+3}')
        for k in range(4, 16, 4):
            e(f'v_max3_u32 v8, v8, v{A+k}, v{A+k+1}'); e(f'v_max3_u32 v9, v9, v{A+k+2}, v{A+k+3}')
        e('v_max_u32 v8, v8, v9')
        e('v_cmp_eq_u32 vcc, -1, v8')
        e(f's_cbranch_vccnz {label}')
    gather('L_g0', ACC, ML, 's74')
    e('s_mov_b32 s79, 1')
    e('s_cmp_eq_u32 s75, 1'); e('s_cbranch_scc1 L_gdone')
    lab('L_gmore')
    h = WS // 2
    e(f's_and_b32 s61, s79, {h-1}'); e(f's_mul_i32 s61, s61, {2*WBLK}')
    e(f's_lshr_b32 s62, s79, {h.bit_length()-1}'); e(f's_mul_i32 s62, s62, {64*STRIDE}')
    e('s_add_u32 s80, s74, s61'); e('s_add_u32 s80, s80, s62')
    gather('L_g1', TM, TML, 's80')
    e(f'v_max_f32 v8, v{ML}, v{TML}')
    e(f'v_sub_f32 v9, v{ML}, v8'); e(f'v_sub_f32 v10, v{TML}, v8'); e('v_exp_f32 v9, v9'); e('v_exp_f32 v10, v10')
    e(f'v_mov_b32 v{ML}, v8')
    e(f'v_mul_f32 v{ML+1}, v{ML+1}, v9'); e(f'v_fmac_f32 v{ML+1}, v{TML+1}, v10')
    for t in range(16):
        e(f'v_mul_f32 v{ACC+t}, v{ACC+t}, v9'); e(f'v_fmac_f32 v{ACC+t}, v{TM+t}, v10')
    e('s_add_u32 s79, s79, 1'); e('s_cmp_lt_u32 s79, s75'); e('s_cbranch_scc1 L_gmore')
    lab('L_gdone')
    stamp(6)
    DP = ['quad_perm:[1,0,3,2]', 'quad_perm:[2,3,0,1]', 'row_half_mirror']
    e(f'v_mov_b32 v8, v{ML}')
    for d in DP:
        e('s_nop 1'); e(f'v_max_f32_dpp v8, v8, v8 {d} row_mask:0xf bank_mask:0xf')
    e(f'v_sub_f32 v9, v{ML}, v8'); e('v_exp_f32 v9, v9'); e('s_nop 0')
    e(f'v_mul_f32 v10, v{ML+1}, v9')
    for d in DP:
        e('s_nop 1'); e(f'v_add_f32_dpp v10, v10, v10 {d} row_mask:0xf bank_mask:0xf')
    e('v_rcp_f32 v10, v10'); e('s_nop 0'); e('v_mul_f32 v9, v9, v10')
    for t in range(16): e(f'v_mul_f32 v{ACC+t}, v{ACC+t}, v9')
    for d in DP:
        for t in range(16): e(f'v_add_f32_dpp v{ACC+t}, v{ACC+t}, v{ACC+t} {d} row_mask:0xf bank_mask:0xf')
    for k in range(8): e(f'v_cvt_pk_bf16_f32 v{XP+k}, v{ACC+2*k}, v{ACC+2*k+1}')
    e('s_mov_b32 s64, 2')
    e('s_branch L_projmm')
    lab('L_ret_fin')
    e('s_add_u32 s60, s68, s76')
    e('s_and_b32 s61, s2, 3'); e(f's_mul_i32 s62, s61, {8*STRIDE}'); e('s_add_u32 s62, s62, s76')
    e('s_lshr_b32 s63, s2, 2'); e('s_lshl_b32 s79, s63, 4'); e('s_add_u32 s62, s62, s79')
    for r in range(4): e(f'v_min_u32 v{DD+r}, -2, v{DD+r}')
    e(f'buffer_store_dwordx4 v[{DD}:{DD+3}], v14, s[{SWS}:{SWS+3}], s60 offen sc1')
    stamp(7)
    c('output offset')
    e('s_lshl_b32 s61, s61, 8'); e('s_add_u32 s77, s77, s61')
    e('s_lshr_b32 s61, s63, 4'); e('s_lshl_b32 s61, s61, 6'); e('s_add_u32 s77, s77, s61')
    e('s_bfe_u32 s61, s63, 0x10003'); e('s_lshl_b32 s61, s61, 11'); e('s_add_u32 s77, s77, s61')
    e('s_and_b32 s61, s63, 7'); e('s_lshl_b32 s61, s61, 1'); e('s_add_u32 s77, s77, s61')
    e('v_and_b32 v8, 1, v2'); e('v_lshrrev_b32 v9, 1, v2'); e('v_lshl_add_u32 v8, v8, 1, v9'); e('v_lshlrev_b32 v11, 4, v8')
    e(f's_mov_b32 s60, {SPIN}')
    lab('L_y')
    e(f'buffer_load_dwordx4 v[4:7], v12, s[{SWS}:{SWS+3}], s62 offen sc1')
    e('s_sub_u32 s60, s60, 1'); e('s_cbranch_scc1 L_exit')
    e('s_waitcnt vmcnt(0)')
    e('v_max3_u32 v8, v4, v5, v6'); e('v_max_u32 v8, v8, v7')
    e('v_cmp_eq_u32 vcc, -1, v8')
    e('s_cbranch_vccnz L_y')
    stamp(8)
    e('v_permlane32_swap_b32 v4, v5'); e('v_permlane32_swap_b32 v6, v7')
    e('v_add_f32 v4, v4, v5'); e('v_add_f32 v6, v6, v7'); e('s_nop 1')
    e('v_permlane16_swap_b32 v4, v6'); e('v_add_f32 v4, v4, v6')
    for d in (8, 4, 2, 1):
        e('s_nop 1'); e(f'v_add_f32_dpp v4, v4, v4 row_ror:{d} row_mask:0xf bank_mask:0xf')
    e('v_cvt_pk_bf16_f32 v4, v4, v4')
    e('s_mov_b32 exec_lo, 0x00010001'); e('s_mov_b32 exec_hi, 0x00010001')
    e(f'buffer_store_short v4, v11, s[{SX}:{SX+3}], s77 offen')
    e('s_mov_b64 exec, -1')
    lab('L_exit')
    if DIAG:
        e('s_waitcnt vmcnt(0)')
        stamp(9)
        e('s_add_u32 s48, s28, 0x4000000'); e('s_addc_u32 s49, s29, 0'); e('s_mov_b32 s50, 0x100000')
        e('s_lshl_b32 s60, s2, 3'); e('s_add_u32 s60, s60, s3'); e('s_lshl_b32 s60, s60, 8')
        e('v_lshlrev_b32 v1, 2, v0')
        e(f'buffer_store_dword v63, v1, s[{SWS}:{SWS+3}], s60 offen')
    lab('L_end')
    e('s_endpgm')
    L.append('.section .rodata,"a"'); L.append('.p2align 6'); L.append(f'.amdhsa_kernel {NAME}')
    L.append('  .amdhsa_next_free_vgpr 256'); L.append('  .amdhsa_next_free_sgpr 96'); L.append('  .amdhsa_accum_offset 256')
    L.append('  .amdhsa_group_segment_fixed_size 0'); L.append('  .amdhsa_kernarg_size 104'); L.append('  .amdhsa_user_sgpr_count 2')
    L.append('  .amdhsa_user_sgpr_kernarg_segment_ptr 1'); L.append('  .amdhsa_system_sgpr_workgroup_id_x 1'); L.append('.end_amdhsa_kernel')
    return '\n'.join(L) + '\n'

if __name__ == '__main__':
    kw = {}
    for a in sys.argv[2:]:
        k, v = a.split('=')
        kw[k] = v if k.endswith('pol') else int(v)
    open(sys.argv[1], 'w').write(gen(**kw))
```

```python
import sys, struct, os
NAME = 'concat_heads__mha_block_cached__gqa_block_cached__decode_kernel'
def f32(x): return struct.unpack('<I', struct.pack('<f', x))[0]
_ref = 'concat_heads__mha_block_cached__gqa_block_cached__decode.s.ref'
HEADER = open(_ref).read().split('; Override launch')[0] if os.path.exists(_ref) else ''

def gen(WS=2, NB=2, D=9, itB=24, skewA=16384, skewB=16384, DIAG=0, pol='nt', wqpol='nt', wpol='nt', lds=16384,
        tQ=6, tB1=8, tB2=14, prio=3, rot=1, noserv=0, nocomp=0, slp=4, noclear=0, nofinB=0, pf=0, pfpol='nt', noextra=0):
    NW = 8
    REC = 640
    WBLK = 5 * REC
    YA = WS * WBLK
    YB = YA + 1024
    QBO = YB + 1024
    STRIDE = QBO + 1024
    CLR = QBO
    WSBYTES = 256 * STRIDE
    L_QA = 8192; L_QB = L_QA + 256; L_FLAG = L_QB + 1024
    NIT_A = 256 // (WS * NB); NIT_B = 64 // (WS * NB)
    assert 256 % (WS * NB) == 0 and 64 % (WS * NB) == 0
    assert 1 <= itB < NIT_A
    step = WS * 4096
    VM = min(8 * NB - 1, D)
    SPIN = 1 << 18
    W0, W1, W2 = WS, WS + 1, WS + 2
    L = []
    def e(s): L.append('    ' + s)
    def lab(s): L.append(s + ':')
    def c(s): L.append('    ; ' + s)
    L.append(HEADER.rstrip('\n'))
    L.append(f'; @launch grid=(256,1,1) block=({NW*64},1,1) lds={lds}')
    L.append('.amdgcn_target "amdgcn-amd-amdhsa--gfx950"')
    L.append('.text'); L.append(f'.globl {NAME}'); L.append('.p2align 8'); L.append(f'.type {NAME},@function')
    lab(NAME)
    def stamp(idx):
        if not DIAG: return
        e('s_memrealtime s[70:71]'); e('s_waitcnt lgkmcnt(0)'); e(f'v_writelane_b32 v63, s70, {idx}')
    def srd(d, lo, size, off=None):
        if off is None:
            e(f's_mov_b32 s{d}, s{lo}'); e(f's_mov_b32 s{d+1}, s{lo+1}')
        else:
            e(f's_add_u32 s{d}, s{lo}, {off}'); e(f's_addc_u32 s{d+1}, s{lo+1}, 0')
        e(f's_mov_b32 s{d+2}, {size}'); e(f's_mov_b32 s{d+3}, 0x20000')
    SK, SV, SW, SX, SWS = 32, 36, 40, 44, 48
    RING = 64; WT = 192; W2ND = 128; XP = 16; SEL = 24; RR = 32; DD = 40; QQ = 44
    assert RING + 32 * NB <= WT
    e('s_cmp_ge_u32 s2, 256'); e('s_cbranch_scc1 L_end')
    e('s_load_dwordx16 s[4:19], s[0:1], 0')
    e('s_load_dwordx8 s[20:27], s[0:1], 64')
    e('s_load_dwordx2 s[28:29], s[0:1], 96')
    if DIAG:
        e('v_mov_b32 v63, 0')
        e('s_memrealtime s[72:73]')
    if prio: e(f's_setprio {prio}')
    e('v_lshrrev_b32 v1, 6, v0')
    e('v_and_b32 v0, 63, v0')
    e('v_readfirstlane_b32 s3, v1')
    e('s_and_b32 s30, s2, 7')
    e('s_lshr_b32 s31, s2, 3')
    e('s_lshr_b32 s60, s31, 3')
    e('s_lshl_b32 s52, s30, 2')
    e('s_add_u32 s52, s52, s60')
    e('s_bfe_u32 s53, s31, 0x10002')
    e('v_lshrrev_b32 v2, 4, v0')
    e('v_and_b32 v3, 15, v0')
    e('v_lshlrev_b32 v14, 4, v0')
    e('v_lshlrev_b32 v4, 4, v3')
    e('v_lshl_add_u32 v5, v2, 17, v4')
    e('v_bfe_u32 v7, v0, 3, 1')
    e('v_lshlrev_b32 v6, 5, v2')
    e('v_lshl_add_u32 v6, v7, 10, v6')
    if rot:
        e('s_add_u32 s61, s3, s31'); e('s_and_b32 s61, s61, 7')
    else:
        e('s_mov_b32 s61, s3')
    e('s_lshl_b32 s69, s61, 7')
    e('s_lshl_b32 s60, s61, 19')
    e('s_lshl_b32 s62, s52, 8')
    e('s_add_u32 s60, s60, s62')
    e('s_waitcnt lgkmcnt(0)')
    if DIAG: e('v_writelane_b32 v63, s72, 0')
    srd(SW, 10, 1 << 22); srd(SX, 4, 2048)
    for t in range(16):
        e(f'buffer_load_dwordx4 v[{WT+4*t}:{WT+4*t+3}], v5, s[{SW}:{SW+3}], s60 offen {wqpol}')
        if t < 15: e('s_addk_i32 s60, 0x2000')
    e(f'buffer_load_dwordx4 v[{XP}:{XP+3}], v6, s[{SX}:{SX+3}], s69 offen')
    e(f'buffer_load_dwordx4 v[{XP+4}:{XP+7}], v6, s[{SX}:{SX+3}], s69 offen offset:16')
    if prio: e('s_setprio 0')
    e('s_mov_b32 s64, 0')
    e('s_lshl_b32 s60, s53, 5'); e('s_add_u32 s60, s60, s52'); e('s_lshl_b32 s60, s60, 2')
    e('s_and_b32 s62, s31, 3'); e('s_add_u32 s65, s60, s62')
    e('s_lshl_b32 s60, s65, 20')
    srd(SK, 6, 1 << 20, 's60'); srd(SV, 8, 1 << 20, 's60')
    e('v_and_b32 v8, 3, v0'); e('v_bfe_u32 v9, v0, 2, 2')
    e('v_lshl_add_u32 v8, v2, 2, v8')
    e('v_lshlrev_b32 v8, 4, v8')
    e('v_lshl_add_u32 v13, v9, 8, v8')
    e(f's_mul_i32 s54, s65, {skewA}')
    e(f's_mov_b32 s55, {(1<<20)-1}')
    e(f's_cmp_ge_u32 s3, {WS}')
    e('s_cbranch_scc1 L_extra')
    c('streaming waves: ring prefetch')
    e('s_lshl_b32 s60, s3, 12')
    e('s_add_u32 s54, s54, s60')
    e('s_and_b32 s54, s54, s55')
    def kload(slot, j): e(f'buffer_load_dwordx4 v[{RING+32*slot+4*j}:{RING+32*slot+4*j+3}], v13, s[{SK}:{SK+3}], s54 offen offset:{1024*j} {pol}')
    def vload(slot, r): e(f'buffer_load_dwordx4 v[{RING+32*slot+16+4*r}:{RING+32*slot+16+4*r+3}], v14, s[{SV}:{SV+3}], s54 offen offset:{1024*r} {pol}')
    for s in range(NB):
        for j in range(4): kload(s, j)
        for r in range(4): vload(s, r)
        e(f's_add_u32 s54, s54, {step}'); e('s_and_b32 s54, s54, s55')
    e('s_branch L_sel')
    lab('L_extra')
    if not noextra:
        e(f's_cmp_gt_u32 s3, {W2}'); e('s_cbranch_scc1 L_pf')
        e(f's_cmp_eq_u32 s3, {W2}'); e('s_cbranch_scc1 L_wqb')
        c('finisher waves: wo slice')
        e(f's_cmp_eq_u32 s3, {W0}')
        e(f's_cselect_b32 s{SW}, s12, s22'); e(f's_cselect_b32 s{SW+1}, s13, s23')
        e('v_lshl_add_u32 v5, v2, 15, v4')
        e('s_lshl_b32 s60, s52, 17'); e('s_lshl_b32 s62, s53, 12'); e('s_add_u32 s60, s60, s62')
        e('s_and_b32 s62, s31, 3'); e('s_lshl_b32 s62, s62, 8'); e('s_add_u32 s60, s60, s62')
        for t3 in range(4):
            for t2 in range(4):
                t = t2 * 4 + t3
                e(f'buffer_load_dwordx4 v[{W2ND+4*t}:{W2ND+4*t+3}], v5, s[{SW}:{SW+3}], s60 offen offset:{1024*t2} {wpol}')
            if t3 < 3: e('s_addk_i32 s60, 0x2000')
        e('s_branch L_sel')
        lab('L_wqb')
        e(f's_mov_b32 s{SW}, s20'); e(f's_mov_b32 s{SW+1}, s21')
        e('s_and_b32 s60, s31, 7'); e('s_lshl_b32 s60, s60, 19'); e('s_lshl_b32 s62, s52, 8'); e('s_add_u32 s60, s60, s62')
        for t in range(16):
            e(f'buffer_load_dwordx4 v[{W2ND+4*t}:{W2ND+4*t+3}], v5, s[{SW}:{SW+3}], s60 offen {wpol}')
            if t < 15: e('s_addk_i32 s60, 0x2000')
        e('s_branch L_sel')
    lab('L_pf')
    e('s_waitcnt vmcnt(0)')
    lab('L_sel')
    c('byte selectors for v_perm')
    srd(SWS, 28, WSBYTES)
    e('s_mov_b32 s62, 0xaaaaaaaa'); e('s_mov_b32 s63, 0xaaaaaaaa')
    e('v_mov_b32 v8, 0x0c0c0100'); e('v_mov_b32 v9, 0x01000c0c')
    e('v_cndmask_b32 v60, v8, v9, s[62:63]')
    e('v_mov_b32 v8, 0x0c0c0302'); e('v_mov_b32 v9, 0x03020c0c')
    e('v_cndmask_b32 v61, v8, v9, s[62:63]')
    e('v_mov_b32 v62, 0x0c0c0c0c')
    e('s_mov_b32 s62, 0x03030303'); e('s_mov_b32 s63, 0x03030303')
    for k in range(4):
        e(f'v_cndmask_b32 v{SEL+2*k}, v62, v60, s[62:63]')
        e(f'v_cndmask_b32 v{SEL+2*k+1}, v62, v61, s[62:63]')
        if k < 3: e('s_lshl_b64 s[62:63], s[62:63], 2')
    e('v_mov_b32 v8, 0'); e(f'v_mov_b32 v9, {L_FLAG}')
    e('ds_write_b32 v9, v8'); e('ds_write_b32 v9, v8 offset:4')
    if NB == 2:
        e('s_waitcnt vmcnt(16)')
    else:
        e(f's_cmp_ge_u32 s3, {WS}'); e('s_cbranch_scc1 L_w16')
        e(f's_waitcnt vmcnt({8*NB})'); e('s_branch L_projmm')
        lab('L_w16'); e('s_waitcnt vmcnt(16)')
    lab('L_projmm')
    c('D[chunk][(b,i)] = sum_t W_t x delta(XP_t)')
    for t in range(16):
        r = RR + 4 * (t & 1)
        for k in range(4):
            e(f'v_perm_b32 v{r+k}, v{XP+(t>>1)}, v{XP+(t>>1)}, v{SEL+2*k+(t&1)}')
        if t > 0:
            tp = t - 1; rp = RR + 4 * (tp & 1)
            cc = '0' if tp == 0 else f'v[{DD}:{DD+3}]'
            e(f'v_mfma_f32_16x16x32_bf16 v[{DD}:{DD+3}], v[{WT+4*tp}:{WT+4*tp+3}], v[{rp}:{rp+3}], {cc}')
    e('s_nop 0')
    e(f'v_mfma_f32_16x16x32_bf16 v[{DD}:{DD+3}], v[{WT+60}:{WT+63}], v[{RR+4}:{RR+7}], v[{DD}:{DD+3}]')
    e('s_cmp_eq_u32 s64, 2'); e('s_cbranch_scc1 L_ret_fin')
    e('s_cmp_eq_u32 s64, 1'); e('s_cbranch_scc1 L_ret_qb')
    e('v_and_b32 v8, 7, v0'); e('v_lshlrev_b32 v8, 2, v8')
    e('v_lshl_add_u32 v8, v2, 7, v8'); e('v_lshl_add_u32 v8, v7, 9, v8')
    e('s_lshl_b32 s60, s61, 10'); e('v_add_u32 v8, s60, v8')
    for r in range(4): e(f'ds_write_b32 v8, v{DD+r} offset:{32*r}')
    e('s_waitcnt lgkmcnt(0)')
    stamp(1)
    e('s_barrier')
    e(f's_cmp_ge_u32 s3, {WS}'); e('s_cbranch_scc1 L_service')
    SD = 48
    e('s_lshl_b32 s60, s53, 9')
    e('v_lshl_add_u32 v8, v0, 3, s60')
    for p in range(8): e(f'ds_read_b64 v[{WT+2*p}:{WT+2*p+1}], v8 offset:{1024*p}')
    c('X/Y selectors, publish offset')
    e('s_mov_b32 s62, 0x33333333'); e('s_mov_b32 s63, 0x33333333')
    e('v_cndmask_b32 v34, v62, v60, s[62:63]'); e('v_cndmask_b32 v35, v62, v61, s[62:63]')
    e('v_cndmask_b32 v36, v60, v62, s[62:63]'); e('v_cndmask_b32 v37, v61, v62, s[62:63]')
    e('v_bfe_u32 v9, v0, 2, 2')
    e(f'v_mul_u32_u24 v15, {REC}, v9')
    e('v_and_b32 v10, 3, v0'); e('v_lshl_add_u32 v10, v2, 2, v10')
    e('v_lshl_add_u32 v15, v10, 4, v15')
    e(f'v_lshlrev_b32 v38, 4, v10'); e(f'v_add_u32 v38, {L_QA}, v38')
    e(f'v_lshl_add_u32 v39, v9, 8, v38'); e(f'v_add_u32 v39, {L_QB-L_QA}, v39')
    e(f'v_mov_b32 v40, {L_FLAG}'); e('v_mov_b32 v41, 1')
    e(f's_mov_b32 s59, 0x{f32(128**-0.5*1.4426950408889634):08x}')
    e('s_waitcnt lgkmcnt(0)')
    for p in range(1, 8):
        e(f'v_add_f32 v{WT}, v{WT}, v{WT+2*p}'); e(f'v_add_f32 v{WT+1}, v{WT+1}, v{WT+2*p+1}')
    e(f'v_cvt_pk_bf16_f32 v8, v{WT}, v{WT+1}')
    e(f'v_lshlrev_b32 v9, 2, v0')
    e(f'ds_write_b32 v9, v8 offset:{L_QA}')
    e(f's_mov_b32 s56, {itB}'); e('s_mov_b32 s57, 0')
    e('v_mov_b32 v42, v38')
    lab('L_newphase')
    c('load Q fragment from LDS address v42, reset state')
    e(f'ds_read_b128 v[{QQ}:{QQ+3}], v42')
    e('s_cmp_eq_u32 s57, 2'); e('s_cbranch_scc1 L_restore')
    e(f'v_mov_b32 v10, 0x{f32(-3.0e38):08x}')
    e('v_mul_f32 v11, s59, v10'); e('v_sub_f32 v11, 0, v11')
    e('v_mov_b32 v12, 0')
    for r in range(8): e(f'v_mov_b32 v{16+r}, 0')
    e('s_branch L_go')
    lab('L_restore')
    for r in range(3): e(f'v_mov_b32 v{10+r}, v{WT+r}')
    for r in range(8): e(f'v_mov_b32 v{16+r}, v{WT+4+r}')
    lab('L_go')
    e('s_waitcnt lgkmcnt(0)')
    if DIAG:
        e('s_memrealtime s[70:71]'); e('s_add_u32 s60, s57, 2'); e('s_mov_b32 m0, s60'); e('s_waitcnt lgkmcnt(0)'); e('v_writelane_b32 v63, s70, m0')
    lab('L_loop')
    e('s_mov_b64 exec, 1'); e('ds_add_u32 v40, v41 offset:4'); e('s_mov_b64 exec, -1')
    e('s_cmp_eq_u32 s56, 1'); e('s_cbranch_scc1 L_switch')
    lab('L_body')
    QD = WT + 16
    for s in range(NB):
        K = RING + 32 * s; V = K + 16
        if nocomp:
            for j in range(4):
                e(f's_waitcnt vmcnt({VM})'); kload(s, j)
            for r in range(4):
                e(f's_waitcnt vmcnt({VM})'); vload(s, r)
            e(f's_add_u32 s54, s54, {step}'); e('s_and_b32 s54, s54, s55')
            continue
        for j in range(4):
            e(f's_waitcnt vmcnt({VM})')
            e(f'v_mfma_f32_16x16x32_bf16 v[{QD+4*j}:{QD+4*j+3}], v[{K+4*j}:{K+4*j+3}], v[{QQ}:{QQ+3}], 0')
            kload(s, j)
        e('s_nop 3')
        for k in range(4):
            for j in range(4):
                if k == 0: e(f'v_mov_b32_dpp v{4+j}, v{QD+4*j} quad_perm:[0,0,0,0] row_mask:0xf bank_mask:0xf')
                else: e(f'v_add_f32_dpp v{4+j}, v{QD+4*j+k}, v{4+j} quad_perm:[{k},{k},{k},{k}] row_mask:0xf bank_mask:0xf')
        e('v_max3_f32 v8, v4, v5, v6'); e('v_max_f32 v8, v8, v7')
        e('v_cmp_gt_f32 vcc, v8, v10')
        e(f's_cbranch_vccz L_nors{s}')
        e('v_max_f32 v8, v8, v10')
        e('v_mov_b32 v9, v8'); e('s_nop 1'); e('v_permlane32_swap_b32 v8, v9'); e('v_max_f32 v8, v8, v9')
        e('v_mov_b32 v9, v8'); e('s_nop 1'); e('v_permlane16_swap_b32 v8, v9'); e('v_max_f32 v8, v8, v9')
        e('v_sub_f32 v9, v10, v8'); e('v_mul_f32 v9, s59, v9'); e('v_exp_f32 v9, v9')
        e('v_mov_b32 v10, v8'); e('v_mul_f32 v11, s59, v8'); e('v_sub_f32 v11, 0, v11')
        e('v_mul_f32 v12, v12, v9')
        for r in range(8): e(f'v_mul_f32 v{16+r}, v{16+r}, v9')
        lab(f'L_nors{s}')
        for r in range(4): e(f'v_fma_f32 v{4+r}, v{4+r}, s59, v11')
        for r in range(4): e(f'v_exp_f32 v{4+r}, v{4+r}')
        e('s_nop 0')
        e('v_cvt_pk_bf16_f32 v24, v4, v5'); e('v_cvt_pk_bf16_f32 v25, v6, v7')
        e('v_add_f32 v8, v4, v5'); e('v_add_f32 v9, v6, v7')
        for r in range(4):
            e(f'v_perm_b32 v{26+2*r}, v{24+(r>>1)}, v{24+(r>>1)}, v{34+(r&1)}')
            e(f'v_perm_b32 v{27+2*r}, v{24+(r>>1)}, v{24+(r>>1)}, v{36+(r&1)}')
        e('v_add_f32 v8, v8, v9'); e('v_add_f32 v12, v12, v8')
        for r in range(4):
            e(f's_waitcnt vmcnt({VM})')
            e(f'v_mfma_f32_16x16x16_bf16 v[16:19], v[{V+4*r}:{V+4*r+1}], v[{26+2*r}:{27+2*r}], v[16:19]')
            e(f'v_mfma_f32_16x16x16_bf16 v[20:23], v[{V+4*r+2}:{V+4*r+3}], v[{26+2*r}:{27+2*r}], v[20:23]')
            vload(s, r)
        e(f's_add_u32 s54, s54, {step}'); e('s_and_b32 s54, s54, s55')
    e('s_sub_u32 s56, s56, 1'); e('s_cmp_lg_u32 s56, 0'); e('s_cbranch_scc1 L_loop')
    e('s_cmp_eq_u32 s57, 0'); e('s_cbranch_scc1 L_endA1')
    c('publish partial (phase 1 = B: all slots, phase 2 = A: slot 0)')
    e('v_mov_b32 v9, v12'); e('v_mul_f32 v8, s59, v10'); e('s_nop 0'); e('v_permlane32_swap_b32 v12, v9'); e('v_add_f32 v12, v12, v9')
    e('v_mov_b32 v9, v12'); e(f's_mul_i32 s60, s2, {STRIDE}'); e(f's_mul_i32 s61, s3, {WBLK}'); e('v_permlane16_swap_b32 v12, v9'); e('v_add_f32 v9, v12, v9')
    e('s_add_u32 s60, s60, s61')
    e('s_cmp_eq_u32 s57, 1')
    e(f's_cselect_b32 s61, {REC}, 0'); e('s_cselect_b32 s62, -1, 0x000f000f'); e('s_mov_b32 s63, s62')
    e('s_add_u32 s60, s60, s61')
    for r in list(range(16, 24)) + [8, 9]: e(f'v_min_u32 v{r}, -2, v{r}')
    e('s_mov_b64 exec, s[62:63]')
    e(f'buffer_store_dwordx4 v[16:19], v15, s[{SWS}:{SWS+3}], s60 offen sc1')
    e(f'buffer_store_dwordx4 v[20:23], v15, s[{SWS}:{SWS+3}], s60 offen offset:256 sc1')
    e('s_and_b32 exec_lo, s62, 0x1111'); e('s_mov_b32 exec_hi, 0')
    e(f'buffer_store_dwordx2 v[8:9], v15, s[{SWS}:{SWS+3}], s60 offen offset:512 sc1')
    e('s_mov_b64 exec, -1')
    e('s_cmp_eq_u32 s57, 2'); e('s_cbranch_scc1 L_exit')
    e('s_mov_b32 s57, 2'); e(f's_mov_b32 s56, {NIT_A - itB}')
    e('v_mov_b32 v42, v38')
    e('s_branch L_newphase')
    lab('L_endA1')
    for r in range(3): e(f'v_mov_b32 v{WT+r}, v{10+r}')
    for r in range(8): e(f'v_mov_b32 v{WT+4+r}, v{16+r}')
    e(f's_mov_b32 s60, {SPIN}')
    lab('L_waitqb')
    e('ds_read_b32 v8, v40'); e('s_waitcnt lgkmcnt(0)'); e('v_readfirstlane_b32 s61, v8')
    e('s_sub_u32 s60, s60, 1'); e('s_cbranch_scc1 L_exit')
    if not noserv:
        e('s_cmp_eq_u32 s61, 0'); e('s_cbranch_scc1 L_waitqb')
    e('s_mov_b32 s57, 1'); e(f's_mov_b32 s56, {NIT_B}')
    e('v_mov_b32 v42, v39')
    e('s_branch L_newphase')
    lab('L_switch')
    c('switch load side to the next phase')
    e('s_cmp_eq_u32 s57, 0'); e('s_cbranch_scc1 L_sw_toB')
    e('s_cmp_eq_u32 s57, 1'); e('s_cbranch_scc1 L_sw_toA')
    e(f's_mov_b32 s{SK+2}, 0'); e(f's_mov_b32 s{SV+2}, 0')
    e('s_branch L_body')
    lab('L_sw_toA')
    e('s_lshl_b32 s60, s65, 20')
    srd(SK, 6, 1 << 20, 's60'); srd(SV, 8, 1 << 20, 's60')
    e('s_mov_b32 s54, s58'); e(f's_mov_b32 s55, {(1<<20)-1}')
    e('s_branch L_body')
    lab('L_sw_toB')
    e('s_mov_b32 s58, s54')
    e('s_lshl_b32 s60, s53, 3'); e('s_add_u32 s60, s60, s30'); e('s_lshl_b32 s60, s60, 4')
    e('s_lshr_b32 s61, s31, 3'); e('s_lshl_b32 s61, s61, 2'); e('s_add_u32 s60, s60, s61')
    e('s_and_b32 s61, s31, 3'); e('s_add_u32 s60, s60, s61')
    e(f's_mul_i32 s54, s60, {skewB}'); e('s_lshl_b32 s61, s3, 12'); e('s_add_u32 s54, s54, s61')
    e(f's_mov_b32 s55, {(1<<18)-1}'); e('s_and_b32 s54, s54, s55')
    e('s_lshl_b32 s60, s60, 18')
    srd(SK, 16, 1 << 18, 's60'); srd(SV, 18, 1 << 18, 's60')
    e('s_branch L_body')
    def waitprog(label, target):
        e(f's_mov_b32 s60, {SPIN*4}')
        lab(label)
        e(f's_sleep {slp}')
        e('ds_read_b32 v8, v44 offset:4'); e('s_waitcnt lgkmcnt(0)'); e('v_readfirstlane_b32 s61, v8')
        e('s_sub_u32 s60, s60, 1'); e('s_cbranch_scc1 L_exit')
        e(f's_cmp_lt_u32 s61, {target}'); e(f's_cbranch_scc1 {label}')
    lab('L_service')
    e(f's_cmp_gt_u32 s3, {W2 if not noserv else 0}'); e('s_cbranch_scc1 L_exit')
    if prio: e(f's_setprio {prio}')
    e(f'v_mov_b32 v44, {L_FLAG}')
    e(f's_mul_i32 s68, s2, {STRIDE}')
    e(f's_cmp_lg_u32 s3, {W2}'); e('s_cbranch_scc1 L_mvw')
    c('qB producer: x_B, clear outboxes')
    srd(SX, 14, 2048)
    e('s_and_b32 s60, s31, 7'); e('s_lshl_b32 s60, s60, 7')
    e(f'buffer_load_dwordx4 v[{XP}:{XP+3}], v6, s[{SX}:{SX+3}], s60 offen')
    e(f'buffer_load_dwordx4 v[{XP+4}:{XP+7}], v6, s[{SX}:{SX+3}], s60 offen offset:16')
    e('v_mov_b32 v8, -1'); e('v_mov_b32 v9, -1'); e('v_mov_b32 v10, -1'); e('v_mov_b32 v11, -1')
    e('s_mov_b32 s60, s68')
    nfull = CLR // 1024; rem = CLR % 1024
    if not noclear:
        for n in range(nfull):
            e(f'buffer_store_dwordx4 v[8:11], v14, s[{SWS}:{SWS+3}], s60 offen offset:{(n%4)*1024} sc1')
            if n % 4 == 3: e('s_addk_i32 s60, 0x1000')
        if rem:
            e(f's_mov_b64 exec, {(1 << (rem // 16)) - 1}')
            e(f'buffer_store_dwordx4 v[8:11], v14, s[{SWS}:{SWS+3}], s60 offen offset:{(nfull%4)*1024} sc1')
            e('s_mov_b64 exec, -1')
    lab('L_mvw')
    e('s_waitcnt vmcnt(0)')
    for r in range(64): e(f'v_mov_b32 v{WT+r}, v{W2ND+r}')
    srd(SX, 26, 256)
    e('s_mov_b32 s64, 1')
    e(f's_cmp_eq_u32 s3, {W2}'); e('s_cbranch_scc1 L_projmm')
    e('s_branch L_fin0')
    lab('L_ret_qb')
    e(f's_add_u32 s60, s68, {QBO}')
    e('s_nop 4')
    e(f'buffer_store_dwordx4 v[{DD}:{DD+3}], v14, s[{SWS}:{SWS+3}], s60 offen sc1')
    e('v_mov_b32 v8, 1'); e('v_mov_b32 v9, 0')
    e('s_waitcnt vmcnt(0)')
    e('s_mov_b64 exec, 1')
    e(f'buffer_atomic_add v8, v9, s[{SX}:{SX+3}], 0 offen sc1')
    e('s_branch L_exit')
    lab('L_fin0')
    c('gather lane offsets')
    e('v_bfe_u32 v8, v0, 1, 3')
    e(f's_mov_b32 s60, {8*STRIDE}'); e('v_mul_lo_u32 v8, v8, s60')
    e('v_and_b32 v9, 1, v0'); e(f'v_mul_u32_u24 v9, {WBLK}, v9')
    e('v_add_u32 v13, v8, v9')
    e('s_lshl_b32 s60, s53, 8')
    e('v_lshl_add_u32 v15, v2, 6, v13'); e('v_add_u32 v15, s60, v15')
    e('v_and_b32 v8, 7, v0'); e('v_lshrrev_b32 v9, 3, v0'); e('v_lshl_add_u32 v8, v9, 5, v8')
    e(f's_mov_b32 s60, {STRIDE}'); e('v_mul_lo_u32 v12, v8, s60')
    e(f's_cmp_eq_u32 s3, {W0}'); e('s_cbranch_scc1 L_s0b')
    c('S1: wait for all workgroups ready, gather qB')
    waitprog('L_waitq', WS * max(1, itB - tQ))
    e('v_mov_b32 v9, 0')
    e(f's_mov_b32 s60, {SPIN}')
    e('s_branch L_waitready1')
    lab('L_waitready')
    e('s_sleep 64')
    lab('L_waitready1')
    e(f'buffer_load_dword v8, v9, s[{SX}:{SX+3}], 0 offen sc1')
    e('s_waitcnt vmcnt(0)'); e('v_readfirstlane_b32 s61, v8')
    e('s_sub_u32 s60, s60, 1'); e('s_cbranch_scc1 L_exit')
    e('s_cmp_lt_u32 s61, 256'); e('s_cbranch_scc1 L_waitready')
    stamp(3)
    e('v_lshrrev_b32 v8, 5, v0'); e(f's_mov_b32 s60, {64*STRIDE}'); e('v_mul_lo_u32 v10, v8, s60')
    e('v_bfe_u32 v9, v0, 3, 2'); e('v_lshl_add_u32 v10, v9, 8, v10')
    e('v_and_b32 v11, 7, v0'); e('v_lshl_add_u32 v10, v11, 4, v10')
    e(f's_mul_i32 s60, s30, {STRIDE}'); e('s_lshl_b32 s61, s53, 7'); e('s_add_u32 s60, s60, s61'); e(f's_add_u32 s60, s60, {QBO}')
    for a in range(2):
        for p in range(8):
            n = a * 8 + p
            e(f'buffer_load_dwordx4 v[{64+4*n}:{64+4*n+3}], v10, s[{SWS}:{SWS+3}], s60 offen sc1')
            if p < 7: e(f's_add_u32 s60, s60, {8*STRIDE}')
        if a == 0: e(f's_add_u32 s60, s60, {(128-56)*STRIDE}')
    e('v_lshlrev_b32 v8, 8, v8'); e('v_lshl_add_u32 v8, v9, 6, v8'); e('v_lshl_add_u32 v8, v11, 1, v8')
    e('s_waitcnt vmcnt(0)')
    for a in range(2):
        for p in range(1, 8):
            for r in range(4): e(f'v_add_f32 v{64+32*a+r}, v{64+32*a+r}, v{64+32*a+4*p+r}')
        for r in range(4):
            e(f'v_cvt_pk_bf16_f32 v{64+32*a+r}, v{64+32*a+r}, v{64+32*a+r}')
        for r in range(4):
            e(f'ds_write_b16 v8, v{64+32*a+r} offset:{L_QB + 512*a + 16*r}')
    e('v_mov_b32 v8, 1')
    e('s_waitcnt lgkmcnt(0)')
    e('ds_write_b32 v44, v8')
    stamp(4)
    if nofinB: e('s_branch L_exit')
    c('FIN params for B')
    e(f's_mul_i32 s74, s30, {STRIDE}'); e('s_lshr_b32 s60, s31, 3'); e(f's_mul_i32 s60, s60, {REC}')
    e('s_add_u32 s74, s74, s60'); e(f's_add_u32 s74, s74, {REC}')
    e(f's_mov_b32 s75, {4*(WS//2)}'); e(f's_mov_b32 s76, {YB}'); e('s_mov_b32 s77, 1024')
    e(f's_mov_b32 s78, {WS*(itB+NIT_B+tB1)}'); e(f's_mov_b32 s81, {WS*(itB+NIT_B+tB2)}')
    e('s_branch L_fin')
    lab('L_s0b')
    e('s_and_b32 s60, s2, 0xc7'); e(f's_mul_i32 s74, s60, {STRIDE}')
    e(f's_mov_b32 s75, {WS//2}'); e(f's_mov_b32 s76, {YA}'); e('s_mov_b32 s77, 0')
    e(f's_mov_b32 s78, {WS*(NIT_A+NIT_B)}'); e('s_mov_b32 s81, 0')
    lab('L_fin')
    srd(SX, 24, 4096)
    waitprog('L_waitown', 's78')
    stamp(5)
    ACC = 64; ML = 80; TM = 84; TML = 100
    def gather(label, A, M, soff):
        e(f's_mov_b32 s60, {SPIN}')
        lab(label)
        for k in range(4): e(f'buffer_load_dwordx4 v[{A+4*k}:{A+4*k+3}], v15, s[{SWS}:{SWS+3}], {soff} offen offset:{16*k} sc1')
        e(f'buffer_load_dwordx2 v[{M}:{M+1}], v13, s[{SWS}:{SWS+3}], {soff} offen offset:512 sc1')
        e('s_sub_u32 s60, s60, 1'); e('s_cbranch_scc1 L_exit')
        e('s_waitcnt vmcnt(0)')
        e(f'v_max3_u32 v8, v{M}, v{M+1}, v{A}')
        e(f'v_max3_u32 v9, v{A+1}, v{A+2}, v{A+3}')
        for k in range(4, 16, 4):
            e(f'v_max3_u32 v8, v8, v{A+k}, v{A+k+1}'); e(f'v_max3_u32 v9, v9, v{A+k+2}, v{A+k+3}')
        e('v_max_u32 v8, v8, v9')
        e('v_cmp_eq_u32 vcc, -1, v8')
        e('s_and_b64 exec, exec, vcc'); e(f's_cbranch_scc1 {label}'); e('s_mov_b64 exec, -1')
    gather('L_g0', ACC, ML, 's74')
    e('s_mov_b32 s79, 1')
    e('s_cmp_eq_u32 s75, 1'); e('s_cbranch_scc1 L_gdone')
    lab('L_gmore')
    h = WS // 2
    e(f's_and_b32 s61, s79, {h-1}'); e(f's_mul_i32 s61, s61, {2*WBLK}')
    e(f's_lshr_b32 s62, s79, {h.bit_length()-1}'); e(f's_mul_i32 s62, s62, {64*STRIDE}')
    e('s_add_u32 s80, s74, s61'); e('s_add_u32 s80, s80, s62')
    gather('L_g1', TM, TML, 's80')
    e(f'v_max_f32 v8, v{ML}, v{TML}')
    e(f'v_sub_f32 v9, v{ML}, v8'); e(f'v_sub_f32 v10, v{TML}, v8'); e('v_exp_f32 v9, v9'); e('v_exp_f32 v10, v10')
    e(f'v_mov_b32 v{ML}, v8')
    e(f'v_mul_f32 v{ML+1}, v{ML+1}, v9'); e(f'v_fmac_f32 v{ML+1}, v{TML+1}, v10')
    for t in range(16):
        e(f'v_mul_f32 v{ACC+t}, v{ACC+t}, v9'); e(f'v_fmac_f32 v{ACC+t}, v{TM+t}, v10')
    e('s_add_u32 s79, s79, 1'); e('s_cmp_lt_u32 s79, s75'); e('s_cbranch_scc1 L_gmore')
    lab('L_gdone')
    stamp(6)
    DP = ['quad_perm:[1,0,3,2]', 'quad_perm:[2,3,0,1]', 'row_half_mirror']
    e(f'v_mov_b32 v8, v{ML}')
    for d in DP:
        e('s_nop 1'); e(f'v_max_f32_dpp v8, v8, v8 {d} row_mask:0xf bank_mask:0xf')
    e(f'v_sub_f32 v9, v{ML}, v8'); e('v_exp_f32 v9, v9'); e('s_nop 0')
    e(f'v_mul_f32 v10, v{ML+1}, v9')
    for d in DP:
        e('s_nop 1'); e(f'v_add_f32_dpp v10, v10, v10 {d} row_mask:0xf bank_mask:0xf')
    e('v_rcp_f32 v10, v10'); e('s_nop 0'); e('v_mul_f32 v9, v9, v10')
    for t in range(16): e(f'v_mul_f32 v{ACC+t}, v{ACC+t}, v9')
    for d in DP:
        for t in range(16): e(f'v_add_f32_dpp v{ACC+t}, v{ACC+t}, v{ACC+t} {d} row_mask:0xf bank_mask:0xf')
    for k in range(8): e(f'v_cvt_pk_bf16_f32 v{XP+k}, v{ACC+2*k}, v{ACC+2*k+1}')
    e('s_mov_b32 s64, 2')
    e('s_branch L_projmm')
    lab('L_ret_fin')
    e('s_add_u32 s60, s68, s76')
    e('s_and_b32 s61, s2, 3'); e(f's_mul_i32 s62, s61, {8*STRIDE}'); e('s_add_u32 s62, s62, s76')
    e('s_lshr_b32 s63, s2, 2'); e('s_lshl_b32 s79, s63, 4'); e('s_add_u32 s62, s62, s79')
    for r in range(4): e(f'v_min_u32 v{DD+r}, -2, v{DD+r}')
    e(f'buffer_store_dwordx4 v[{DD}:{DD+3}], v14, s[{SWS}:{SWS+3}], s60 offen sc1')
    stamp(7)
    c('output offset')
    e('s_lshl_b32 s61, s61, 8'); e('s_add_u32 s77, s77, s61')
    e('s_lshr_b32 s61, s63, 4'); e('s_lshl_b32 s61, s61, 6'); e('s_add_u32 s77, s77, s61')
    e('s_bfe_u32 s61, s63, 0x10003'); e('s_lshl_b32 s61, s61, 11'); e('s_add_u32 s77, s77, s61')
    e('s_and_b32 s61, s63, 7'); e('s_lshl_b32 s61, s61, 1'); e('s_add_u32 s77, s77, s61')
    e('v_and_b32 v8, 1, v2'); e('v_lshrrev_b32 v9, 1, v2'); e('v_lshl_add_u32 v8, v8, 1, v9'); e('v_lshlrev_b32 v11, 4, v8')
    e('s_cmp_eq_u32 s81, 0'); e('s_cbranch_scc1 L_y0')
    waitprog('L_waity', 's81')
    lab('L_y0')
    e(f's_mov_b32 s60, {SPIN}')
    lab('L_y')
    e(f'buffer_load_dwordx4 v[4:7], v12, s[{SWS}:{SWS+3}], s62 offen sc1')
    e('s_sub_u32 s60, s60, 1'); e('s_cbranch_scc1 L_exit')
    e('s_waitcnt vmcnt(0)')
    e('v_max3_u32 v8, v4, v5, v6'); e('v_max_u32 v8, v8, v7')
    e('v_cmp_eq_u32 vcc, -1, v8')
    e('s_and_b64 exec, exec, vcc'); e('s_cbranch_scc1 L_y'); e('s_mov_b64 exec, -1')
    stamp(8)
    e('v_permlane32_swap_b32 v4, v5'); e('v_permlane32_swap_b32 v6, v7')
    e('v_add_f32 v4, v4, v5'); e('v_add_f32 v6, v6, v7'); e('s_nop 1')
    e('v_permlane16_swap_b32 v4, v6'); e('v_add_f32 v4, v4, v6')
    for d in (8, 4, 2, 1):
        e('s_nop 1'); e(f'v_add_f32_dpp v4, v4, v4 row_ror:{d} row_mask:0xf bank_mask:0xf')
    e('v_cvt_pk_bf16_f32 v4, v4, v4')
    e('s_mov_b32 exec_lo, 0x00010001'); e('s_mov_b32 exec_hi, 0x00010001')
    e(f'buffer_store_short v4, v11, s[{SX}:{SX+3}], s77 offen')
    lab('L_exit')
    if DIAG:
        e('s_mov_b64 exec, -1')
        e('s_waitcnt vmcnt(0)')
        stamp(9)
        e('s_add_u32 s48, s28, 0x4000000'); e('s_addc_u32 s49, s29, 0'); e('s_mov_b32 s50, 0x100000')
        e('s_lshl_b32 s60, s2, 3'); e('s_add_u32 s60, s60, s3'); e('s_lshl_b32 s60, s60, 8')
        e('v_lshlrev_b32 v1, 2, v0')
        e('s_mov_b64 exec, 0xffff')
        e(f'buffer_store_dword v63, v1, s[{SWS}:{SWS+3}], s60 offen')
    lab('L_end')
    e('s_endpgm')
    L.append('.section .rodata,"a"'); L.append('.p2align 6'); L.append(f'.amdhsa_kernel {NAME}')
    L.append('  .amdhsa_next_free_vgpr 256'); L.append('  .amdhsa_next_free_sgpr 96'); L.append('  .amdhsa_accum_offset 256')
    L.append('  .amdhsa_group_segment_fixed_size 0'); L.append('  .amdhsa_kernarg_size 104'); L.append('  .amdhsa_user_sgpr_count 2')
    L.append('  .amdhsa_user_sgpr_kernarg_segment_ptr 1'); L.append('  .amdhsa_system_sgpr_workgroup_id_x 1'); L.append('.end_amdhsa_kernel')
    return '\n'.join(L) + '\n'

if __name__ == '__main__':
    kw = {}
    for a in sys.argv[2:]:
        k, v = a.split('=')
        kw[k] = v if k.endswith('pol') else int(v)
    open(sys.argv[1], 'w').write(gen(**kw))
```

```python
import sys, struct, os
NAME = 'concat_heads__mha_block_cached__gqa_block_cached__decode_kernel'
def f32(x): return struct.unpack('<I', struct.pack('<f', x))[0]
_ref = 'concat_heads__mha_block_cached__gqa_block_cached__decode.s.ref'
HEADER = open(_ref).read().split('; Override launch')[0] if os.path.exists(_ref) else ''

def gen(D=10, skew=16384, T=8192, DIAG=0, pol='nt', wqpol='nt', wpol='nt', tPub=0, prio=3, rot=1, noserv=0, slp=4,
        dry=1, WS=2, deep=0, deepT=0, D2=15, tQ=8, tWo=1, tW4=4, NY=4, gslp=0, yslp=0, nofin=0, NB=2, Dr=4, Dp=3, qslp=0, qmap=1, qfirst=1, qmapA=0, qapol='', qgpol='sc1', pgpol='sc1', local=1, tRe=2, KF=6, forceslow=0):
    assert WS == 2
    NW = 6
    BASE = 128
    RA = 640; OB = 2 * RA; YA = OB + 128 + 2048; YB = YA + 1024; QBO = YB + 1024; QAO = QBO + 1024; IDO = QAO + 1024; STRIDE = IDO + 128
    WSBYTES = BASE + 256 * STRIDE
    L_QA = 8192; L_QB = L_QA + 256; L_FLAG = L_QB + 1024; L_X = L_FLAG + 64
    L_SA = 10240; L_SB = L_SA + 16384; LDS = L_SB + 16384 + 1024
    NP_A = 32; NP_B = 8; NIT = 80
    VM = min(15, D)
    SPIN = 1 << 18
    W3, W0, W1, W2 = 2, 3, 4, 5
    L = []
    def e(s): L.append('    ' + s)
    def lab(s): L.append(s + ':')
    def c(s): L.append('    ; ' + s)
    L.append(HEADER.rstrip('\n'))
    L.append(f'; @launch grid=(256,1,1) block=({NW*64},1,1) lds={LDS}')
    L.append('.amdgcn_target "amdgcn-amd-amdhsa--gfx950"')
    L.append('.text'); L.append(f'.globl {NAME}'); L.append('.p2align 8'); L.append(f'.type {NAME},@function')
    lab(NAME)
    def stamp(idx):
        if not DIAG: return
        e('s_memrealtime s[70:71]'); e('s_waitcnt lgkmcnt(0)'); e(f'v_writelane_b32 v1, s70, {idx}')
    def srd(d, lo, size, off=None):
        if off is None:
            e(f's_mov_b32 s{d}, s{lo}'); e(f's_mov_b32 s{d+1}, s{lo+1}')
        else:
            e(f's_add_u32 s{d}, s{lo}, {off}'); e(f's_addc_u32 s{d+1}, s{lo+1}, 0')
        e(f's_mov_b32 s{d+2}, {size}'); e(f's_mov_b32 s{d+3}, 0x20000')
    def basesel():
        e('s_mov_b32 s62, 0xaaaaaaaa'); e('s_mov_b32 s63, 0xaaaaaaaa')
        e('v_mov_b32 v8, 0x0c0c0100'); e('v_mov_b32 v9, 0x01000c0c')
        e('v_cndmask_b32 v60, v8, v9, s[62:63]')
        e('v_mov_b32 v8, 0x0c0c0302'); e('v_mov_b32 v9, 0x03020c0c')
        e('v_cndmask_b32 v61, v8, v9, s[62:63]')
        e('v_mov_b32 v62, 0x0c0c0c0c')
    TG = 36
    def tags():
        e('s_add_u32 s94, s93, 0x01010101'); e('s_not_b32 s95, s94')
        e(f's_and_b32 s{TG}, s94, 0xff'); e(f's_bfe_u32 s{TG+1}, s94, 0x80008'); e(f's_bfe_u32 s{TG+2}, s94, 0x80010'); e(f's_lshr_b32 s{TG+3}, s94, 24')
    def puttag(r, n, vm):
        for k in range(n): e(f'v_bfi_b32 v{r+k}, v{vm}, s{TG+(k&3)}, v{r+k}')
    def untag(r, n, acc, first=True):
        for k in range(n): e(f'v_xor_b32 v{r+k}, s{TG+(k&3)}, v{r+k}')
        k = 0
        if first:
            e(f'v_or3_b32 v{acc}, v{r}, v{r+1}, v{r+2}'); k = 3
        while k + 1 < n:
            e(f'v_or3_b32 v{acc}, v{acc}, v{r+k}, v{r+k+1}'); k += 2
        if k < n: e(f'v_or_b32 v{acc}, v{acc}, v{r+k}')
    SL, SW, SX, SWS = 32, 40, 44, 48
    RING = 64; WT = 64; XP = 16; SEL = 24; RR = 32; DD = 40; QQ = 44; QD = 48; SAVE = 128
    def waitlds(label, off, target):
        e(f's_mov_b32 s60, {SPIN*4}')
        lab(label)
        e(f's_sleep {slp}')
        e(f'ds_read_b32 v8, v59 offset:{off}'); e('s_waitcnt lgkmcnt(0)'); e('v_readfirstlane_b32 s61, v8')
        e('s_sub_u32 s60, s60, 1'); e('s_cbranch_scc1 L_exit')
        e(f's_cmp_lt_u32 s61, {target}'); e(f's_cbranch_scc1 {label}')
    e('s_cmp_ge_u32 s2, 256'); e('s_cbranch_scc1 L_end')
    e('s_load_dwordx16 s[4:19], s[0:1], 0')
    e('s_load_dwordx8 s[20:27], s[0:1], 64')
    e('s_load_dwordx2 s[28:29], s[0:1], 96')
    if DIAG: e('s_memrealtime s[72:73]')
    e('v_lshrrev_b32 v1, 6, v0')
    e('v_and_b32 v0, 63, v0')
    e('v_readfirstlane_b32 s3, v1')
    e('s_and_b32 s30, s2, 7')
    e('s_lshr_b32 s31, s2, 3')
    e('s_lshr_b32 s60, s31, 3')
    e('s_lshl_b32 s52, s30, 2')
    e('s_add_u32 s52, s52, s60')
    e('s_bfe_u32 s53, s31, 0x10002')
    e('v_lshrrev_b32 v2, 4, v0')
    e('v_lshlrev_b32 v14, 4, v0')
    if DIAG: e('v_mov_b32 v1, 0')
    e(f's_cmp_ge_u32 s3, {WS}')
    e('s_cbranch_scc1 L_svc_pro')
    c('streaming waves: first loads')
    e('s_lshl_b32 s60, s53, 5'); e('s_add_u32 s60, s60, s52'); e('s_lshl_b32 s60, s60, 2')
    e('s_and_b32 s62, s31, 3'); e('s_add_u32 s65, s60, s62')
    e('v_and_b32 v10, 3, v0'); e('v_bfe_u32 v9, v0, 2, 2')
    e('v_lshl_add_u32 v10, v2, 2, v10')
    e('v_lshlrev_b32 v10, 4, v10')
    e('v_lshl_add_u32 v42, v9, 8, v10')
    e(f's_mul_i32 s58, s65, {skew}')
    e(f's_mul_i32 s60, s3, {T}')
    e('s_add_u32 s58, s58, s60')
    e(f's_mov_b32 s55, {(1<<20)-1}')
    e('s_and_b32 s54, s58, s55')
    e('s_lshl_b32 s60, s65, 20')
    e(f'v_mov_b32 v40, {L_FLAG}'); e('v_mov_b32 v4, 0'); e('v_mov_b32 v5, 0')
    e('ds_write_b64 v40, v[4:5]'); e('ds_write_b64 v40, v[4:5] offset:8')
    e('s_waitcnt lgkmcnt(0)')
    srd(SL, 6, 1 << 20, 's60')
    e('s_barrier')
    def load(t, j): e(f'buffer_load_dwordx4 v[{RING+16*t+4*j}:{RING+16*t+4*j+3}], v42, s[{SL}:{SL+3}], s54 offen offset:{1024*j} {pol}')
    def adv(t):
        last = ((t + 1) * 4096) % T == 0
        e(f's_add_u32 s54, s54, {4096 + ((WS-1)*T if last else 0)}'); e('s_and_b32 s54, s54, s55')
    def ringload(n0, n1):
        for n in range(n0, n1):
            if n > Dr: e(f's_waitcnt vmcnt({Dr})')
            load(n >> 2, n & 3)
            if n & 3 == 3: adv(n >> 2)
    ringload(0, min(16, Dr + 1))
    e('s_branch L_stream')
    lab('L_svc_pro')
    if DIAG: e('s_memrealtime s[96:97]')
    e('v_and_b32 v4, 0xf0, v14')
    e('v_bfe_u32 v7, v0, 3, 1')
    e('v_lshlrev_b32 v6, 5, v2')
    e('v_lshl_add_u32 v6, v7, 10, v6')
    e('s_and_b32 s61, s31, 7')
    e(f's_cmp_eq_u32 s3, {W3}')
    e(f's_cselect_b32 s66, {"s30" if qmapA else "s61"}, {"s30" if qmap else "s61"}')
    e(f's_cselect_b32 s62, {"s31" if qmapA else "s52"}, {"s31" if qmap else "s52"}')
    e('s_lshl_b32 s60, s66, 19'); e('s_lshl_b32 s62, s62, 8'); e('s_add_u32 s60, s60, s62')
    e('s_lshl_b32 s61, s52, 17'); e('s_lshl_b32 s62, s53, 12'); e('s_add_u32 s61, s61, s62')
    e('s_and_b32 s62, s31, 3'); e('s_lshl_b32 s62, s62, 8'); e('s_add_u32 s61, s61, s62')
    e('s_movk_i32 s63, 0x2000')
    e(f's_sub_u32 s79, s3, {W0}'); e('s_cmp_lt_u32 s79, 2')
    e('s_cselect_b32 s60, s61, s60'); e('s_cselect_b32 s62, 15, 17'); e(f's_cselect_b32 s63, {1024-3*8192}, s63')
    e(f's_cselect_b32 s{SX+2}, 0, 2048')
    e('v_lshlrev_b32 v5, s62, v2'); e('v_add_u32 v5, v5, v4')
    e(f's_cmp_eq_u32 s3, {W3}'); e('s_cselect_b64 vcc, -1, 0')
    if not qfirst: e('s_barrier')
    e('s_waitcnt lgkmcnt(0)')
    if DIAG: e('s_memrealtime s[98:99]')
    e('s_load_dword s93, s[28:29], 0')
    e(f's_cselect_b32 s{SW}, s10, s20'); e(f's_cselect_b32 s{SW+1}, s11, s21')
    e(f's_cselect_b32 s{SX}, s4, s14'); e(f's_cselect_b32 s{SX+1}, s5, s15')
    if prio:
        e('s_cbranch_scc0 L_noprio'); e(f's_setprio {prio}'); lab('L_noprio')
    e(f's_cmp_eq_u32 s3, {W0}'); e(f's_cselect_b32 s{SW}, s12, s{SW}'); e(f's_cselect_b32 s{SW+1}, s13, s{SW+1}')
    e(f's_cmp_eq_u32 s3, {W1}'); e(f's_cselect_b32 s{SW}, s22, s{SW}'); e(f's_cselect_b32 s{SW+1}, s23, s{SW+1}')
    e(f's_mov_b32 s{SW+2}, {1<<22}'); e(f's_mov_b32 s{SW+3}, 0x20000'); e(f's_mov_b32 s{SX+3}, 0x20000')
    e('s_lshl_b32 s61, s66, 7')
    if qfirst:
        e('s_cbranch_vccnz L_nb0'); e('s_barrier'); lab('L_nb0')
    if DIAG: e('s_memrealtime s[100:101]')
    e(f'buffer_load_dwordx4 v[{XP}:{XP+3}], v6, s[{SX}:{SX+3}], s61 offen')
    e(f'buffer_load_dwordx4 v[{XP+4}:{XP+7}], v6, s[{SX}:{SX+3}], s61 offen offset:16')
    for t in range(16):
        if t > Dp:
            e(f's_cbranch_vccnz L_nt{t}'); e(f's_waitcnt vmcnt({Dp})'); lab(f'L_nt{t}')
        e(f'buffer_load_dwordx4 v[{WT+4*t}:{WT+4*t+3}], v5, s[{SW}:{SW+3}], s60 offen {wpol}')
        if t < 15:
            if t & 3 == 3: e('s_add_u32 s60, s60, s63')
            else: e('s_addk_i32 s60, 0x2000')
    if qfirst:
        e('s_cbranch_vccz L_nb1'); e('s_barrier'); lab('L_nb1')
    if DIAG: e('v_writelane_b32 v1, s72, 0')
    stamp(10)
    if DIAG:
        e('v_writelane_b32 v1, s96, 12'); e('v_writelane_b32 v1, s98, 13'); e('v_writelane_b32 v1, s100, 14')
    basesel()
    e('s_mov_b32 s62, 0x03030303'); e('s_mov_b32 s63, 0x03030303')
    for k in range(4):
        e(f'v_cndmask_b32 v{SEL+2*k}, v62, v60, s[62:63]')
        e(f'v_cndmask_b32 v{SEL+2*k+1}, v62, v61, s[62:63]')
        if k < 3: e('s_lshl_b64 s[62:63], s[62:63], 2')
    e('v_and_b32 v3, 7, v0')
    e(f'v_mov_b32 v59, {L_FLAG}'); e('v_mov_b32 v60, 0xff')
    srd(SWS, 28, WSBYTES)
    e(f's_mul_i32 s68, s2, {STRIDE}'); e(f's_add_u32 s68, s68, {BASE}')
    e('s_cmp_lt_u32 s79, 2'); e('s_cbranch_scc1 L_finisher')
    for r in range(4): e(f'v_mov_b32 v{DD+r}, 0')
    e('s_mov_b32 s64, 0')
    e(f's_cmp_eq_u32 s3, {W3}'); e(f's_cselect_b32 s76, 1024, 0'); e('s_add_u32 s76, s76, s68'); e(f's_add_u32 s76, s76, {QBO}')
    c('q gather lane offset: two producers per load')
    e('v_lshrrev_b32 v8, 5, v0'); e('v_bfe_u32 v9, v0, 3, 2')
    e('v_lshlrev_b32 v12, 8, v9'); e('v_lshl_add_u32 v12, v3, 4, v12')
    e('v_lshlrev_b32 v11, 6, v9'); e('v_lshl_add_u32 v11, v3, 1, v11')
    PS = 1 if qmap else 8
    HS = 8 if qmap else 64
    PSA = 1 if qmapA else 8
    e(f's_mov_b32 s60, {PSA*STRIDE}'); e('v_mul_lo_u32 v10, v8, s60'); e('v_add_u32 v10, v10, v12')
    if qmapA: e('s_lshl_b32 s60, s52, 3')
    else: e('s_and_b32 s60, s2, 0xc7')
    e(f's_mul_i32 s74, s60, {STRIDE}'); e('s_lshl_b32 s61, s53, 7'); e('s_add_u32 s74, s74, s61'); e(f's_add_u32 s74, s74, {QAO+BASE}')
    for k in range(1, 4): e(f's_add_u32 s{84+k}, s74, {2*PSA*k*STRIDE}')
    e('s_waitcnt lgkmcnt(0)')
    tags()
    e('s_waitcnt vmcnt(0)')
    stamp(11)
    lab('L_projmm')
    c('D[chunk][(b,i)] += sum_t W_t x delta(XP_t)')
    for t in range(16):
        r = RR + 4 * (t & 1)
        for k in range(4):
            e(f'v_perm_b32 v{r+k}, v{XP+(t>>1)}, v{XP+(t>>1)}, v{SEL+2*k+(t&1)}')
        if t > 0:
            tp = t - 1; rp = RR + 4 * (tp & 1)
            e(f'v_mfma_f32_16x16x32_bf16 v[{DD}:{DD+3}], v[{WT+4*tp}:{WT+4*tp+3}], v[{rp}:{rp+3}], v[{DD}:{DD+3}]')
    e('s_nop 0')
    e(f'v_mfma_f32_16x16x32_bf16 v[{DD}:{DD+3}], v[{WT+60}:{WT+63}], v[{RR+4}:{RR+7}], v[{DD}:{DD+3}]')
    e(f's_mov_b32 s60, {SPIN}')
    e(f's_cmp_eq_u32 s3, {W3}')
    e('s_nop 5')
    puttag(DD, 4, 60)
    e('s_cbranch_scc1 L_qa0')
    e(f'buffer_store_dwordx4 v[{DD}:{DD+3}], v14, s[{SWS}:{SWS+3}], s76 offen sc1')
    e('s_cmp_eq_u32 s64, 2'); e('s_cbranch_scc1 L_ret_fin')
    stamp(1)
    e('s_branch L_ret_qb')
    lab('L_qa0')
    e(f'buffer_store_dwordx4 v[{DD}:{DD+3}], v14, s[{SWS}:{SWS+3}], s76 offen {qapol}')
    stamp(1)
    c('q of branch A: gather the eight k-slices')
    lab('L_qa')
    if qslp: e(f's_sleep {qslp}')
    for k in range(4):
        e(f'buffer_load_dwordx4 v[{64+4*k}:{64+4*k+3}], v10, s[{SWS}:{SWS+3}], s{74 if k == 0 else 84+k} offen {qgpol}')
    e('s_sub_u32 s60, s60, 1'); e('s_cbranch_scc1 L_exit')
    for k in range(4):
        e(f's_waitcnt vmcnt({3-k})')
        untag(64 + 4 * k, 4, 8, first=(k == 0))
        if k > 0:
            for r in range(4): e(f'v_add_f32 v{64+r}, v{64+r}, v{64+4*k+r}')
    e('v_and_b32 v8, 0xff, v8'); e('v_cmp_ne_u32 vcc, 0, v8'); e('s_cbranch_vccnz L_qafail')
    e('v_permlane32_swap_b32 v64, v66'); e('v_permlane32_swap_b32 v65, v67')
    e('v_add_f32 v64, v64, v66'); e('v_add_f32 v65, v65, v67')
    e('v_and_b32 v8, 32, v0'); e('v_add_u32 v11, v11, v8')
    e('v_cvt_pk_bf16_f32 v64, v64, v65')
    e('v_mov_b32 v8, 1'); e('v_mov_b32 v9, s93')
    e(f'ds_write_b16 v11, v64 offset:{L_QA}'); e(f'ds_write_b16_d16_hi v11, v64 offset:{L_QA+16}')
    e('ds_write_b32 v59, v9 offset:16'); e('ds_write_b32 v59, v8 offset:12')
    stamp(2)
    c('write the slice through to memory for readers on other dies')
    waitlds('L_waitre', 4, WS * tRe)
    e(f'buffer_store_dwordx4 v[{DD}:{DD+3}], v14, s[{SWS}:{SWS+3}], s76 offen sc1')
    e('s_branch L_exit')
    lab('L_qafail')
    e(f's_cmp_eq_u32 s60, {SPIN-KF}'); e('s_cbranch_scc0 L_qa')
    e(f'buffer_store_dwordx4 v[{DD}:{DD+3}], v14, s[{SWS}:{SWS+3}], s76 offen sc1')
    e('s_branch L_qa')
    lab('L_stream')
    if DIAG: e('v_writelane_b32 v1, s72, 0')
    e('v_mov_b32 v13, v42')
    e('v_lshl_add_u32 v15, v9, 9, v10')
    e(f'v_add_u32 v38, {L_QA}, v10')
    e(f'v_lshl_add_u32 v39, v9, 8, v38'); e(f'v_add_u32 v39, {L_QB-L_QA}, v39')
    e('s_lshl_b32 s60, s3, 13'); e(f's_add_u32 s60, s60, {L_SA}')
    e(f'v_lshl_add_u32 v{SAVE}, v2, 4, s60')
    e(f'v_lshl_add_u32 v8, v2, 2, v9'); e(f's_add_u32 s60, s60, {L_SB-L_SA}')
    e(f'v_lshl_add_u32 v{SAVE+1}, v8, 4, s60')
    e(f'v_mov_b32 v{SAVE+3}, 0xff'); e(f'v_lshlrev_b32 v{SAVE+4}, 3, v0')
    basesel()
    e('s_mov_b32 s62, 0x33333333'); e('s_mov_b32 s63, 0x33333333')
    e('v_cndmask_b32 v34, v62, v60, s[62:63]'); e('v_cndmask_b32 v35, v62, v61, s[62:63]')
    e('v_cndmask_b32 v36, v60, v62, s[62:63]'); e('v_cndmask_b32 v37, v61, v62, s[62:63]')
    e('v_mov_b32 v41, 1')
    e(f's_mov_b32 s59, 0x{f32(128**-0.5*1.4426950408889634):08x}')
    srd(SWS, 28, 0)
    e(f's_mul_i32 s68, s2, {STRIDE}'); e(f's_mul_i32 s60, s3, {RA}'); e('s_add_u32 s68, s68, s60')
    e('s_mov_b32 s82, 0')
    c('pass 0: K of A')
    e(f's_mov_b32 s56, {NP_A}'); e('s_mov_b32 s57, 0'); e(f's_mov_b32 s69, {deepT}')
    e(f'v_mov_b32 v11, v{SAVE}'); e('s_mov_b32 s66, 64'); e('s_mov_b32 s62, 0x00010001'); e('s_mov_b32 s63, 0x00010001')
    e(f'v_mov_b32 v10, 0x{f32(-3.0e38):08x}')
    ringload(min(16, Dr + 1), 16)
    stamp(10)
    e(f's_mov_b32 s60, {SPIN*4}')
    lab('L_waitqa')
    e('ds_read_b32 v4, v40 offset:12'); e('ds_read_b32 v5, v40 offset:16'); e(f'ds_read_b128 v[{QQ}:{QQ+3}], v38')
    e('s_waitcnt lgkmcnt(0)'); e('v_readfirstlane_b32 s61, v4'); e('v_readfirstlane_b32 s93, v5')
    e('s_sub_u32 s60, s60, 1'); e('s_cbranch_scc1 L_exit')
    e('s_cmp_eq_u32 s61, 0'); e('s_cbranch_scc1 L_waitqa')
    tags()
    stamp(2)
    nthr = [0]
    anydeep = deep or deepT
    def thr():
        if anydeep:
            nthr[0] += 1
            e(f's_cbranch_scc1 L_thr{nthr[0]}'); e(f's_waitcnt vmcnt({VM})'); lab(f'L_thr{nthr[0]}'); e(f's_waitcnt vmcnt({D2})')
        else:
            e(f's_waitcnt vmcnt({VM})')
    def looptop(x):
        lab(f'L_loop{x}')
        if DIAG >= 2:
            e('s_memrealtime s[70:71]'); e('s_and_b32 m0, s82, 63'); e('s_cmp_lt_u32 s82, 64'); e('s_waitcnt lgkmcnt(0)')
            e(f's_cbranch_scc0 L_st2{x}'); e('v_writelane_b32 v3, s70, m0'); e(f's_branch L_st3{x}')
            lab(f'L_st2{x}'); e('v_writelane_b32 v43, s70, m0'); lab(f'L_st3{x}'); e('s_add_u32 s82, s82, 1')
        e('s_mov_b64 exec, 1'); e('ds_add_u32 v40, v41 offset:4'); e('s_mov_b64 exec, -1')
        e('s_cmp_eq_u32 s56, 1'); e(f's_cbranch_scc1 L_switch{x}')
        lab(f'L_body{x}')
    looptop('K')
    for t in range(4):
        K = RING + 16 * t
        if anydeep: e('s_cmp_le_u32 s56, s69')
        for j in range(4):
            thr()
            e(f'v_mfma_f32_16x16x32_bf16 v[{QD+4*j}:{QD+4*j+3}], v[{K+4*j}:{K+4*j+3}], v[{QQ}:{QQ+3}], 0')
            load(t, j)
        adv(t)
        e('s_nop 1')
        S = 4 if t % 2 == 0 else 16
        for k in range(4):
            for j in range(4):
                if k == 0: e(f'v_mov_b32_dpp v{S+j}, v{QD+4*j} quad_perm:[0,0,0,0] row_mask:0xf bank_mask:0xf')
                else: e(f'v_add_f32_dpp v{S+j}, v{QD+4*j+k}, v{S+j} quad_perm:[{k},{k},{k},{k}] row_mask:0xf bank_mask:0xf')
        e(f'v_max3_f32 v10, v10, v{S}, v{S+1}'); e(f'v_max3_f32 v10, v10, v{S+2}, v{S+3}')
        e('s_mov_b64 exec, s[62:63]'); e(f'ds_write_b128 v11, v[{S}:{S+3}]'); e('s_mov_b64 exec, -1')
        e('v_add_u32 v11, s66, v11')
    e('s_sub_u32 s56, s56, 1'); e('s_cmp_lg_u32 s56, 0'); e('s_cbranch_scc1 L_loopK')
    c('end of a K pass: exact maximum of the scores of this wave')
    e('v_mov_b32 v9, v10'); e('s_nop 1'); e('v_permlane32_swap_b32 v10, v9'); e('v_max_f32 v10, v10, v9')
    e('v_mov_b32 v9, v10'); e('s_nop 1'); e('v_permlane16_swap_b32 v10, v9'); e('v_max_f32 v10, v10, v9')
    e('s_cmp_eq_u32 s57, 0'); e('s_cbranch_scc0 L_startVB')
    e(f'v_mov_b32 v{SAVE+2}, v10')
    e(f's_mov_b32 s60, {SPIN*4}')
    lab('L_waitqb')
    e('ds_read_b32 v8, v40'); e('s_waitcnt lgkmcnt(0)'); e('v_readfirstlane_b32 s67, v8')
    e('s_sub_u32 s60, s60, 1'); e('s_cbranch_scc1 L_exit')
    if not noserv:
        e('s_cmp_eq_u32 s67, 0'); e('s_cbranch_scc1 L_waitqb')
    e(f'ds_read_b128 v[{QQ}:{QQ+3}], v39')
    e(f's_mov_b32 s56, {NP_B}'); e('s_mov_b32 s57, 1')
    e(f'v_mov_b32 v11, v{SAVE+1}'); e('s_movk_i32 s66, 0x100'); e('s_mov_b32 s62, 0x11111111'); e('s_mov_b32 s63, 0x11111111')
    e(f'v_mov_b32 v10, 0x{f32(-3.0e38):08x}')
    e('s_waitcnt lgkmcnt(0)')
    stamp(3)
    e('s_branch L_loopK')
    def switch(ptr, lg, vreg, body):
        e(f's_lshl_b32 s60, s65, {lg}')
        srd(SL, ptr, 1 << lg, 's60')
        e(f's_mov_b32 s55, {(1<<lg)-1}'); e('s_and_b32 s54, s58, s55')
        e(f'v_mov_b32 v42, v{vreg}')
        e(f's_branch {body}')
    lab('L_switchK')
    e('s_cmp_eq_u32 s57, 0'); e('s_cbranch_scc0 L_sw1')
    switch(16, 18, 13, 'L_bodyK')
    lab('L_sw1')
    switch(18, 18, 14, 'L_bodyK')
    lab('L_switchV')
    e('s_cmp_eq_u32 s57, 2'); e('s_cbranch_scc0 L_sw3')
    switch(8, 20, 14, 'L_bodyV')
    lab('L_sw3')
    e(f's_mov_b32 s{SL+2}, 0'); e(f's_mov_b32 s{SWS+2}, {WSBYTES}')
    e('s_branch L_bodyV')
    lab('L_startVB')
    e(f's_mov_b32 s56, {NP_B}'); e('s_mov_b32 s57, 2')
    e(f'v_mov_b32 v38, v{SAVE+1}')
    lab('L_startV')
    c('V pass: scores at v38 (stride s66), maximum v10')
    e(f'ds_read_b128 v[{QD}:{QD+3}], v38'); e('v_add_u32 v38, s66, v38')
    e('v_mul_f32 v11, s59, v10'); e('v_sub_f32 v11, 0, v11')
    e('v_mov_b32 v12, 0')
    for r in range(8): e(f'v_mov_b32 v{16+r}, 0')
    if DIAG:
        e('s_memrealtime s[70:71]'); e('s_add_u32 s60, s57, 2'); e('s_mov_b32 m0, s60'); e('s_waitcnt lgkmcnt(0)'); e('v_writelane_b32 v1, s70, m0')
    looptop('V')
    for t in range(4):
        V = RING + 16 * t
        if anydeep: e('s_cmp_le_u32 s56, s69')
        e('s_waitcnt lgkmcnt(0)')
        for r in range(4): e(f'v_fma_f32 v{4+r}, v{QD+r}, s59, v11')
        e(f'ds_read_b128 v[{QD}:{QD+3}], v38'); e('v_add_u32 v38, s66, v38')
        for r in range(4): e(f'v_exp_f32 v{4+r}, v{4+r}')
        e('s_nop 0')
        e('v_cvt_pk_bf16_f32 v24, v4, v5'); e('v_cvt_pk_bf16_f32 v25, v6, v7')
        e('v_add_f32 v8, v4, v5'); e('v_add_f32 v9, v6, v7')
        for r in range(4):
            e(f'v_perm_b32 v{26+2*r}, v{24+(r>>1)}, v{24+(r>>1)}, v{34+(r&1)}')
            e(f'v_perm_b32 v{27+2*r}, v{24+(r>>1)}, v{24+(r>>1)}, v{36+(r&1)}')
        e('v_add_f32 v8, v8, v9'); e('v_add_f32 v12, v12, v8')
        for r in range(4):
            thr()
            e(f'v_mfma_f32_16x16x16_bf16 v[16:19], v[{V+4*r}:{V+4*r+1}], v[{26+2*r}:{27+2*r}], v[16:19]')
            e(f'v_mfma_f32_16x16x16_bf16 v[20:23], v[{V+4*r+2}:{V+4*r+3}], v[{26+2*r}:{27+2*r}], v[20:23]')
            load(t, r)
        adv(t)
    e('s_sub_u32 s56, s56, 1'); e('s_cmp_lg_u32 s56, 0'); e('s_cbranch_scc1 L_loopV')
    c('reduce l, publish the A partial (after the B pass the stores are dropped: zero-size descriptor)')
    e('v_mov_b32 v9, v12'); e('v_mul_f32 v4, s59, v10'); e('v_mov_b32 v6, s94'); e('v_permlane32_swap_b32 v12, v9'); e('v_add_f32 v12, v12, v9')
    e('v_mov_b32 v9, v12'); e('v_mov_b32 v7, s95')
    for k in range(8): e(f'v_bfi_b32 v{24+k}, v{SAVE+3}, s{TG+(k&3)}, v{16+k}')
    e('v_permlane16_swap_b32 v12, v9'); e('v_add_f32 v5, v12, v9')
    e('s_cmp_eq_u32 s67, 2'); e('s_cbranch_scc0 L_pubslow')
    def pubA(p):
        e('s_mov_b32 exec_lo, 0x000f000f'); e('s_mov_b32 exec_hi, 0x000f000f')
        e(f'buffer_store_dwordx4 v[24:27], v15, s[{SWS}:{SWS+3}], s68 offen offset:{BASE+128} {p}')
        e(f'buffer_store_dwordx4 v[28:31], v15, s[{SWS}:{SWS+3}], s68 offen offset:{BASE+384} {p}')
        e('s_mov_b64 exec, 0x5555')
        e(f'buffer_store_dwordx4 v[4:7], v{SAVE+4}, s[{SWS}:{SWS+3}], s68 offen offset:{BASE} {p}')
    pubA('')
    lab('L_pubdone')
    e('s_cmp_eq_u32 s57, 3'); e('s_cbranch_scc1 L_exit')
    e('s_mov_b64 exec, -1')
    c('hand the B state to the B finisher through LDS')
    e('s_mul_i32 s60, s3, 2560'); e('v_add_u32 v8, s60, v14'); e(f'v_add_u32 v9, s60, v{SAVE+4}')
    e('ds_write_b128 v8, v[16:19]'); e('ds_write_b128 v8, v[20:23] offset:1024'); e('ds_write_b64 v9, v[4:5] offset:2048')
    e('s_waitcnt lgkmcnt(0)')
    e('s_mov_b64 exec, 1'); e('ds_add_u32 v40, v41 offset:8'); e('s_mov_b64 exec, -1')
    e(f's_mov_b32 s56, {NP_A}'); e('s_mov_b32 s57, 3'); e(f's_mov_b32 s69, {deep}'); e('s_mov_b32 s66, 64')
    e(f'v_mov_b32 v38, v{SAVE}'); e(f'v_mov_b32 v10, v{SAVE+2}')
    e('s_branch L_startV')
    lab('L_pubslow')
    pubA('sc1')
    e('s_branch L_pubdone')
    lab('L_ret_qb')
    if noserv: e('s_branch L_exit')
    c('publish the die id of this workgroup')
    e('s_getreg_b32 s67, hwreg(HW_REG_XCC_ID, 0, 4)')
    e('v_mov_b32 v44, s67'); e('v_mov_b32 v45, s67'); e('v_mov_b32 v46, s94'); e('v_mov_b32 v47, s95')
    e(f's_add_u32 s60, s68, {IDO}')
    e('s_mov_b64 exec, 0xff')
    e(f'buffer_store_dwordx4 v[44:47], v14, s[{SWS}:{SWS+3}], s60 offen sc1')
    e('s_mov_b64 exec, -1')
    e(f'v_and_b32 v8, 31, v0'); e(f's_mov_b32 s60, {8*STRIDE}'); e('v_mul_lo_u32 v13, v8, s60')
    e(f's_mul_i32 s75, s30, {STRIDE}'); e(f's_add_u32 s75, s75, {IDO+BASE}')
    waitlds('L_waitq', 4, WS * (NP_A - tQ))
    e('v_lshrrev_b32 v8, 5, v0'); e(f's_mov_b32 s60, {HS*STRIDE}'); e('v_mul_lo_u32 v10, v8, s60'); e('v_add_u32 v10, v10, v12')
    e('v_lshl_add_u32 v11, v8, 8, v11')
    e(f's_mov_b32 s62, {SPIN}')
    e('s_branch L_qg1')
    lab('L_qg')
    e('s_sleep 32')
    lab('L_qg1')
    e(f's_mul_i32 s60, s30, {STRIDE*(32 if qmap else 1)}'); e('s_lshl_b32 s61, s53, 7'); e('s_add_u32 s60, s60, s61'); e(f's_add_u32 s60, s60, {QBO+BASE}')
    for a in range(2):
        for p in range(8):
            n = a * 8 + p
            e(f'buffer_load_dwordx4 v[{64+4*n}:{64+4*n+3}], v10, s[{SWS}:{SWS+3}], s60 offen sc1')
            if p < 7: e(f's_add_u32 s60, s60, {PS*STRIDE}')
        if a == 0: e(f's_add_u32 s60, s60, {(2*HS-7*PS)*STRIDE}')
    e(f'buffer_load_dwordx4 v[44:47], v13, s[{SWS}:{SWS+3}], s75 offen sc1')
    e('s_sub_u32 s62, s62, 1'); e('s_cbranch_scc1 L_exit')
    e('s_waitcnt vmcnt(0)')
    untag(64, 64, 8)
    e('v_xor_b32 v46, s94, v46'); e('v_xor_b32 v47, s95, v47'); e('v_or_b32 v46, v46, v47')
    e('v_and_or_b32 v8, v8, v60, v46'); e('v_cmp_ne_u32 vcc, 0, v8'); e('s_cbranch_vccnz L_qg')
    c('flag value 2: all 32 workgroups of the group share this die, 1: they do not')
    e('v_cmp_ne_u32 vcc, s67, v44'); e('s_cmp_eq_u64 vcc, 0'); e(f's_cselect_b32 s67, {2 if (local and not forceslow) else 1}, 1')
    for a in range(2):
        for p in range(1, 8):
            for r in range(4): e(f'v_add_f32 v{64+32*a+r}, v{64+32*a+r}, v{64+32*a+4*p+r}')
        for r in range(4):
            e(f'v_cvt_pk_bf16_f32 v{64+32*a+r}, v{64+32*a+r}, v{64+32*a+r}')
        for r in range(4):
            e(f'ds_write_b16 v11, v{64+32*a+r} offset:{L_QB + 512*a + 16*r}')
    e('v_mov_b32 v8, s67')
    e('ds_write_b32 v59, v8')
    stamp(4)
    e('s_branch L_exit')
    lab('L_finisher')
    if nofin or noserv: e('s_branch L_exit')
    if prio: e(f's_setprio {prio}')
    c('parameters: s74 record base (ML), s84..87 O offsets, s76 own Y, s80 Y gather, s77 out offset, s78 n0 stride, s79 is-B')
    e(f's_lshl_b32 s76, s79, 10'); e('s_mov_b32 s77, s76'); e(f's_add_u32 s76, s76, {YA}')
    e('s_cmp_eq_u32 s79, 0'); e('s_cbranch_scc0 L_parB')
    e('s_and_b32 s60, s2, 0xc7'); e(f's_mul_i32 s74, s60, {STRIDE}'); e(f's_add_u32 s74, s74, {BASE}'); e('s_add_u32 s75, s74, 128'); e(f's_mov_b32 s78, {RA}')
    e('s_branch L_par')
    lab('L_parB')
    e(f's_mul_i32 s74, s30, {STRIDE}'); e(f's_add_u32 s74, s74, {OB+BASE}'); e('s_lshr_b32 s60, s31, 3')
    e('s_lshl_b32 s61, s60, 9'); e('s_add_u32 s75, s74, s61'); e('s_add_u32 s75, s75, 128')
    e('s_lshl_b32 s61, s60, 5'); e('s_add_u32 s74, s74, s61'); e(f's_mov_b32 s78, {64*STRIDE}')
    lab('L_par')
    e('s_lshl_b32 s60, s53, 8'); e('s_add_u32 s84, s75, s60')
    e('s_add_u32 s85, s84, s78'); e(f's_add_u32 s86, s84, {32*STRIDE}'); e('s_add_u32 s87, s86, s78')
    for k in range(4): e(f's_add_u32 s{88+k}, s{84+k}, {128*STRIDE}')
    e(f's_add_u32 s92, s74, {128*STRIDE}')
    e(f's_mov_b32 s60, {8*STRIDE}')
    e('v_mul_lo_u32 v15, v2, s60'); e('v_add_u32 v15, v15, v4')
    e('v_and_b32 v8, 3, v0'); e('v_xor_b32 v8, v8, v2'); e('v_lshl_add_u32 v8, v7, 2, v8'); e('v_mul_lo_u32 v13, v8, s60')
    e('v_bfe_u32 v8, v0, 2, 1'); e('v_mul_lo_u32 v8, v8, s78'); e('v_add_u32 v13, v13, v8')
    lgy = NY.bit_length() - 1
    NC = 256 // NY
    e(f'v_lshrrev_b32 v8, {lgy}, v0'); e('v_and_b32 v9, 7, v8'); e('v_lshrrev_b32 v8, 3, v8'); e('v_lshl_add_u32 v8, v8, 5, v9')
    e(f's_mov_b32 s60, {STRIDE}'); e('v_mul_lo_u32 v12, v8, s60')
    e(f'v_and_b32 v10, {NY-1}, v0'); e('v_lshl_add_u32 v12, v10, 4, v12')
    c('LDS scratch addresses: v57 write, v58 read')
    e('s_lshl_b32 s60, s79, 8'); e(f's_add_u32 s60, s60, {L_X}')
    e('v_lshrrev_b32 v8, 1, v2'); e('v_lshlrev_b32 v8, 7, v8'); e('v_and_b32 v9, 1, v2'); e('v_lshl_add_u32 v8, v9, 2, v8')
    e('v_lshrrev_b32 v9, 1, v4'); e('v_add3_u32 v57, v8, v9, s60')
    e('v_lshlrev_b32 v8, 7, v7'); e('v_lshl_add_u32 v8, v2, 5, v8'); e('v_add_u32 v58, s60, v8')
    c('consumer role: s81 = 0 when this workgroup reduces outputs of its branch')
    e(f's_lshr_b32 s81, s2, {8-lgy}')
    if NY > 1:
        e(f's_mul_i32 s60, s79, {NY//2}'); e('s_xor_b32 s81, s81, s60')
    e('s_and_b32 s61, s2, 3'); e(f's_mul_i32 s80, s61, {8*STRIDE}'); e('s_add_u32 s80, s80, s76'); e(f's_add_u32 s80, s80, {BASE}')
    e(f's_and_b32 s63, s2, {NC-1}'); e('s_lshr_b32 s63, s63, 2'); e(f's_lshl_b32 s63, s63, {lgy}')
    e('s_lshl_b32 s60, s63, 4'); e('s_add_u32 s80, s80, s60')
    e('s_lshl_b32 s61, s61, 8'); e('s_add_u32 s77, s77, s61')
    e('s_lshr_b32 s61, s63, 4'); e('s_lshl_b32 s61, s61, 6'); e('s_add_u32 s77, s77, s61')
    e('s_bfe_u32 s61, s63, 0x10003'); e('s_lshl_b32 s61, s61, 11'); e('s_add_u32 s77, s77, s61')
    e('s_and_b32 s61, s63, 7'); e('s_lshl_b32 s61, s61, 1'); e('s_add_u32 s77, s77, s61')
    e('v_and_b32 v8, 1, v2'); e('v_lshrrev_b32 v9, 1, v2'); e('v_lshl_add_u32 v8, v8, 1, v9'); e('v_lshlrev_b32 v11, 4, v8')
    e('v_lshl_add_u32 v11, v10, 1, v11')
    e('s_add_u32 s76, s76, s68')
    e('s_mov_b32 s64, 2')
    srd(SX, 24, 0)
    if dry:
        c('dry run of the tail code through zero-size descriptors (instruction cache warm-up)')
        e(f's_mov_b32 s{SWS+2}, 0'); e('s_mov_b32 s83, 1')
        for k in range(4): e(f's_mov_b32 s{TG+k}, 0')
        e('s_mov_b32 s94, 0'); e('s_mov_b32 s95, 0')
        e('s_branch L_fin')
    lab('L_real')
    e('s_mov_b64 exec, -1')
    e('s_mov_b32 s83, 0'); e(f's_mov_b32 s{SWS+2}, {WSBYTES}'); e(f's_mov_b32 s{SX+2}, 4096')
    waitlds('L_waittag', 12, 1)
    e('ds_read_b32 v8, v59 offset:16'); e('s_waitcnt lgkmcnt(0)'); e('v_readfirstlane_b32 s93, v8')
    tags()
    e('s_cmp_eq_u32 s79, 0'); e('s_cbranch_scc1 L_waitA')
    c('B finisher: merge the two B states, publish near the end')
    waitlds('L_waitB', 8, WS)
    BO = 128
    e('v_lshlrev_b32 v10, 3, v0')
    e('ds_read_b32 v53, v59')
    e(f'ds_read_b128 v[{BO}:{BO+3}], v14'); e(f'ds_read_b128 v[{BO+4}:{BO+7}], v14 offset:1024'); e('ds_read_b64 v[44:45], v10 offset:2048')
    e(f'ds_read_b128 v[{BO+8}:{BO+11}], v14 offset:2560'); e(f'ds_read_b128 v[{BO+12}:{BO+15}], v14 offset:3584'); e('ds_read_b64 v[46:47], v10 offset:4608')
    e('s_waitcnt lgkmcnt(0)')
    e('v_readfirstlane_b32 s67, v53')
    e('v_max_f32 v48, v44, v46'); e('v_sub_f32 v8, v44, v48'); e('v_sub_f32 v9, v46, v48'); e('v_exp_f32 v8, v8'); e('v_exp_f32 v9, v9'); e('s_nop 0')
    e('v_mul_f32 v49, v45, v8'); e('v_fmac_f32 v49, v47, v9'); e('v_mov_b32 v50, s94'); e('v_mov_b32 v51, s95')
    for r in range(8):
        e(f'v_mul_f32 v{BO+r}, v{BO+r}, v8'); e(f'v_fmac_f32 v{BO+r}, v{BO+8+r}, v9')
    puttag(BO, 8, 60)
    e('v_and_b32 v8, 3, v0'); e('v_lshl_add_u32 v8, v2, 2, v8'); e('v_lshlrev_b32 v8, 4, v8'); e('v_bfe_u32 v9, v0, 2, 2'); e('v_lshl_add_u32 v52, v9, 9, v8')
    stamp(3)
    waitlds('L_waitpub', 4, WS * (NIT - tPub))
    e(f's_add_u32 s60, s68, {OB}')
    def pubB(p):
        e(f'buffer_store_dwordx4 v[{BO}:{BO+3}], v52, s[{SWS}:{SWS+3}], s60 offen offset:128 {p}')
        e(f'buffer_store_dwordx4 v[{BO+4}:{BO+7}], v52, s[{SWS}:{SWS+3}], s60 offen offset:384 {p}')
        e('s_mov_b64 exec, 0x5555')
        e(f'buffer_store_dwordx4 v[48:51], v10, s[{SWS}:{SWS+3}], s60 offen {p}')
        e('s_mov_b64 exec, -1')
    e('s_cmp_eq_u32 s67, 2'); e('s_cbranch_scc1 L_pubBfast')
    pubB('sc1')
    e('s_branch L_pubBdone')
    lab('L_pubBfast')
    pubB('')
    lab('L_pubBdone')
    e('s_waitcnt vmcnt(0)')
    e('s_branch L_fin1')
    lab('L_waitA')
    waitlds('L_waitown', 4, WS * NIT)
    lab('L_fin1')
    stamp(5)
    lab('L_fin')
    O1 = 128; O2 = 144; M1 = 44; M2 = 160
    def gather(label, A, M, so, sm):
        e(f's_mov_b32 s60, {SPIN}')
        if gslp:
            e(f's_branch {label}a'); lab(label); e(f's_sleep {gslp}'); lab(label + 'a')
        else:
            lab(label)
        e(f'buffer_load_dwordx4 v[{M}:{M+3}], v13, s[{SWS}:{SWS+3}], s{sm} offen {pgpol}')
        for k in range(4): e(f'buffer_load_dwordx4 v[{A+4*k}:{A+4*k+3}], v15, s[{SWS}:{SWS+3}], s{so+k} offen {pgpol}')
        e('s_sub_u32 s60, s60, 1'); e('s_cbranch_scc1 L_exit')
        e('s_waitcnt vmcnt(4)')
        e(f'v_xor_b32 v9, s94, v{M+2}'); e(f'v_xor_b32 v10, s95, v{M+3}'); e('v_or_b32 v9, v9, v10')
        for k in range(4):
            e(f's_waitcnt vmcnt({3-k})')
            untag(A + 4 * k, 4, 8, first=(k == 0))
        e('v_and_or_b32 v8, v8, v60, v9')
        e('v_cmp_ne_u32 vcc, 0, v8')
        e(f's_cbranch_vccnz {label}')
    e('s_cmp_eq_u32 s79, 0'); e('s_cbranch_scc1 L_g0s')
    gather('L_g1', O2, M2, 88, 92)
    lab('L_g0s')
    for r in range(4): e(f'v_mov_b32 v{DD+r}, 0')
    gather('L_g0', O1, M1, 84, 74)
    stamp(6)
    DP = ['quad_perm:[1,0,3,2]', 'quad_perm:[2,3,0,1]', 'row_half_mirror']
    AC = 48
    e(f'v_mov_b32 v8, v{M1}')
    e('s_cmp_eq_u32 s79, 0'); e('s_cbranch_scc1 L_m1')
    e(f'v_max_f32 v8, v8, v{M2}')
    lab('L_m1')
    for d in DP:
        e('s_nop 1'); e(f'v_max_f32_dpp v8, v8, v8 {d} row_mask:0xf bank_mask:0xf')
    e(f'v_sub_f32 v9, v{M1}, v8'); e('v_exp_f32 v9, v9'); e('s_nop 0')
    e(f'v_mul_f32 v10, v{M1+1}, v9')
    e('s_cbranch_scc1 L_m2')
    e(f'v_sub_f32 v56, v{M2}, v8'); e('v_exp_f32 v56, v56'); e('s_nop 0'); e(f'v_fmac_f32 v10, v{M2+1}, v56')
    lab('L_m2')
    for d in DP:
        e('s_nop 1'); e(f'v_add_f32_dpp v10, v10, v10 {d} row_mask:0xf bank_mask:0xf')
    e('v_rcp_f32 v10, v10'); e('s_nop 0'); e('v_mul_f32 v9, v9, v10'); e('v_mul_f32 v56, v56, v10'); e('s_nop 0')
    for b in range(2):
        for k in range(4): e(f'v_mul_f32_dpp v{AC+4*b+k}, v9, v{O1+8*b+k} row_newbcast:{8*b} row_mask:0xf bank_mask:0xf')
    for b in range(2):
        for k in range(4): e(f'v_fmac_f32_dpp v{AC+4*b+k}, v9, v{O1+8*b+4+k} row_newbcast:{8*b+4} row_mask:0xf bank_mask:0xf')
    e('s_cbranch_scc1 L_m3')
    for n0 in range(2):
        for b in range(2):
            for k in range(4): e(f'v_fmac_f32_dpp v{AC+4*b+k}, v56, v{O2+8*b+4*n0+k} row_newbcast:{8*b+4*n0} row_mask:0xf bank_mask:0xf')
    lab('L_m3')
    for k in range(4): e(f'v_permlane32_swap_b32 v{AC+k}, v{AC+4+k}')
    for k in range(4): e(f'v_add_f32 v{AC+k}, v{AC+k}, v{AC+4+k}')
    e('s_nop 0')
    e(f'v_permlane16_swap_b32 v{AC}, v{AC+2}'); e(f'v_permlane16_swap_b32 v{AC+1}, v{AC+3}')
    e(f'v_add_f32 v{AC}, v{AC}, v{AC+2}'); e(f'v_add_f32 v{AC+1}, v{AC+1}, v{AC+3}')
    e(f'v_cvt_pk_bf16_f32 v8, v{AC}, v{AC+1}')
    e('ds_write_b32 v57, v8')
    e(f'ds_read_b128 v[{XP}:{XP+3}], v58'); e(f'ds_read_b128 v[{XP+4}:{XP+7}], v58 offset:16')
    e('s_waitcnt lgkmcnt(0)')
    e('s_branch L_projmm')
    lab('L_ret_fin')
    stamp(7)
    e('s_cmp_lg_u32 s81, 0'); e('s_cbranch_scc1 L_done')
    if yslp:
        e('s_branch L_ya'); lab('L_y'); e(f's_sleep {yslp}'); lab('L_ya')
    else:
        lab('L_y')
    e('s_mov_b32 s61, s80')
    for n in range(NY):
        e(f'buffer_load_dwordx4 v[{O1+4*n}:{O1+4*n+3}], v12, s[{SWS}:{SWS+3}], s61 offen sc1')
        if n < NY - 1: e(f's_add_u32 s61, s61, {(256//NY)*STRIDE}')
    e('s_sub_u32 s60, s60, 1'); e('s_cbranch_scc1 L_exit')
    for n in range(NY):
        e(f's_waitcnt vmcnt({NY-1-n})')
        untag(O1 + 4 * n, 4, 8, first=(n == 0))
        if n > 0:
            for k in range(4): e(f'v_add_f32 v{O1+k}, v{O1+k}, v{O1+4*n+k}')
    e('v_and_b32 v8, 0xff, v8'); e('v_cmp_ne_u32 vcc, 0, v8'); e('s_cbranch_vccnz L_y')
    stamp(8)
    e(f'v_permlane32_swap_b32 v{O1}, v{O1+1}'); e(f'v_permlane32_swap_b32 v{O1+2}, v{O1+3}')
    e(f'v_add_f32 v{O1}, v{O1}, v{O1+1}'); e(f'v_add_f32 v{O1+2}, v{O1+2}, v{O1+3}'); e('s_nop 1')
    e(f'v_permlane16_swap_b32 v{O1}, v{O1+2}'); e(f'v_add_f32 v8, v{O1}, v{O1+2}')
    for d in (8, 4, 2, 1):
        if d >= NY:
            e('s_nop 1'); e(f'v_add_f32_dpp v8, v8, v8 row_ror:{d} row_mask:0xf bank_mask:0xf')
    e('v_cvt_pk_bf16_f32 v8, v8, v8')
    m = ((1 << NY) - 1) * 0x00010001
    e(f's_mov_b32 exec_lo, 0x{m:08x}'); e(f's_mov_b32 exec_hi, 0x{m:08x}')
    e(f'buffer_store_short v8, v11, s[{SX}:{SX+3}], s77 offen')
    c('every workgroup has read the tag word by now: leave this launch\'s tag behind')
    e('s_or_b32 s60, s2, s79'); e('s_cbranch_scc1 L_done')
    e('s_mov_b64 exec, 1'); e('v_mov_b32 v9, s94'); e('v_mov_b32 v10, 0')
    e(f'buffer_store_dword v9, v10, s[{SWS}:{SWS+3}], 0 offen')
    lab('L_done')
    if dry:
        e('s_cmp_eq_u32 s83, 1'); e('s_cbranch_scc1 L_real')
    lab('L_exit')
    if DIAG:
        e('s_mov_b64 exec, -1')
        e('s_waitcnt vmcnt(0)')
        stamp(9)
        e('s_add_u32 s48, s28, 0x4000000'); e('s_addc_u32 s49, s29, 0'); e('s_mov_b32 s50, 0x100000'); e('s_mov_b32 s51, 0x20000')
        e('s_lshl_b32 s60, s2, 4'); e('s_add_u32 s60, s60, s3'); e('s_lshl_b32 s60, s60, 7')
        e('v_lshlrev_b32 v2, 2, v0')
        e('s_mov_b64 exec, 0xffffffff')
        e(f'buffer_store_dword v1, v2, s[{SWS}:{SWS+3}], s60 offen')
        if DIAG >= 2:
            e(f's_cmp_ge_u32 s3, {WS}'); e('s_cbranch_scc1 L_end')
            e('s_mov_b64 exec, -1'); e('s_mov_b32 s50, 0x400000'); e('s_lshl_b32 s60, s60, 2'); e('s_add_u32 s60, s60, 0x100000')
            e(f'buffer_store_dword v3, v2, s[{SWS}:{SWS+3}], s60 offen')
            e(f'buffer_store_dword v43, v2, s[{SWS}:{SWS+3}], s60 offen offset:256')
    lab('L_end')
    e('s_endpgm')
    L.append('.section .rodata,"a"'); L.append('.p2align 6'); L.append(f'.amdhsa_kernel {NAME}')
    L.append('  .amdhsa_next_free_vgpr 168'); L.append('  .amdhsa_next_free_sgpr %d' % (102 if DIAG else 96)); L.append('  .amdhsa_accum_offset 168')
    L.append('  .amdhsa_group_segment_fixed_size 0'); L.append('  .amdhsa_kernarg_size 104'); L.append('  .amdhsa_user_sgpr_count 2')
    L.append('  .amdhsa_user_sgpr_kernarg_segment_ptr 1'); L.append('  .amdhsa_system_sgpr_workgroup_id_x 1'); L.append('.end_amdhsa_kernel')
    return '\n'.join(L) + '\n'

if __name__ == '__main__':
    kw = {}
    for a in sys.argv[2:]:
        k, v = a.split('=')
        kw[k] = v if k.endswith('pol') else int(v)
    open(sys.argv[1], 'w').write(gen(**kw))
```

```python
import sys, struct, os
NAME = 'concat_heads__mha_block_cached__gqa_block_cached__decode_kernel'
def f32(x): return struct.unpack('<I', struct.pack('<f', x))[0]
_ref = 'concat_heads__mha_block_cached__gqa_block_cached__decode.s.ref'
HEADER = open(_ref).read().split('; Override launch')[0] if os.path.exists(_ref) else ''

def gen(D=10, skew=16384, T=8192, DIAG=0, pol='nt', wqpol='nt', wpol='nt', tPub=0, prio=3, rot=1, noserv=0, slp=4,
        dry=1, WS=2, deep=0, deepT=0, D2=15, tQ=8, tWo=1, tW4=4, NY=4, gslp=0, yslp=0, nofin=0, NB=2, Dr=4, Dp=3, qslp=0, qmap=1, qfirst=1, qmapA=0, qapol='', qgpol='sc1', pgpol='sc1', local=1, tRe=2, KF=6, forceslow=0, pad=0, padw=0, padidx=-1, padscale=1, padwg=-1):
    assert WS == 2
    NW = 6
    BASE = 128
    RA = 640; OB = 2 * RA; YA = OB + 128 + 2048; YB = YA + 1024; QBO = YB + 1024; QAO = QBO + 1024; IDO = QAO + 1024; STRIDE = IDO + 128
    WSBYTES = BASE + 256 * STRIDE
    L_QA = 8192; L_QB = L_QA + 256; L_FLAG = L_QB + 1024; L_X = L_FLAG + 64
    L_SA = 10240; L_SB = L_SA + 16384; LDS = L_SB + 16384 + 1024
    NP_A = 32; NP_B = 8; NIT = 80
    VM = min(15, D)
    SPIN = 1 << 18
    W3, W0, W1, W2 = 2, 3, 4, 5
    L = []
    def e(s): L.append('    ' + s)
    def lab(s): L.append(s + ':')
    def c(s): L.append('    ; ' + s)
    L.append(HEADER.rstrip('\n'))
    L.append(f'; @launch grid=(256,1,1) block=({NW*64},1,1) lds={LDS}')
    L.append('.amdgcn_target "amdgcn-amd-amdhsa--gfx950"')
    L.append('.text'); L.append(f'.globl {NAME}'); L.append('.p2align 8'); L.append(f'.type {NAME},@function')
    lab(NAME)
    def stamp(idx):
        if pad and idx == padidx:
            e('s_memrealtime s[98:99]'); e('s_waitcnt lgkmcnt(0)')
        if not DIAG: return
        e('s_memrealtime s[70:71]'); e('s_waitcnt lgkmcnt(0)'); e(f'v_writelane_b32 v1, s70, {idx}')
    def srd(d, lo, size, off=None):
        if off is None:
            e(f's_mov_b32 s{d}, s{lo}'); e(f's_mov_b32 s{d+1}, s{lo+1}')
        else:
            e(f's_add_u32 s{d}, s{lo}, {off}'); e(f's_addc_u32 s{d+1}, s{lo+1}, 0')
        e(f's_mov_b32 s{d+2}, {size}'); e(f's_mov_b32 s{d+3}, 0x20000')
    def basesel():
        e('s_mov_b32 s62, 0xaaaaaaaa'); e('s_mov_b32 s63, 0xaaaaaaaa')
        e('v_mov_b32 v8, 0x0c0c0100'); e('v_mov_b32 v9, 0x01000c0c')
        e('v_cndmask_b32 v60, v8, v9, s[62:63]')
        e('v_mov_b32 v8, 0x0c0c0302'); e('v_mov_b32 v9, 0x03020c0c')
        e('v_cndmask_b32 v61, v8, v9, s[62:63]')
        e('v_mov_b32 v62, 0x0c0c0c0c')
    TG = 36
    def tags():
        e('s_add_u32 s94, s93, 0x01010101'); e('s_not_b32 s95, s94')
        e(f's_and_b32 s{TG}, s94, 0xff'); e(f's_bfe_u32 s{TG+1}, s94, 0x80008'); e(f's_bfe_u32 s{TG+2}, s94, 0x80010'); e(f's_lshr_b32 s{TG+3}, s94, 24')
    def puttag(r, n, vm):
        for k in range(n): e(f'v_bfi_b32 v{r+k}, v{vm}, s{TG+(k&3)}, v{r+k}')
    def untag(r, n, acc, first=True):
        for k in range(n): e(f'v_xor_b32 v{r+k}, s{TG+(k&3)}, v{r+k}')
        k = 0
        if first:
            e(f'v_or3_b32 v{acc}, v{r}, v{r+1}, v{r+2}'); k = 3
        while k + 1 < n:
            e(f'v_or3_b32 v{acc}, v{acc}, v{r+k}, v{r+k+1}'); k += 2
        if k < n: e(f'v_or_b32 v{acc}, v{acc}, v{r+k}')
    SL, SW, SX, SWS = 32, 40, 44, 48
    RING = 64; WT = 64; XP = 16; SEL = 24; RR = 32; DD = 40; QQ = 44; QD = 48; SAVE = 128
    def waitlds(label, off, target):
        e(f's_mov_b32 s60, {SPIN*4}')
        lab(label)
        e(f's_sleep {slp}')
        e(f'ds_read_b32 v8, v59 offset:{off}'); e('s_waitcnt lgkmcnt(0)'); e('v_readfirstlane_b32 s61, v8')
        e('s_sub_u32 s60, s60, 1'); e('s_cbranch_scc1 L_exit')
        e(f's_cmp_lt_u32 s61, {target}'); e(f's_cbranch_scc1 {label}')
    e('s_cmp_ge_u32 s2, 256'); e('s_cbranch_scc1 L_end')
    e('s_load_dwordx16 s[4:19], s[0:1], 0')
    e('s_load_dwordx8 s[20:27], s[0:1], 64')
    e('s_load_dwordx2 s[28:29], s[0:1], 96')
    if DIAG or pad: e('s_memrealtime s[72:73]')
    e('v_lshrrev_b32 v1, 6, v0')
    e('v_and_b32 v0, 63, v0')
    e('v_readfirstlane_b32 s3, v1')
    e('s_and_b32 s30, s2, 7')
    e('s_lshr_b32 s31, s2, 3')
    e('s_lshr_b32 s60, s31, 3')
    e('s_lshl_b32 s52, s30, 2')
    e('s_add_u32 s52, s52, s60')
    e('s_bfe_u32 s53, s31, 0x10002')
    e('v_lshrrev_b32 v2, 4, v0')
    e('v_lshlrev_b32 v14, 4, v0')
    if DIAG: e('v_mov_b32 v1, 0')
    e(f's_cmp_ge_u32 s3, {WS}')
    e('s_cbranch_scc1 L_svc_pro')
    c('streaming waves: first loads')
    e('s_lshl_b32 s60, s53, 5'); e('s_add_u32 s60, s60, s52'); e('s_lshl_b32 s60, s60, 2')
    e('s_and_b32 s62, s31, 3'); e('s_add_u32 s65, s60, s62')
    e('v_and_b32 v10, 3, v0'); e('v_bfe_u32 v9, v0, 2, 2')
    e('v_lshl_add_u32 v10, v2, 2, v10')
    e('v_lshlrev_b32 v10, 4, v10')
    e('v_lshl_add_u32 v42, v9, 8, v10')
    e(f's_mul_i32 s58, s65, {skew}')
    e(f's_mul_i32 s60, s3, {T}')
    e('s_add_u32 s58, s58, s60')
    e(f's_mov_b32 s55, {(1<<20)-1}')
    e('s_and_b32 s54, s58, s55')
    e('s_lshl_b32 s60, s65, 20')
    e(f'v_mov_b32 v40, {L_FLAG}'); e('v_mov_b32 v4, 0'); e('v_mov_b32 v5, 0')
    e('ds_write_b64 v40, v[4:5]'); e('ds_write_b64 v40, v[4:5] offset:8')
    e('s_waitcnt lgkmcnt(0)')
    srd(SL, 6, 1 << 20, 's60')
    e('s_barrier')
    def load(t, j): e(f'buffer_load_dwordx4 v[{RING+16*t+4*j}:{RING+16*t+4*j+3}], v42, s[{SL}:{SL+3}], s54 offen offset:{1024*j} {pol}')
    def adv(t):
        last = ((t + 1) * 4096) % T == 0
        e(f's_add_u32 s54, s54, {4096 + ((WS-1)*T if last else 0)}'); e('s_and_b32 s54, s54, s55')
    def ringload(n0, n1):
        for n in range(n0, n1):
            if n > Dr: e(f's_waitcnt vmcnt({Dr})')
            load(n >> 2, n & 3)
            if n & 3 == 3: adv(n >> 2)
    ringload(0, min(16, Dr + 1))
    e('s_branch L_stream')
    lab('L_svc_pro')
    if DIAG: e('s_memrealtime s[96:97]')
    e('v_and_b32 v4, 0xf0, v14')
    e('v_bfe_u32 v7, v0, 3, 1')
    e('v_lshlrev_b32 v6, 5, v2')
    e('v_lshl_add_u32 v6, v7, 10, v6')
    e('s_and_b32 s61, s31, 7')
    e(f's_cmp_eq_u32 s3, {W3}')
    e(f's_cselect_b32 s66, {"s30" if qmapA else "s61"}, {"s30" if qmap else "s61"}')
    e(f's_cselect_b32 s62, {"s31" if qmapA else "s52"}, {"s31" if qmap else "s52"}')
    e('s_lshl_b32 s60, s66, 19'); e('s_lshl_b32 s62, s62, 8'); e('s_add_u32 s60, s60, s62')
    e('s_lshl_b32 s61, s52, 17'); e('s_lshl_b32 s62, s53, 12'); e('s_add_u32 s61, s61, s62')
    e('s_and_b32 s62, s31, 3'); e('s_lshl_b32 s62, s62, 8'); e('s_add_u32 s61, s61, s62')
    e('s_movk_i32 s63, 0x2000')
    e(f's_sub_u32 s79, s3, {W0}'); e('s_cmp_lt_u32 s79, 2')
    e('s_cselect_b32 s60, s61, s60'); e('s_cselect_b32 s62, 15, 17'); e(f's_cselect_b32 s63, {1024-3*8192}, s63')
    e(f's_cselect_b32 s{SX+2}, 0, 2048')
    e('v_lshlrev_b32 v5, s62, v2'); e('v_add_u32 v5, v5, v4')
    e(f's_cmp_eq_u32 s3, {W3}'); e('s_cselect_b64 vcc, -1, 0')
    if not qfirst: e('s_barrier')
    e('s_waitcnt lgkmcnt(0)')
    if DIAG: e('s_memrealtime s[98:99]')
    e('s_load_dword s93, s[28:29], 0')
    e(f's_cselect_b32 s{SW}, s10, s20'); e(f's_cselect_b32 s{SW+1}, s11, s21')
    e(f's_cselect_b32 s{SX}, s4, s14'); e(f's_cselect_b32 s{SX+1}, s5, s15')
    if prio:
        e('s_cbranch_scc0 L_noprio'); e(f's_setprio {prio}'); lab('L_noprio')
    e(f's_cmp_eq_u32 s3, {W0}'); e(f's_cselect_b32 s{SW}, s12, s{SW}'); e(f's_cselect_b32 s{SW+1}, s13, s{SW+1}')
    e(f's_cmp_eq_u32 s3, {W1}'); e(f's_cselect_b32 s{SW}, s22, s{SW}'); e(f's_cselect_b32 s{SW+1}, s23, s{SW+1}')
    e(f's_mov_b32 s{SW+2}, {1<<22}'); e(f's_mov_b32 s{SW+3}, 0x20000'); e(f's_mov_b32 s{SX+3}, 0x20000')
    e('s_lshl_b32 s61, s66, 7')
    if qfirst:
        e('s_cbranch_vccnz L_nb0'); e('s_barrier'); lab('L_nb0')
    if DIAG: e('s_memrealtime s[100:101]')
    e(f'buffer_load_dwordx4 v[{XP}:{XP+3}], v6, s[{SX}:{SX+3}], s61 offen')
    e(f'buffer_load_dwordx4 v[{XP+4}:{XP+7}], v6, s[{SX}:{SX+3}], s61 offen offset:16')
    for t in range(16):
        if t > Dp:
            e(f's_cbranch_vccnz L_nt{t}'); e(f's_waitcnt vmcnt({Dp})'); lab(f'L_nt{t}')
        e(f'buffer_load_dwordx4 v[{WT+4*t}:{WT+4*t+3}], v5, s[{SW}:{SW+3}], s60 offen {wpol}')
        if t < 15:
            if t & 3 == 3: e('s_add_u32 s60, s60, s63')
            else: e('s_addk_i32 s60, 0x2000')
    if qfirst:
        e('s_cbranch_vccz L_nb1'); e('s_barrier'); lab('L_nb1')
    if DIAG: e('v_writelane_b32 v1, s72, 0')
    stamp(10)
    if DIAG:
        e('v_writelane_b32 v1, s96, 12'); e('v_writelane_b32 v1, s98, 13'); e('v_writelane_b32 v1, s100, 14')
    basesel()
    e('s_mov_b32 s62, 0x03030303'); e('s_mov_b32 s63, 0x03030303')
    for k in range(4):
        e(f'v_cndmask_b32 v{SEL+2*k}, v62, v60, s[62:63]')
        e(f'v_cndmask_b32 v{SEL+2*k+1}, v62, v61, s[62:63]')
        if k < 3: e('s_lshl_b64 s[62:63], s[62:63], 2')
    e('v_and_b32 v3, 7, v0')
    e(f'v_mov_b32 v59, {L_FLAG}'); e('v_mov_b32 v60, 0xff')
    srd(SWS, 28, WSBYTES)
    e(f's_mul_i32 s68, s2, {STRIDE}'); e(f's_add_u32 s68, s68, {BASE}')
    e('s_cmp_lt_u32 s79, 2'); e('s_cbranch_scc1 L_finisher')
    for r in range(4): e(f'v_mov_b32 v{DD+r}, 0')
    e('s_mov_b32 s64, 0')
    e(f's_cmp_eq_u32 s3, {W3}'); e(f's_cselect_b32 s76, 1024, 0'); e('s_add_u32 s76, s76, s68'); e(f's_add_u32 s76, s76, {QBO}')
    c('q gather lane offset: two producers per load')
    e('v_lshrrev_b32 v8, 5, v0'); e('v_bfe_u32 v9, v0, 3, 2')
    e('v_lshlrev_b32 v12, 8, v9'); e('v_lshl_add_u32 v12, v3, 4, v12')
    e('v_lshlrev_b32 v11, 6, v9'); e('v_lshl_add_u32 v11, v3, 1, v11')
    PS = 1 if qmap else 8
    HS = 8 if qmap else 64
    PSA = 1 if qmapA else 8
    e(f's_mov_b32 s60, {PSA*STRIDE}'); e('v_mul_lo_u32 v10, v8, s60'); e('v_add_u32 v10, v10, v12')
    if qmapA: e('s_lshl_b32 s60, s52, 3')
    else: e('s_and_b32 s60, s2, 0xc7')
    e(f's_mul_i32 s74, s60, {STRIDE}'); e('s_lshl_b32 s61, s53, 7'); e('s_add_u32 s74, s74, s61'); e(f's_add_u32 s74, s74, {QAO+BASE}')
    for k in range(1, 4): e(f's_add_u32 s{84+k}, s74, {2*PSA*k*STRIDE}')
    e('s_waitcnt lgkmcnt(0)')
    tags()
    e('s_waitcnt vmcnt(0)')
    stamp(11)
    lab('L_projmm')
    c('D[chunk][(b,i)] += sum_t W_t x delta(XP_t)')
    for t in range(16):
        r = RR + 4 * (t & 1)
        for k in range(4):
            e(f'v_perm_b32 v{r+k}, v{XP+(t>>1)}, v{XP+(t>>1)}, v{SEL+2*k+(t&1)}')
        if t > 0:
            tp = t - 1; rp = RR + 4 * (tp & 1)
            e(f'v_mfma_f32_16x16x32_bf16 v[{DD}:{DD+3}], v[{WT+4*tp}:{WT+4*tp+3}], v[{rp}:{rp+3}], v[{DD}:{DD+3}]')
    e('s_nop 0')
    e(f'v_mfma_f32_16x16x32_bf16 v[{DD}:{DD+3}], v[{WT+60}:{WT+63}], v[{RR+4}:{RR+7}], v[{DD}:{DD+3}]')
    e(f's_mov_b32 s60, {SPIN}')
    e(f's_cmp_eq_u32 s3, {W3}')
    e('s_nop 5')
    puttag(DD, 4, 60)
    e('s_cbranch_scc1 L_qa0')
    e(f'buffer_store_dwordx4 v[{DD}:{DD+3}], v14, s[{SWS}:{SWS+3}], s76 offen sc1')
    e('s_cmp_eq_u32 s64, 2'); e('s_cbranch_scc1 L_ret_fin')
    stamp(1)
    e('s_branch L_ret_qb')
    lab('L_qa0')
    e(f'buffer_store_dwordx4 v[{DD}:{DD+3}], v14, s[{SWS}:{SWS+3}], s76 offen {qapol}')
    stamp(1)
    c('q of branch A: gather the eight k-slices')
    lab('L_qa')
    if qslp: e(f's_sleep {qslp}')
    for k in range(4):
        e(f'buffer_load_dwordx4 v[{64+4*k}:{64+4*k+3}], v10, s[{SWS}:{SWS+3}], s{74 if k == 0 else 84+k} offen {qgpol}')
    e('s_sub_u32 s60, s60, 1'); e('s_cbranch_scc1 L_exit')
    for k in range(4):
        e(f's_waitcnt vmcnt({3-k})')
        untag(64 + 4 * k, 4, 8, first=(k == 0))
        if k > 0:
            for r in range(4): e(f'v_add_f32 v{64+r}, v{64+r}, v{64+4*k+r}')
    e('v_and_b32 v8, 0xff, v8'); e('v_cmp_ne_u32 vcc, 0, v8'); e('s_cbranch_vccnz L_qafail')
    e('v_permlane32_swap_b32 v64, v66'); e('v_permlane32_swap_b32 v65, v67')
    e('v_add_f32 v64, v64, v66'); e('v_add_f32 v65, v65, v67')
    e('v_and_b32 v8, 32, v0'); e('v_add_u32 v11, v11, v8')
    e('v_cvt_pk_bf16_f32 v64, v64, v65')
    e('v_mov_b32 v8, 1'); e('v_mov_b32 v9, s93')
    e(f'ds_write_b16 v11, v64 offset:{L_QA}'); e(f'ds_write_b16_d16_hi v11, v64 offset:{L_QA+16}')
    e('ds_write_b32 v59, v9 offset:16'); e('ds_write_b32 v59, v8 offset:12')
    stamp(2)
    c('write the slice through to memory for readers on other dies')
    waitlds('L_waitre', 4, WS * tRe)
    e(f'buffer_store_dwordx4 v[{DD}:{DD+3}], v14, s[{SWS}:{SWS+3}], s76 offen sc1')
    e('s_branch L_exit')
    lab('L_qafail')
    e(f's_cmp_eq_u32 s60, {SPIN-KF}'); e('s_cbranch_scc0 L_qa')
    e(f'buffer_store_dwordx4 v[{DD}:{DD+3}], v14, s[{SWS}:{SWS+3}], s76 offen sc1')
    e('s_branch L_qa')
    lab('L_stream')
    if DIAG: e('v_writelane_b32 v1, s72, 0')
    e('v_mov_b32 v13, v42')
    e('v_lshl_add_u32 v15, v9, 9, v10')
    e(f'v_add_u32 v38, {L_QA}, v10')
    e(f'v_lshl_add_u32 v39, v9, 8, v38'); e(f'v_add_u32 v39, {L_QB-L_QA}, v39')
    e('s_lshl_b32 s60, s3, 13'); e(f's_add_u32 s60, s60, {L_SA}')
    e(f'v_lshl_add_u32 v{SAVE}, v2, 4, s60')
    e(f'v_lshl_add_u32 v8, v2, 2, v9'); e(f's_add_u32 s60, s60, {L_SB-L_SA}')
    e(f'v_lshl_add_u32 v{SAVE+1}, v8, 4, s60')
    e(f'v_mov_b32 v{SAVE+3}, 0xff'); e(f'v_lshlrev_b32 v{SAVE+4}, 3, v0')
    basesel()
    e('s_mov_b32 s62, 0x33333333'); e('s_mov_b32 s63, 0x33333333')
    e('v_cndmask_b32 v34, v62, v60, s[62:63]'); e('v_cndmask_b32 v35, v62, v61, s[62:63]')
    e('v_cndmask_b32 v36, v60, v62, s[62:63]'); e('v_cndmask_b32 v37, v61, v62, s[62:63]')
    e('v_mov_b32 v41, 1')
    e(f's_mov_b32 s59, 0x{f32(128**-0.5*1.4426950408889634):08x}')
    srd(SWS, 28, 0)
    e(f's_mul_i32 s68, s2, {STRIDE}'); e(f's_mul_i32 s60, s3, {RA}'); e('s_add_u32 s68, s68, s60')
    e('s_mov_b32 s82, 0')
    c('pass 0: K of A')
    e(f's_mov_b32 s56, {NP_A}'); e('s_mov_b32 s57, 0'); e(f's_mov_b32 s69, {deepT}')
    e(f'v_mov_b32 v11, v{SAVE}'); e('s_mov_b32 s66, 64'); e('s_mov_b32 s62, 0x00010001'); e('s_mov_b32 s63, 0x00010001')
    e(f'v_mov_b32 v10, 0x{f32(-3.0e38):08x}')
    ringload(min(16, Dr + 1), 16)
    stamp(10)
    e(f's_mov_b32 s60, {SPIN*4}')
    lab('L_waitqa')
    e('ds_read_b32 v4, v40 offset:12'); e('ds_read_b32 v5, v40 offset:16'); e(f'ds_read_b128 v[{QQ}:{QQ+3}], v38')
    e('s_waitcnt lgkmcnt(0)'); e('v_readfirstlane_b32 s61, v4'); e('v_readfirstlane_b32 s93, v5')
    e('s_sub_u32 s60, s60, 1'); e('s_cbranch_scc1 L_exit')
    e('s_cmp_eq_u32 s61, 0'); e('s_cbranch_scc1 L_waitqa')
    tags()
    stamp(2)
    nthr = [0]
    anydeep = deep or deepT
    def thr():
        if anydeep:
            nthr[0] += 1
            e(f's_cbranch_scc1 L_thr{nthr[0]}'); e(f's_waitcnt vmcnt({VM})'); lab(f'L_thr{nthr[0]}'); e(f's_waitcnt vmcnt({D2})')
        else:
            e(f's_waitcnt vmcnt({VM})')
    def looptop(x):
        lab(f'L_loop{x}')
        if DIAG >= 2:
            e('s_memrealtime s[70:71]'); e('s_and_b32 m0, s82, 63'); e('s_cmp_lt_u32 s82, 64'); e('s_waitcnt lgkmcnt(0)')
            e(f's_cbranch_scc0 L_st2{x}'); e('v_writelane_b32 v3, s70, m0'); e(f's_branch L_st3{x}')
            lab(f'L_st2{x}'); e('v_writelane_b32 v43, s70, m0'); lab(f'L_st3{x}'); e('s_add_u32 s82, s82, 1')
        e('s_mov_b64 exec, 1'); e('ds_add_u32 v40, v41 offset:4'); e('s_mov_b64 exec, -1')
        e('s_cmp_eq_u32 s56, 1'); e(f's_cbranch_scc1 L_switch{x}')
        lab(f'L_body{x}')
    looptop('K')
    for t in range(4):
        K = RING + 16 * t
        if anydeep: e('s_cmp_le_u32 s56, s69')
        for j in range(4):
            thr()
            e(f'v_mfma_f32_16x16x32_bf16 v[{QD+4*j}:{QD+4*j+3}], v[{K+4*j}:{K+4*j+3}], v[{QQ}:{QQ+3}], 0')
            load(t, j)
        adv(t)
        e('s_nop 1')
        S = 4 if t % 2 == 0 else 16
        for k in range(4):
            for j in range(4):
                if k == 0: e(f'v_mov_b32_dpp v{S+j}, v{QD+4*j} quad_perm:[0,0,0,0] row_mask:0xf bank_mask:0xf')
                else: e(f'v_add_f32_dpp v{S+j}, v{QD+4*j+k}, v{S+j} quad_perm:[{k},{k},{k},{k}] row_mask:0xf bank_mask:0xf')
        e(f'v_max3_f32 v10, v10, v{S}, v{S+1}'); e(f'v_max3_f32 v10, v10, v{S+2}, v{S+3}')
        e('s_mov_b64 exec, s[62:63]'); e(f'ds_write_b128 v11, v[{S}:{S+3}]'); e('s_mov_b64 exec, -1')
        e('v_add_u32 v11, s66, v11')
    e('s_sub_u32 s56, s56, 1'); e('s_cmp_lg_u32 s56, 0'); e('s_cbranch_scc1 L_loopK')
    c('end of a K pass: exact maximum of the scores of this wave')
    e('v_mov_b32 v9, v10'); e('s_nop 1'); e('v_permlane32_swap_b32 v10, v9'); e('v_max_f32 v10, v10, v9')
    e('v_mov_b32 v9, v10'); e('s_nop 1'); e('v_permlane16_swap_b32 v10, v9'); e('v_max_f32 v10, v10, v9')
    e('s_cmp_eq_u32 s57, 0'); e('s_cbranch_scc0 L_startVB')
    e(f'v_mov_b32 v{SAVE+2}, v10')
    e(f's_mov_b32 s60, {SPIN*4}')
    lab('L_waitqb')
    e('ds_read_b32 v8, v40'); e('s_waitcnt lgkmcnt(0)'); e('v_readfirstlane_b32 s67, v8')
    e('s_sub_u32 s60, s60, 1'); e('s_cbranch_scc1 L_exit')
    if not noserv:
        e('s_cmp_eq_u32 s67, 0'); e('s_cbranch_scc1 L_waitqb')
    e(f'ds_read_b128 v[{QQ}:{QQ+3}], v39')
    e(f's_mov_b32 s56, {NP_B}'); e('s_mov_b32 s57, 1')
    e(f'v_mov_b32 v11, v{SAVE+1}'); e('s_movk_i32 s66, 0x100'); e('s_mov_b32 s62, 0x11111111'); e('s_mov_b32 s63, 0x11111111')
    e(f'v_mov_b32 v10, 0x{f32(-3.0e38):08x}')
    e('s_waitcnt lgkmcnt(0)')
    stamp(3)
    e('s_branch L_loopK')
    def switch(ptr, lg, vreg, body):
        e(f's_lshl_b32 s60, s65, {lg}')
        srd(SL, ptr, 1 << lg, 's60')
        e(f's_mov_b32 s55, {(1<<lg)-1}'); e('s_and_b32 s54, s58, s55')
        e(f'v_mov_b32 v42, v{vreg}')
        e(f's_branch {body}')
    lab('L_switchK')
    e('s_cmp_eq_u32 s57, 0'); e('s_cbranch_scc0 L_sw1')
    switch(16, 18, 13, 'L_bodyK')
    lab('L_sw1')
    switch(18, 18, 14, 'L_bodyK')
    lab('L_switchV')
    e('s_cmp_eq_u32 s57, 2'); e('s_cbranch_scc0 L_sw3')
    switch(8, 20, 14, 'L_bodyV')
    lab('L_sw3')
    e(f's_mov_b32 s{SL+2}, 0'); e(f's_mov_b32 s{SWS+2}, {WSBYTES}')
    e('s_branch L_bodyV')
    lab('L_startVB')
    e(f's_mov_b32 s56, {NP_B}'); e('s_mov_b32 s57, 2')
    e(f'v_mov_b32 v38, v{SAVE+1}')
    lab('L_startV')
    c('V pass: scores at v38 (stride s66), maximum v10')
    e(f'ds_read_b128 v[{QD}:{QD+3}], v38'); e('v_add_u32 v38, s66, v38')
    e('v_mul_f32 v11, s59, v10'); e('v_sub_f32 v11, 0, v11')
    e('v_mov_b32 v12, 0')
    for r in range(8): e(f'v_mov_b32 v{16+r}, 0')
    if pad and padidx == 5:
        e('s_memrealtime s[98:99]'); e('s_waitcnt lgkmcnt(0)')
    if DIAG:
        e('s_memrealtime s[70:71]'); e('s_add_u32 s60, s57, 2'); e('s_mov_b32 m0, s60'); e('s_waitcnt lgkmcnt(0)'); e('v_writelane_b32 v1, s70, m0')
    looptop('V')
    for t in range(4):
        V = RING + 16 * t
        if anydeep: e('s_cmp_le_u32 s56, s69')
        e('s_waitcnt lgkmcnt(0)')
        for r in range(4): e(f'v_fma_f32 v{4+r}, v{QD+r}, s59, v11')
        e(f'ds_read_b128 v[{QD}:{QD+3}], v38'); e('v_add_u32 v38, s66, v38')
        for r in range(4): e(f'v_exp_f32 v{4+r}, v{4+r}')
        e('s_nop 0')
        e('v_cvt_pk_bf16_f32 v24, v4, v5'); e('v_cvt_pk_bf16_f32 v25, v6, v7')
        e('v_add_f32 v8, v4, v5'); e('v_add_f32 v9, v6, v7')
        for r in range(4):
            e(f'v_perm_b32 v{26+2*r}, v{24+(r>>1)}, v{24+(r>>1)}, v{34+(r&1)}')
            e(f'v_perm_b32 v{27+2*r}, v{24+(r>>1)}, v{24+(r>>1)}, v{36+(r&1)}')
        e('v_add_f32 v8, v8, v9'); e('v_add_f32 v12, v12, v8')
        for r in range(4):
            thr()
            e(f'v_mfma_f32_16x16x16_bf16 v[16:19], v[{V+4*r}:{V+4*r+1}], v[{26+2*r}:{27+2*r}], v[16:19]')
            e(f'v_mfma_f32_16x16x16_bf16 v[20:23], v[{V+4*r+2}:{V+4*r+3}], v[{26+2*r}:{27+2*r}], v[20:23]')
            load(t, r)
        adv(t)
    e('s_sub_u32 s56, s56, 1'); e('s_cmp_lg_u32 s56, 0'); e('s_cbranch_scc1 L_loopV')
    c('reduce l, publish the A partial (after the B pass the stores are dropped: zero-size descriptor)')
    e('v_mov_b32 v9, v12'); e('v_mul_f32 v4, s59, v10'); e('v_mov_b32 v6, s94'); e('v_permlane32_swap_b32 v12, v9'); e('v_add_f32 v12, v12, v9')
    e('v_mov_b32 v9, v12'); e('v_mov_b32 v7, s95')
    for k in range(8): e(f'v_bfi_b32 v{24+k}, v{SAVE+3}, s{TG+(k&3)}, v{16+k}')
    e('v_permlane16_swap_b32 v12, v9'); e('v_add_f32 v5, v12, v9')
    e('s_cmp_eq_u32 s67, 2'); e('s_cbranch_scc0 L_pubslow')
    def pubA(p):
        e('s_mov_b32 exec_lo, 0x000f000f'); e('s_mov_b32 exec_hi, 0x000f000f')
        e(f'buffer_store_dwordx4 v[24:27], v15, s[{SWS}:{SWS+3}], s68 offen offset:{BASE+128} {p}')
        e(f'buffer_store_dwordx4 v[28:31], v15, s[{SWS}:{SWS+3}], s68 offen offset:{BASE+384} {p}')
        e('s_mov_b64 exec, 0x5555')
        e(f'buffer_store_dwordx4 v[4:7], v{SAVE+4}, s[{SWS}:{SWS+3}], s68 offen offset:{BASE} {p}')
    pubA('')
    lab('L_pubdone')
    e('s_cmp_eq_u32 s57, 3'); e('s_cbranch_scc1 L_exit')
    e('s_mov_b64 exec, -1')
    c('hand the B state to the B finisher through LDS')
    e('s_mul_i32 s60, s3, 2560'); e('v_add_u32 v8, s60, v14'); e(f'v_add_u32 v9, s60, v{SAVE+4}')
    e('ds_write_b128 v8, v[16:19]'); e('ds_write_b128 v8, v[20:23] offset:1024'); e('ds_write_b64 v9, v[4:5] offset:2048')
    e('s_waitcnt lgkmcnt(0)')
    e('s_mov_b64 exec, 1'); e('ds_add_u32 v40, v41 offset:8'); e('s_mov_b64 exec, -1')
    e(f's_mov_b32 s56, {NP_A}'); e('s_mov_b32 s57, 3'); e(f's_mov_b32 s69, {deep}'); e('s_mov_b32 s66, 64')
    e(f'v_mov_b32 v38, v{SAVE}'); e(f'v_mov_b32 v10, v{SAVE+2}')
    e('s_branch L_startV')
    lab('L_pubslow')
    pubA('sc1')
    e('s_branch L_pubdone')
    lab('L_ret_qb')
    if noserv: e('s_branch L_exit')
    c('publish the die id of this workgroup')
    e('s_getreg_b32 s67, hwreg(HW_REG_XCC_ID, 0, 4)')
    e('v_mov_b32 v44, s67'); e('v_mov_b32 v45, s67'); e('v_mov_b32 v46, s94'); e('v_mov_b32 v47, s95')
    e(f's_add_u32 s60, s68, {IDO}')
    e('s_mov_b64 exec, 0xff')
    e(f'buffer_store_dwordx4 v[44:47], v14, s[{SWS}:{SWS+3}], s60 offen sc1')
    e('s_mov_b64 exec, -1')
    e(f'v_and_b32 v8, 31, v0'); e(f's_mov_b32 s60, {8*STRIDE}'); e('v_mul_lo_u32 v13, v8, s60')
    e(f's_mul_i32 s75, s30, {STRIDE}'); e(f's_add_u32 s75, s75, {IDO+BASE}')
    waitlds('L_waitq', 4, WS * (NP_A - tQ))
    e('v_lshrrev_b32 v8, 5, v0'); e(f's_mov_b32 s60, {HS*STRIDE}'); e('v_mul_lo_u32 v10, v8, s60'); e('v_add_u32 v10, v10, v12')
    e('v_lshl_add_u32 v11, v8, 8, v11')
    e(f's_mov_b32 s62, {SPIN}')
    e('s_branch L_qg1')
    lab('L_qg')
    e('s_sleep 32')
    lab('L_qg1')
    e(f's_mul_i32 s60, s30, {STRIDE*(32 if qmap else 1)}'); e('s_lshl_b32 s61, s53, 7'); e('s_add_u32 s60, s60, s61'); e(f's_add_u32 s60, s60, {QBO+BASE}')
    for a in range(2):
        for p in range(8):
            n = a * 8 + p
            e(f'buffer_load_dwordx4 v[{64+4*n}:{64+4*n+3}], v10, s[{SWS}:{SWS+3}], s60 offen sc1')
            if p < 7: e(f's_add_u32 s60, s60, {PS*STRIDE}')
        if a == 0: e(f's_add_u32 s60, s60, {(2*HS-7*PS)*STRIDE}')
    e(f'buffer_load_dwordx4 v[44:47], v13, s[{SWS}:{SWS+3}], s75 offen sc1')
    e('s_sub_u32 s62, s62, 1'); e('s_cbranch_scc1 L_exit')
    e('s_waitcnt vmcnt(0)')
    untag(64, 64, 8)
    e('v_xor_b32 v46, s94, v46'); e('v_xor_b32 v47, s95, v47'); e('v_or_b32 v46, v46, v47')
    e('v_and_or_b32 v8, v8, v60, v46'); e('v_cmp_ne_u32 vcc, 0, v8'); e('s_cbranch_vccnz L_qg')
    c('flag value 2: all 32 workgroups of the group share this die, 1: they do not')
    e('v_cmp_ne_u32 vcc, s67, v44'); e('s_cmp_eq_u64 vcc, 0'); e(f's_cselect_b32 s67, {2 if (local and not forceslow) else 1}, 1')
    for a in range(2):
        for p in range(1, 8):
            for r in range(4): e(f'v_add_f32 v{64+32*a+r}, v{64+32*a+r}, v{64+32*a+4*p+r}')
        for r in range(4):
            e(f'v_cvt_pk_bf16_f32 v{64+32*a+r}, v{64+32*a+r}, v{64+32*a+r}')
        for r in range(4):
            e(f'ds_write_b16 v11, v{64+32*a+r} offset:{L_QB + 512*a + 16*r}')
    e('v_mov_b32 v8, s67')
    e('ds_write_b32 v59, v8')
    stamp(4)
    e('s_branch L_exit')
    lab('L_finisher')
    if nofin or noserv: e('s_branch L_exit')
    if prio: e(f's_setprio {prio}')
    c('parameters: s74 record base (ML), s84..87 O offsets, s76 own Y, s80 Y gather, s77 out offset, s78 n0 stride, s79 is-B')
    e(f's_lshl_b32 s76, s79, 10'); e('s_mov_b32 s77, s76'); e(f's_add_u32 s76, s76, {YA}')
    e('s_cmp_eq_u32 s79, 0'); e('s_cbranch_scc0 L_parB')
    e('s_and_b32 s60, s2, 0xc7'); e(f's_mul_i32 s74, s60, {STRIDE}'); e(f's_add_u32 s74, s74, {BASE}'); e('s_add_u32 s75, s74, 128'); e(f's_mov_b32 s78, {RA}')
    e('s_branch L_par')
    lab('L_parB')
    e(f's_mul_i32 s74, s30, {STRIDE}'); e(f's_add_u32 s74, s74, {OB+BASE}'); e('s_lshr_b32 s60, s31, 3')
    e('s_lshl_b32 s61, s60, 9'); e('s_add_u32 s75, s74, s61'); e('s_add_u32 s75, s75, 128')
    e('s_lshl_b32 s61, s60, 5'); e('s_add_u32 s74, s74, s61'); e(f's_mov_b32 s78, {64*STRIDE}')
    lab('L_par')
    e('s_lshl_b32 s60, s53, 8'); e('s_add_u32 s84, s75, s60')
    e('s_add_u32 s85, s84, s78'); e(f's_add_u32 s86, s84, {32*STRIDE}'); e('s_add_u32 s87, s86, s78')
    for k in range(4): e(f's_add_u32 s{88+k}, s{84+k}, {128*STRIDE}')
    e(f's_add_u32 s92, s74, {128*STRIDE}')
    e(f's_mov_b32 s60, {8*STRIDE}')
    e('v_mul_lo_u32 v15, v2, s60'); e('v_add_u32 v15, v15, v4')
    e('v_and_b32 v8, 3, v0'); e('v_xor_b32 v8, v8, v2'); e('v_lshl_add_u32 v8, v7, 2, v8'); e('v_mul_lo_u32 v13, v8, s60')
    e('v_bfe_u32 v8, v0, 2, 1'); e('v_mul_lo_u32 v8, v8, s78'); e('v_add_u32 v13, v13, v8')
    lgy = NY.bit_length() - 1
    NC = 256 // NY
    e(f'v_lshrrev_b32 v8, {lgy}, v0'); e('v_and_b32 v9, 7, v8'); e('v_lshrrev_b32 v8, 3, v8'); e('v_lshl_add_u32 v8, v8, 5, v9')
    e(f's_mov_b32 s60, {STRIDE}'); e('v_mul_lo_u32 v12, v8, s60')
    e(f'v_and_b32 v10, {NY-1}, v0'); e('v_lshl_add_u32 v12, v10, 4, v12')
    c('LDS scratch addresses: v57 write, v58 read')
    e('s_lshl_b32 s60, s79, 8'); e(f's_add_u32 s60, s60, {L_X}')
    e('v_lshrrev_b32 v8, 1, v2'); e('v_lshlrev_b32 v8, 7, v8'); e('v_and_b32 v9, 1, v2'); e('v_lshl_add_u32 v8, v9, 2, v8')
    e('v_lshrrev_b32 v9, 1, v4'); e('v_add3_u32 v57, v8, v9, s60')
    e('v_lshlrev_b32 v8, 7, v7'); e('v_lshl_add_u32 v8, v2, 5, v8'); e('v_add_u32 v58, s60, v8')
    c('consumer role: s81 = 0 when this workgroup reduces outputs of its branch')
    e(f's_lshr_b32 s81, s2, {8-lgy}')
    if NY > 1:
        e(f's_mul_i32 s60, s79, {NY//2}'); e('s_xor_b32 s81, s81, s60')
    e('s_and_b32 s61, s2, 3'); e(f's_mul_i32 s80, s61, {8*STRIDE}'); e('s_add_u32 s80, s80, s76'); e(f's_add_u32 s80, s80, {BASE}')
    e(f's_and_b32 s63, s2, {NC-1}'); e('s_lshr_b32 s63, s63, 2'); e(f's_lshl_b32 s63, s63, {lgy}')
    e('s_lshl_b32 s60, s63, 4'); e('s_add_u32 s80, s80, s60')
    e('s_lshl_b32 s61, s61, 8'); e('s_add_u32 s77, s77, s61')
    e('s_lshr_b32 s61, s63, 4'); e('s_lshl_b32 s61, s61, 6'); e('s_add_u32 s77, s77, s61')
    e('s_bfe_u32 s61, s63, 0x10003'); e('s_lshl_b32 s61, s61, 11'); e('s_add_u32 s77, s77, s61')
    e('s_and_b32 s61, s63, 7'); e('s_lshl_b32 s61, s61, 1'); e('s_add_u32 s77, s77, s61')
    e('v_and_b32 v8, 1, v2'); e('v_lshrrev_b32 v9, 1, v2'); e('v_lshl_add_u32 v8, v8, 1, v9'); e('v_lshlrev_b32 v11, 4, v8')
    e('v_lshl_add_u32 v11, v10, 1, v11')
    e('s_add_u32 s76, s76, s68')
    e('s_mov_b32 s64, 2')
    srd(SX, 24, 0)
    if dry:
        c('dry run of the tail code through zero-size descriptors (instruction cache warm-up)')
        e(f's_mov_b32 s{SWS+2}, 0'); e('s_mov_b32 s83, 1')
        for k in range(4): e(f's_mov_b32 s{TG+k}, 0')
        e('s_mov_b32 s94, 0'); e('s_mov_b32 s95, 0')
        e('s_branch L_fin')
    lab('L_real')
    e('s_mov_b64 exec, -1')
    e('s_mov_b32 s83, 0'); e(f's_mov_b32 s{SWS+2}, {WSBYTES}'); e(f's_mov_b32 s{SX+2}, 4096')
    waitlds('L_waittag', 12, 1)
    e('ds_read_b32 v8, v59 offset:16'); e('s_waitcnt lgkmcnt(0)'); e('v_readfirstlane_b32 s93, v8')
    tags()
    e('s_cmp_eq_u32 s79, 0'); e('s_cbranch_scc1 L_waitA')
    c('B finisher: merge the two B states, publish near the end')
    waitlds('L_waitB', 8, WS)
    BO = 128
    e('v_lshlrev_b32 v10, 3, v0')
    e('ds_read_b32 v53, v59')
    e(f'ds_read_b128 v[{BO}:{BO+3}], v14'); e(f'ds_read_b128 v[{BO+4}:{BO+7}], v14 offset:1024'); e('ds_read_b64 v[44:45], v10 offset:2048')
    e(f'ds_read_b128 v[{BO+8}:{BO+11}], v14 offset:2560'); e(f'ds_read_b128 v[{BO+12}:{BO+15}], v14 offset:3584'); e('ds_read_b64 v[46:47], v10 offset:4608')
    e('s_waitcnt lgkmcnt(0)')
    e('v_readfirstlane_b32 s67, v53')
    e('v_max_f32 v48, v44, v46'); e('v_sub_f32 v8, v44, v48'); e('v_sub_f32 v9, v46, v48'); e('v_exp_f32 v8, v8'); e('v_exp_f32 v9, v9'); e('s_nop 0')
    e('v_mul_f32 v49, v45, v8'); e('v_fmac_f32 v49, v47, v9'); e('v_mov_b32 v50, s94'); e('v_mov_b32 v51, s95')
    for r in range(8):
        e(f'v_mul_f32 v{BO+r}, v{BO+r}, v8'); e(f'v_fmac_f32 v{BO+r}, v{BO+8+r}, v9')
    puttag(BO, 8, 60)
    e('v_and_b32 v8, 3, v0'); e('v_lshl_add_u32 v8, v2, 2, v8'); e('v_lshlrev_b32 v8, 4, v8'); e('v_bfe_u32 v9, v0, 2, 2'); e('v_lshl_add_u32 v52, v9, 9, v8')
    stamp(3)
    waitlds('L_waitpub', 4, WS * (NIT - tPub))
    e(f's_add_u32 s60, s68, {OB}')
    def pubB(p):
        e(f'buffer_store_dwordx4 v[{BO}:{BO+3}], v52, s[{SWS}:{SWS+3}], s60 offen offset:128 {p}')
        e(f'buffer_store_dwordx4 v[{BO+4}:{BO+7}], v52, s[{SWS}:{SWS+3}], s60 offen offset:384 {p}')
        e('s_mov_b64 exec, 0x5555')
        e(f'buffer_store_dwordx4 v[48:51], v10, s[{SWS}:{SWS+3}], s60 offen {p}')
        e('s_mov_b64 exec, -1')
    e('s_cmp_eq_u32 s67, 2'); e('s_cbranch_scc1 L_pubBfast')
    pubB('sc1')
    e('s_branch L_pubBdone')
    lab('L_pubBfast')
    pubB('')
    lab('L_pubBdone')
    e('s_waitcnt vmcnt(0)')
    e('s_branch L_fin1')
    lab('L_waitA')
    waitlds('L_waitown', 4, WS * NIT)
    lab('L_fin1')
    stamp(5)
    lab('L_fin')
    O1 = 128; O2 = 144; M1 = 44; M2 = 160
    def gather(label, A, M, so, sm):
        e(f's_mov_b32 s60, {SPIN}')
        if gslp:
            e(f's_branch {label}a'); lab(label); e(f's_sleep {gslp}'); lab(label + 'a')
        else:
            lab(label)
        e(f'buffer_load_dwordx4 v[{M}:{M+3}], v13, s[{SWS}:{SWS+3}], s{sm} offen {pgpol}')
        for k in range(4): e(f'buffer_load_dwordx4 v[{A+4*k}:{A+4*k+3}], v15, s[{SWS}:{SWS+3}], s{so+k} offen {pgpol}')
        e('s_sub_u32 s60, s60, 1'); e('s_cbranch_scc1 L_exit')
        e('s_waitcnt vmcnt(4)')
        e(f'v_xor_b32 v9, s94, v{M+2}'); e(f'v_xor_b32 v10, s95, v{M+3}'); e('v_or_b32 v9, v9, v10')
        for k in range(4):
            e(f's_waitcnt vmcnt({3-k})')
            untag(A + 4 * k, 4, 8, first=(k == 0))
        e('v_and_or_b32 v8, v8, v60, v9')
        e('v_cmp_ne_u32 vcc, 0, v8')
        e(f's_cbranch_vccnz {label}')
    e('s_cmp_eq_u32 s79, 0'); e('s_cbranch_scc1 L_g0s')
    gather('L_g1', O2, M2, 88, 92)
    lab('L_g0s')
    for r in range(4): e(f'v_mov_b32 v{DD+r}, 0')
    gather('L_g0', O1, M1, 84, 74)
    stamp(6)
    DP = ['quad_perm:[1,0,3,2]', 'quad_perm:[2,3,0,1]', 'row_half_mirror']
    AC = 48
    e(f'v_mov_b32 v8, v{M1}')
    e('s_cmp_eq_u32 s79, 0'); e('s_cbranch_scc1 L_m1')
    e(f'v_max_f32 v8, v8, v{M2}')
    lab('L_m1')
    for d in DP:
        e('s_nop 1'); e(f'v_max_f32_dpp v8, v8, v8 {d} row_mask:0xf bank_mask:0xf')
    e(f'v_sub_f32 v9, v{M1}, v8'); e('v_exp_f32 v9, v9'); e('s_nop 0')
    e(f'v_mul_f32 v10, v{M1+1}, v9')
    e('s_cbranch_scc1 L_m2')
    e(f'v_sub_f32 v56, v{M2}, v8'); e('v_exp_f32 v56, v56'); e('s_nop 0'); e(f'v_fmac_f32 v10, v{M2+1}, v56')
    lab('L_m2')
    for d in DP:
        e('s_nop 1'); e(f'v_add_f32_dpp v10, v10, v10 {d} row_mask:0xf bank_mask:0xf')
    e('v_rcp_f32 v10, v10'); e('s_nop 0'); e('v_mul_f32 v9, v9, v10'); e('v_mul_f32 v56, v56, v10'); e('s_nop 0')
    for b in range(2):
        for k in range(4): e(f'v_mul_f32_dpp v{AC+4*b+k}, v9, v{O1+8*b+k} row_newbcast:{8*b} row_mask:0xf bank_mask:0xf')
    for b in range(2):
        for k in range(4): e(f'v_fmac_f32_dpp v{AC+4*b+k}, v9, v{O1+8*b+4+k} row_newbcast:{8*b+4} row_mask:0xf bank_mask:0xf')
    e('s_cbranch_scc1 L_m3')
    for n0 in range(2):
        for b in range(2):
            for k in range(4): e(f'v_fmac_f32_dpp v{AC+4*b+k}, v56, v{O2+8*b+4*n0+k} row_newbcast:{8*b+4*n0} row_mask:0xf bank_mask:0xf')
    lab('L_m3')
    for k in range(4): e(f'v_permlane32_swap_b32 v{AC+k}, v{AC+4+k}')
    for k in range(4): e(f'v_add_f32 v{AC+k}, v{AC+k}, v{AC+4+k}')
    e('s_nop 0')
    e(f'v_permlane16_swap_b32 v{AC}, v{AC+2}'); e(f'v_permlane16_swap_b32 v{AC+1}, v{AC+3}')
    e(f'v_add_f32 v{AC}, v{AC}, v{AC+2}'); e(f'v_add_f32 v{AC+1}, v{AC+1}, v{AC+3}')
    e(f'v_cvt_pk_bf16_f32 v8, v{AC}, v{AC+1}')
    e('ds_write_b32 v57, v8')
    e(f'ds_read_b128 v[{XP}:{XP+3}], v58'); e(f'ds_read_b128 v[{XP+4}:{XP+7}], v58 offset:16')
    e('s_waitcnt lgkmcnt(0)')
    e('s_branch L_projmm')
    lab('L_ret_fin')
    stamp(7)
    e('s_cmp_lg_u32 s81, 0'); e('s_cbranch_scc1 L_done')
    if yslp:
        e('s_branch L_ya'); lab('L_y'); e(f's_sleep {yslp}'); lab('L_ya')
    else:
        lab('L_y')
    e('s_mov_b32 s61, s80')
    for n in range(NY):
        e(f'buffer_load_dwordx4 v[{O1+4*n}:{O1+4*n+3}], v12, s[{SWS}:{SWS+3}], s61 offen sc1')
        if n < NY - 1: e(f's_add_u32 s61, s61, {(256//NY)*STRIDE}')
    e('s_sub_u32 s60, s60, 1'); e('s_cbranch_scc1 L_exit')
    for n in range(NY):
        e(f's_waitcnt vmcnt({NY-1-n})')
        untag(O1 + 4 * n, 4, 8, first=(n == 0))
        if n > 0:
            for k in range(4): e(f'v_add_f32 v{O1+k}, v{O1+k}, v{O1+4*n+k}')
    e('v_and_b32 v8, 0xff, v8'); e('v_cmp_ne_u32 vcc, 0, v8'); e('s_cbranch_vccnz L_y')
    stamp(8)
    e(f'v_permlane32_swap_b32 v{O1}, v{O1+1}'); e(f'v_permlane32_swap_b32 v{O1+2}, v{O1+3}')
    e(f'v_add_f32 v{O1}, v{O1}, v{O1+1}'); e(f'v_add_f32 v{O1+2}, v{O1+2}, v{O1+3}'); e('s_nop 1')
    e(f'v_permlane16_swap_b32 v{O1}, v{O1+2}'); e(f'v_add_f32 v8, v{O1}, v{O1+2}')
    for d in (8, 4, 2, 1):
        if d >= NY:
            e('s_nop 1'); e(f'v_add_f32_dpp v8, v8, v8 row_ror:{d} row_mask:0xf bank_mask:0xf')
    e('v_cvt_pk_bf16_f32 v8, v8, v8')
    m = ((1 << NY) - 1) * 0x00010001
    e(f's_mov_b32 exec_lo, 0x{m:08x}'); e(f's_mov_b32 exec_hi, 0x{m:08x}')
    e(f'buffer_store_short v8, v11, s[{SX}:{SX+3}], s77 offen')
    c('every workgroup has read the tag word by now: leave this launch\'s tag behind')
    e('s_or_b32 s60, s2, s79'); e('s_cbranch_scc1 L_done')
    e('s_mov_b64 exec, 1'); e('v_mov_b32 v9, s94'); e('v_mov_b32 v10, 0')
    e(f'buffer_store_dword v9, v10, s[{SWS}:{SWS+3}], 0 offen')
    lab('L_done')
    if dry:
        e('s_cmp_eq_u32 s83, 1'); e('s_cbranch_scc1 L_real')
    lab('L_exit')
    if pad:
        if padidx == 9:
            e('s_memrealtime s[98:99]'); e('s_waitcnt lgkmcnt(0)')
        if padwg >= 0:
            e(f's_cmp_lg_u32 s2, {padwg}'); e('s_cbranch_scc1 L_end')
        e(f's_cmp_lg_u32 s3, {padw}'); e('s_cbranch_scc1 L_end')
        if padidx >= 0:
            e('s_sub_u32 s98, s98, s72'); e(f's_mul_i32 s98, s98, {padscale}'); e('s_min_u32 s98, s98, 100000')
        else:
            e('s_mov_b32 s98, 0')
        e(f's_add_u32 s98, s98, {pad*100}')
        lab('L_pad')
        e('s_sleep 1'); e('s_memrealtime s[100:101]'); e('s_waitcnt lgkmcnt(0)'); e('s_sub_u32 s100, s100, s72')
        e('s_cmp_lt_u32 s100, s98'); e('s_cbranch_scc1 L_pad')
    if DIAG:
        e('s_mov_b64 exec, -1')
        e('s_waitcnt vmcnt(0)')
        stamp(9)
        e('s_add_u32 s48, s28, 0x4000000'); e('s_addc_u32 s49, s29, 0'); e('s_mov_b32 s50, 0x100000'); e('s_mov_b32 s51, 0x20000')
        e('s_lshl_b32 s60, s2, 4'); e('s_add_u32 s60, s60, s3'); e('s_lshl_b32 s60, s60, 7')
        e('v_lshlrev_b32 v2, 2, v0')
        e('s_mov_b64 exec, 0xffffffff')
        e(f'buffer_store_dword v1, v2, s[{SWS}:{SWS+3}], s60 offen')
        if DIAG >= 2:
            e(f's_cmp_ge_u32 s3, {WS}'); e('s_cbranch_scc1 L_end')
            e('s_mov_b64 exec, -1'); e('s_mov_b32 s50, 0x400000'); e('s_lshl_b32 s60, s60, 2'); e('s_add_u32 s60, s60, 0x100000')
            e(f'buffer_store_dword v3, v2, s[{SWS}:{SWS+3}], s60 offen')
            e(f'buffer_store_dword v43, v2, s[{SWS}:{SWS+3}], s60 offen offset:256')
    lab('L_end')
    e('s_endpgm')
    L.append('.section .rodata,"a"'); L.append('.p2align 6'); L.append(f'.amdhsa_kernel {NAME}')
    L.append('  .amdhsa_next_free_vgpr 168'); L.append('  .amdhsa_next_free_sgpr %d' % (102 if (DIAG or pad) else 96)); L.append('  .amdhsa_accum_offset 168')
    L.append('  .amdhsa_group_segment_fixed_size 0'); L.append('  .amdhsa_kernarg_size 104'); L.append('  .amdhsa_user_sgpr_count 2')
    L.append('  .amdhsa_user_sgpr_kernarg_segment_ptr 1'); L.append('  .amdhsa_system_sgpr_workgroup_id_x 1'); L.append('.end_amdhsa_kernel')
    return '\n'.join(L) + '\n'

if __name__ == '__main__':
    kw = {}
    for a in sys.argv[2:]:
        k, v = a.split('=')
        kw[k] = v if k.endswith('pol') else int(v)
    open(sys.argv[1], 'w').write(gen(**kw))
```

```python
import sys, struct, os
NAME = 'concat_heads__mha_block_cached__gqa_block_cached__decode_kernel'
def f32(x): return struct.unpack('<I', struct.pack('<f', x))[0]
_ref = 'concat_heads__mha_block_cached__gqa_block_cached__decode.s.ref'
HEADER = open(_ref).read().split('; Override launch')[0] if os.path.exists(_ref) else ''

def gen(D=9, mE=0x33, mO=0, mEV=-1, mOV=-1, skewB=65536, ctl=1, thU=48, thD=48, D0=0, cslp=0, cpol='sc1', ctlend=2, gD=3, dryV=1, skew=16384, T=8192, DIAG=0, pol='nt', wqpol='nt', wpol='nt', tPub=0, prio=3, rot=1, noserv=0, slp=4,
        dry=1, WS=2, D2=0, lastdeep=0, tQ=14, tWo=1, tW4=4, NY=4, gslp=0, yslp=0, nofin=0, NB=2, Dr=3, Dp=3, qslp=3, qmap=1, qfirst=1, qmapA=0, qapol='', qgpol='sc1', pgpol='sc1', local=1, tRe=1, KF=6, forceslow=0, pad=0, padw=0, padidx=-1, padscale=1, padwg=-1):
    assert WS == 2
    NW = 6
    BASE = 128
    RA = 640; OB = 2 * RA; YA = OB + 128 + 2048; YB = YA + 1024; QBO = YB + 1024; QAO = QBO + 1024; IDO = QAO + 1024; STRIDE = IDO + 128
    PGO = BASE + 256 * STRIDE; WSBYTES = PGO + 8 * 128
    L_QA = 8192; L_QB = L_QA + 256; L_FLAG = L_QB + 1024; L_X = L_FLAG + 64
    L_SA = 10240; L_SB = L_SA + 16384; LDS = L_SB + 16384 + 1024
    NP_A = 32; NP_B = 8; NIT = 80
    VM = min(15, D)
    if not D2: D2 = D + 1
    if not D0: D0 = D - 1
    if mEV < 0: mEV = mE
    if mOV < 0: mOV = mO
    if skewB < 0: skewB = skew
    SPIN = 1 << 18
    W3, W0, W1, W2 = 2, 3, 4, 5
    L = []
    def e(s): L.append('    ' + s)
    def lab(s): L.append(s + ':')
    def c(s): L.append('    ; ' + s)
    L.append(HEADER.rstrip('\n'))
    L.append(f'; @launch grid=(256,1,1) block=({NW*64},1,1) lds={LDS}')
    L.append('.amdgcn_target "amdgcn-amd-amdhsa--gfx950"')
    L.append('.text'); L.append(f'.globl {NAME}'); L.append('.p2align 8'); L.append(f'.type {NAME},@function')
    lab(NAME)
    def stamp(idx):
        if pad and idx == padidx:
            e('s_memrealtime s[98:99]'); e('s_waitcnt lgkmcnt(0)')
        if not DIAG: return
        e('s_memrealtime s[70:71]'); e('s_waitcnt lgkmcnt(0)'); e(f'v_writelane_b32 v1, s70, {idx}')
    def srd(d, lo, size, off=None):
        if off is None:
            e(f's_mov_b32 s{d}, s{lo}'); e(f's_mov_b32 s{d+1}, s{lo+1}')
        else:
            e(f's_add_u32 s{d}, s{lo}, {off}'); e(f's_addc_u32 s{d+1}, s{lo+1}, 0')
        e(f's_mov_b32 s{d+2}, {size}'); e(f's_mov_b32 s{d+3}, 0x20000')
    def basesel():
        e('s_mov_b32 s62, 0xaaaaaaaa'); e('s_mov_b32 s63, 0xaaaaaaaa')
        e('v_mov_b32 v8, 0x0c0c0100'); e('v_mov_b32 v9, 0x01000c0c')
        e('v_cndmask_b32 v60, v8, v9, s[62:63]')
        e('v_mov_b32 v8, 0x0c0c0302'); e('v_mov_b32 v9, 0x03020c0c')
        e('v_cndmask_b32 v61, v8, v9, s[62:63]')
        e('v_mov_b32 v62, 0x0c0c0c0c')
    TG = 36
    def tags():
        e('s_add_u32 s94, s93, 0x01010101'); e('s_not_b32 s95, s94')
        e(f's_and_b32 s{TG}, s94, 0xff'); e(f's_bfe_u32 s{TG+1}, s94, 0x80008'); e(f's_bfe_u32 s{TG+2}, s94, 0x80010'); e(f's_lshr_b32 s{TG+3}, s94, 24')
    def puttag(r, n, vm):
        for k in range(n): e(f'v_bfi_b32 v{r+k}, v{vm}, s{TG+(k&3)}, v{r+k}')
    def untag(r, n, acc, first=True):
        for k in range(n): e(f'v_xor_b32 v{r+k}, s{TG+(k&3)}, v{r+k}')
        k = 0
        if first:
            e(f'v_or3_b32 v{acc}, v{r}, v{r+1}, v{r+2}'); k = 3
        while k + 1 < n:
            e(f'v_or3_b32 v{acc}, v{acc}, v{r+k}, v{r+k+1}'); k += 2
        if k < n: e(f'v_or_b32 v{acc}, v{acc}, v{r+k}')
    SL, SW, SX, SWS = 32, 40, 44, 48
    RING = 64; WT = 64; XP = 16; SEL = 24; RR = 32; DD = 40; QQ = 44; QD = 48; SAVE = 128
    def waitlds(label, off, target):
        e(f's_mov_b32 s60, {SPIN*4}')
        lab(label)
        e(f's_sleep {slp}')
        if off == 4:
            target = target * 4 - 6
            e(f'ds_read_b64 v[8:9], v59 offset:24'); e('s_waitcnt lgkmcnt(0)'); e('v_add_u32 v8, v8, v9'); e('s_nop 0'); e('v_readfirstlane_b32 s61, v8')
        else:
            e(f'ds_read_b32 v8, v59 offset:{off}'); e('s_waitcnt lgkmcnt(0)'); e('v_readfirstlane_b32 s61, v8')
        e('s_sub_u32 s60, s60, 1'); e('s_cbranch_scc1 L_exit')
        e(f's_cmp_lt_u32 s61, {target}'); e(f's_cbranch_scc1 {label}')
    e('s_cmp_ge_u32 s2, 256'); e('s_cbranch_scc1 L_end')
    e('s_load_dwordx16 s[4:19], s[0:1], 0')
    e('s_load_dwordx8 s[20:27], s[0:1], 64')
    e('s_load_dwordx2 s[28:29], s[0:1], 96')
    if DIAG or pad: e('s_memrealtime s[72:73]')
    e('v_lshrrev_b32 v1, 6, v0')
    e('v_and_b32 v0, 63, v0')
    e('v_readfirstlane_b32 s3, v1')
    e('s_and_b32 s30, s2, 7')
    e('s_lshr_b32 s31, s2, 3')
    e('s_lshr_b32 s60, s31, 3')
    e('s_lshl_b32 s52, s30, 2')
    e('s_add_u32 s52, s52, s60')
    e('s_bfe_u32 s53, s31, 0x10002')
    e('v_lshrrev_b32 v2, 4, v0')
    e('v_lshlrev_b32 v14, 4, v0')
    if DIAG: e('v_mov_b32 v1, 0')
    e(f's_cmp_ge_u32 s3, {WS}')
    e('s_cbranch_scc1 L_svc_pro')
    c('streaming waves: first loads')
    e('s_lshl_b32 s60, s53, 5'); e('s_add_u32 s60, s60, s52'); e('s_lshl_b32 s60, s60, 2')
    e('s_and_b32 s62, s31, 3'); e('s_add_u32 s65, s60, s62')
    e('v_and_b32 v10, 3, v0'); e('v_bfe_u32 v9, v0, 2, 2')
    e('v_lshl_add_u32 v10, v2, 2, v10')
    e('v_lshlrev_b32 v10, 4, v10')
    e('v_lshl_add_u32 v42, v9, 8, v10')
    e(f's_mul_i32 s58, s65, {skew}')
    e(f's_mul_i32 s60, s3, {T}')
    e('s_add_u32 s58, s58, s60')
    e(f's_mov_b32 s55, {(1<<20)-1}')
    e('s_and_b32 s54, s58, s55')
    e('s_lshl_b32 s60, s65, 20')
    e(f'v_mov_b32 v40, {L_FLAG}'); e('v_mov_b32 v4, 0'); e('v_mov_b32 v5, 0')
    e('ds_write_b64 v40, v[4:5]'); e('ds_write_b64 v40, v[4:5] offset:8'); e('ds_write_b64 v40, v[4:5] offset:24'); e('ds_write_b64 v40, v[4:5] offset:32')
    e('s_waitcnt lgkmcnt(0)')
    srd(SL, 6, 1 << 20, 's60')
    e('s_barrier')
    def load(t, j): e(f'buffer_load_dwordx4 v[{RING+16*t+4*j}:{RING+16*t+4*j+3}], v42, s[{SL}:{SL+3}], s54 offen offset:{1024*j} {pol}')
    def adv(t):
        last = ((t + 1) * 4096) % T == 0
        e(f's_add_u32 s54, s54, {4096 + ((WS-1)*T if last else 0)}'); e('s_and_b32 s54, s54, s55')
    def ringload(n0, n1):
        for n in range(n0, n1):
            if n > Dr: e(f's_waitcnt vmcnt({Dr})')
            load(n >> 2, n & 3)
            if n & 3 == 3: adv(n >> 2)
    ringload(0, min(16, Dr + 1))
    e('s_branch L_stream')
    lab('L_svc_pro')
    if DIAG: e('s_memrealtime s[96:97]')
    e('v_and_b32 v4, 0xf0, v14')
    e('v_bfe_u32 v7, v0, 3, 1')
    e('v_lshlrev_b32 v6, 5, v2')
    e('v_lshl_add_u32 v6, v7, 10, v6')
    e('s_and_b32 s61, s31, 7')
    e(f's_cmp_eq_u32 s3, {W3}')
    e(f's_cselect_b32 s66, {"s30" if qmapA else "s61"}, {"s30" if qmap else "s61"}')
    e(f's_cselect_b32 s62, {"s31" if qmapA else "s52"}, {"s31" if qmap else "s52"}')
    e('s_lshl_b32 s60, s66, 19'); e('s_lshl_b32 s62, s62, 8'); e('s_add_u32 s60, s60, s62')
    e('s_lshl_b32 s61, s52, 17'); e('s_lshl_b32 s62, s53, 12'); e('s_add_u32 s61, s61, s62')
    e('s_and_b32 s62, s31, 3'); e('s_lshl_b32 s62, s62, 8'); e('s_add_u32 s61, s61, s62')
    e('s_movk_i32 s63, 0x2000')
    e(f's_sub_u32 s79, s3, {W0}'); e('s_cmp_lt_u32 s79, 2')
    e('s_cselect_b32 s60, s61, s60'); e('s_cselect_b32 s62, 15, 17'); e(f's_cselect_b32 s63, {1024-3*8192}, s63')
    e(f's_cselect_b32 s{SX+2}, 0, 2048')
    e('v_lshlrev_b32 v5, s62, v2'); e('v_add_u32 v5, v5, v4')
    e(f's_cmp_eq_u32 s3, {W3}'); e('s_cselect_b64 vcc, -1, 0')
    if not qfirst: e('s_barrier')
    e('s_waitcnt lgkmcnt(0)')
    if DIAG: e('s_memrealtime s[98:99]')
    e('s_load_dword s93, s[28:29], 0')
    e(f's_cselect_b32 s{SW}, s10, s20'); e(f's_cselect_b32 s{SW+1}, s11, s21')
    e(f's_cselect_b32 s{SX}, s4, s14'); e(f's_cselect_b32 s{SX+1}, s5, s15')
    if prio:
        e('s_cbranch_scc0 L_noprio'); e(f's_setprio {prio}'); lab('L_noprio')
    e(f's_cmp_eq_u32 s3, {W0}'); e(f's_cselect_b32 s{SW}, s12, s{SW}'); e(f's_cselect_b32 s{SW+1}, s13, s{SW+1}')
    e(f's_cmp_eq_u32 s3, {W1}'); e(f's_cselect_b32 s{SW}, s22, s{SW}'); e(f's_cselect_b32 s{SW+1}, s23, s{SW+1}')
    e(f's_mov_b32 s{SW+2}, {1<<22}'); e(f's_mov_b32 s{SW+3}, 0x20000'); e(f's_mov_b32 s{SX+3}, 0x20000')
    e('s_lshl_b32 s61, s66, 7')
    if qfirst:
        e('s_cbranch_vccnz L_nb0'); e('s_barrier'); lab('L_nb0')
    if DIAG: e('s_memrealtime s[100:101]')
    e(f'buffer_load_dwordx4 v[{XP}:{XP+3}], v6, s[{SX}:{SX+3}], s61 offen')
    e(f'buffer_load_dwordx4 v[{XP+4}:{XP+7}], v6, s[{SX}:{SX+3}], s61 offen offset:16')
    for t in range(16):
        if t > Dp:
            e(f's_cbranch_vccnz L_nt{t}'); e(f's_waitcnt vmcnt({Dp})'); lab(f'L_nt{t}')
        e(f'buffer_load_dwordx4 v[{WT+4*t}:{WT+4*t+3}], v5, s[{SW}:{SW+3}], s60 offen {wpol}')
        if t < 15:
            if t & 3 == 3: e('s_add_u32 s60, s60, s63')
            else: e('s_addk_i32 s60, 0x2000')
    if qfirst:
        e('s_cbranch_vccz L_nb1'); e('s_barrier'); lab('L_nb1')
    if DIAG: e('v_writelane_b32 v1, s72, 0')
    stamp(10)
    if DIAG:
        e('v_writelane_b32 v1, s96, 12'); e('v_writelane_b32 v1, s98, 13'); e('v_writelane_b32 v1, s100, 14')
    basesel()
    e('s_mov_b32 s62, 0x03030303'); e('s_mov_b32 s63, 0x03030303')
    for k in range(4):
        e(f'v_cndmask_b32 v{SEL+2*k}, v62, v60, s[62:63]')
        e(f'v_cndmask_b32 v{SEL+2*k+1}, v62, v61, s[62:63]')
        if k < 3: e('s_lshl_b64 s[62:63], s[62:63], 2')
    e('v_and_b32 v3, 7, v0')
    e(f'v_mov_b32 v59, {L_FLAG}'); e('v_mov_b32 v60, 0xff')
    srd(SWS, 28, WSBYTES)
    e(f's_mul_i32 s68, s2, {STRIDE}'); e(f's_add_u32 s68, s68, {BASE}')
    e('s_cmp_lt_u32 s79, 2'); e('s_cbranch_scc1 L_finisher')
    for r in range(4): e(f'v_mov_b32 v{DD+r}, 0')
    e('s_mov_b32 s64, 0')
    e(f's_cmp_eq_u32 s3, {W3}'); e(f's_cselect_b32 s76, 1024, 0'); e('s_add_u32 s76, s76, s68'); e(f's_add_u32 s76, s76, {QBO}')
    c('q gather lane offset: two producers per load')
    e('v_lshrrev_b32 v8, 5, v0'); e('v_bfe_u32 v9, v0, 3, 2')
    e('v_lshlrev_b32 v12, 8, v9'); e('v_lshl_add_u32 v12, v3, 4, v12')
    e('v_lshlrev_b32 v11, 6, v9'); e('v_lshl_add_u32 v11, v3, 1, v11')
    PS = 1 if qmap else 8
    HS = 8 if qmap else 64
    PSA = 1 if qmapA else 8
    e(f's_mov_b32 s60, {PSA*STRIDE}'); e('v_mul_lo_u32 v10, v8, s60'); e('v_add_u32 v10, v10, v12')
    if qmapA: e('s_lshl_b32 s60, s52, 3')
    else: e('s_and_b32 s60, s2, 0xc7')
    e(f's_mul_i32 s74, s60, {STRIDE}'); e('s_lshl_b32 s61, s53, 7'); e('s_add_u32 s74, s74, s61'); e(f's_add_u32 s74, s74, {QAO+BASE}')
    for k in range(1, 4): e(f's_add_u32 s{84+k}, s74, {2*PSA*k*STRIDE}')
    e('s_waitcnt lgkmcnt(0)')
    tags()
    e('s_waitcnt vmcnt(0)')
    stamp(11)
    lab('L_projmm')
    c('D[chunk][(b,i)] += sum_t W_t x delta(XP_t)')
    for t in range(16):
        r = RR + 4 * (t & 1)
        for k in range(4):
            e(f'v_perm_b32 v{r+k}, v{XP+(t>>1)}, v{XP+(t>>1)}, v{SEL+2*k+(t&1)}')
        if t > 0:
            tp = t - 1; rp = RR + 4 * (tp & 1)
            e(f'v_mfma_f32_16x16x32_bf16 v[{DD}:{DD+3}], v[{WT+4*tp}:{WT+4*tp+3}], v[{rp}:{rp+3}], v[{DD}:{DD+3}]')
    e('s_nop 0')
    e(f'v_mfma_f32_16x16x32_bf16 v[{DD}:{DD+3}], v[{WT+60}:{WT+63}], v[{RR+4}:{RR+7}], v[{DD}:{DD+3}]')
    e(f's_mov_b32 s60, {SPIN}')
    e(f's_cmp_eq_u32 s3, {W3}')
    e('s_nop 5')
    puttag(DD, 4, 60)
    e('s_cbranch_scc1 L_qa0')
    e(f'buffer_store_dwordx4 v[{DD}:{DD+3}], v14, s[{SWS}:{SWS+3}], s76 offen sc1')
    e('s_cmp_eq_u32 s64, 2'); e('s_cbranch_scc1 L_ret_fin')
    stamp(1)
    e('s_branch L_ret_qb')
    lab('L_qa0')
    e(f'buffer_store_dwordx4 v[{DD}:{DD+3}], v14, s[{SWS}:{SWS+3}], s76 offen {qapol}')
    stamp(1)
    c('q of branch A: gather the eight k-slices')
    lab('L_qa')
    if qslp: e(f's_sleep {qslp}')
    for k in range(4):
        e(f'buffer_load_dwordx4 v[{64+4*k}:{64+4*k+3}], v10, s[{SWS}:{SWS+3}], s{74 if k == 0 else 84+k} offen {qgpol}')
    e('s_sub_u32 s60, s60, 1'); e('s_cbranch_scc1 L_exit')
    for k in range(4):
        e(f's_waitcnt vmcnt({3-k})')
        untag(64 + 4 * k, 4, 8, first=(k == 0))
        if k > 0:
            for r in range(4): e(f'v_add_f32 v{64+r}, v{64+r}, v{64+4*k+r}')
    e('v_and_b32 v8, 0xff, v8'); e('v_cmp_ne_u32 vcc, 0, v8'); e('s_cbranch_vccnz L_qafail')
    e('v_permlane32_swap_b32 v64, v66'); e('v_permlane32_swap_b32 v65, v67')
    e('v_add_f32 v64, v64, v66'); e('v_add_f32 v65, v65, v67')
    e('v_and_b32 v8, 32, v0'); e('v_add_u32 v11, v11, v8')
    e('v_cvt_pk_bf16_f32 v64, v64, v65')
    e('v_mov_b32 v8, 1'); e('v_mov_b32 v9, s93')
    e(f'ds_write_b16 v11, v64 offset:{L_QA}'); e(f'ds_write_b16_d16_hi v11, v64 offset:{L_QA+16}')
    e('ds_write_b32 v59, v9 offset:16'); e('ds_write_b32 v59, v8 offset:12')
    stamp(2)
    c('write the slice through to memory for readers on other dies')
    waitlds('L_waitre', 4, WS * tRe)
    e(f'buffer_store_dwordx4 v[{DD}:{DD+3}], v14, s[{SWS}:{SWS+3}], s76 offen sc1')
    if dryV:
        c('run the V loop and the publish code once through zero-size descriptors (instruction cache warm-up)')
        e('s_waitcnt vmcnt(0)')
        e('s_setprio 0')
        srd(SL, 8, 0); e(f's_mov_b32 s{SWS+2}, 0')
        e('s_mov_b32 s54, 0'); e('s_mov_b32 s55, 0'); e('s_mov_b32 s56, 1'); e('s_mov_b32 s57, 3'); e('s_mov_b32 s66, 0'); e('s_mov_b32 s67, 2'); e('s_mov_b32 s69, 0'); e('s_mov_b32 s59, 0')
        e(f'v_mov_b32 v{SAVE+6}, {L_FLAG+40}'); e('v_mov_b32 v41, 0'); e('s_mov_b64 vcc, 0')
        e('v_mov_b32 v38, 0'); e('v_mov_b32 v42, 0'); e('v_mov_b32 v15, 0'); e(f'v_mov_b32 v{SAVE+4}, 0')
        e('s_branch L_bodyV')
    e('s_branch L_exit')
    lab('L_qafail')
    e(f's_cmp_eq_u32 s60, {SPIN-KF}'); e('s_cbranch_scc0 L_qa')
    e(f'buffer_store_dwordx4 v[{DD}:{DD+3}], v14, s[{SWS}:{SWS+3}], s76 offen sc1')
    e('s_branch L_qa')
    lab('L_stream')
    if DIAG: e('v_writelane_b32 v1, s72, 0')
    e('v_mov_b32 v13, v42')
    e('v_lshl_add_u32 v15, v9, 9, v10')
    e(f'v_add_u32 v38, {L_QA}, v10')
    e(f'v_lshl_add_u32 v39, v9, 8, v38'); e(f'v_add_u32 v39, {L_QB-L_QA}, v39')
    e('s_lshl_b32 s60, s3, 13'); e(f's_add_u32 s60, s60, {L_SA}')
    e(f'v_lshl_add_u32 v{SAVE}, v2, 4, s60')
    e(f'v_lshl_add_u32 v8, v2, 2, v9'); e(f's_add_u32 s60, s60, {L_SB-L_SA}')
    e(f'v_lshl_add_u32 v{SAVE+1}, v8, 4, s60')
    e(f'v_mov_b32 v{SAVE+3}, 0xff'); e(f'v_lshlrev_b32 v{SAVE+4}, 3, v0')
    basesel()
    e('s_mov_b32 s62, 0x33333333'); e('s_mov_b32 s63, 0x33333333')
    e('v_cndmask_b32 v34, v62, v60, s[62:63]'); e('v_cndmask_b32 v35, v62, v61, s[62:63]')
    e('v_cndmask_b32 v36, v60, v62, s[62:63]'); e('v_cndmask_b32 v37, v61, v62, s[62:63]')
    e('v_mov_b32 v41, 1')
    e(f's_mov_b32 s59, 0x{f32(128**-0.5*1.4426950408889634):08x}')
    srd(SWS, 28, 0)
    e(f's_mul_i32 s68, s2, {STRIDE}'); e(f's_mul_i32 s60, s3, {RA}'); e('s_add_u32 s68, s68, s60')
    e('s_mov_b32 s82, 0')
    c('pass 0: K of A')
    e(f's_mov_b32 s56, {NP_A}'); e('s_mov_b32 s57, 0')
    c('tiles that may keep one more load in flight: the even dies see a slightly longer memory latency')
    e('s_getreg_b32 s60, hwreg(HW_REG_XCC_ID, 0, 1)'); e('s_cmp_eq_u32 s60, 0'); e(f's_mov_b32 s60, {mO + (mOV << 8)}'); e(f's_cselect_b32 s74, {mE + (mEV << 8)}, s60')
    e('s_lshl_b32 s60, s3, 2'); e('s_lshr_b32 s74, s74, s60'); e('s_mov_b32 s75, s74')
    e(f's_add_u32 s60, s60, {L_FLAG+24}'); e(f'v_mov_b32 v{SAVE+6}, s60'); e(f'v_mov_b32 v{SAVE+5}, 0')
    e(f'v_mov_b32 v11, v{SAVE}'); e('s_mov_b32 s66, 64'); e('s_mov_b32 s62, 0x00010001'); e('s_mov_b32 s63, 0x00010001')
    e(f'v_mov_b32 v10, 0x{f32(-3.0e38):08x}')
    ringload(min(16, Dr + 1), 16)
    stamp(10)
    e(f's_mov_b32 s60, {SPIN*4}')
    lab('L_waitqa')
    e('ds_read_b32 v4, v40 offset:12'); e('ds_read_b32 v5, v40 offset:16'); e(f'ds_read_b128 v[{QQ}:{QQ+3}], v38')
    e('s_waitcnt lgkmcnt(0)'); e('v_readfirstlane_b32 s61, v4'); e('v_readfirstlane_b32 s93, v5')
    e('s_sub_u32 s60, s60, 1'); e('s_cbranch_scc1 L_exit')
    e('s_cmp_eq_u32 s61, 0'); e('s_cbranch_scc1 L_waitqa')
    tags()
    stamp(2)
    nthr = [0]
    anydeep = 1
    def thr():
        if anydeep:
            nthr[0] += 1
            e(f's_cbranch_scc1 L_thr{nthr[0]}')
            if ctl:
                e(f's_cbranch_vccz L_thn{nthr[0]}'); e(f's_waitcnt vmcnt({D0})'); lab(f'L_thn{nthr[0]}')
            e(f's_waitcnt vmcnt({VM})'); lab(f'L_thr{nthr[0]}'); e(f's_waitcnt vmcnt({D2})')
        else:
            e(f's_waitcnt vmcnt({VM})')
    def looptop(x):
        lab(f'L_loop{x}')
        if DIAG >= 2:
            e('s_memrealtime s[70:71]'); e('s_and_b32 m0, s82, 63'); e('s_cmp_lt_u32 s82, 64'); e('s_waitcnt lgkmcnt(0)')
            e(f's_cbranch_scc0 L_st2{x}'); e('v_writelane_b32 v3, s70, m0'); e(f's_branch L_st3{x}')
            lab(f'L_st2{x}'); e('v_writelane_b32 v43, s70, m0'); lab(f'L_st3{x}'); e('s_add_u32 s82, s82, 1')
        if ctl:
            c('depth level from the controller: 0 nominal, 1 deeper, 2 shallower')
            e('s_waitcnt lgkmcnt(0)'); e(f'v_readfirstlane_b32 s60, v{SAVE+5}')
            e(f'ds_read_b32 v{SAVE+5}, v{SAVE+6} offset:8')
            e('s_cmp_eq_u32 s60, 1'); e('s_cselect_b32 s69, 15, s75')
            e('s_cmp_eq_u32 s60, 2'); e('s_cselect_b32 s69, 0, s69'); e('s_cselect_b64 vcc, -1, 0')
        else:
            e('s_mov_b32 s69, s75')
        e('s_cmp_eq_u32 s56, 1'); e(f's_cbranch_scc1 L_switch{x}')
        lab(f'L_body{x}')
    looptop('K')
    for t in range(4):
        K = RING + 16 * t
        e('s_mov_b64 exec, 1'); e(f'ds_add_u32 v{SAVE+6}, v41'); e('s_mov_b64 exec, -1'); e(f's_bitcmp1_b32 s69, {t}')
        for j in range(4):
            thr()
            e(f'v_mfma_f32_16x16x32_bf16 v[{QD+4*j}:{QD+4*j+3}], v[{K+4*j}:{K+4*j+3}], v[{QQ}:{QQ+3}], 0')
            load(t, j)
        adv(t)
        e('s_nop 1')
        S = 4 if t % 2 == 0 else 16
        for k in range(4):
            for j in range(4):
                if k == 0: e(f'v_mov_b32_dpp v{S+j}, v{QD+4*j} quad_perm:[0,0,0,0] row_mask:0xf bank_mask:0xf')
                else: e(f'v_add_f32_dpp v{S+j}, v{QD+4*j+k}, v{S+j} quad_perm:[{k},{k},{k},{k}] row_mask:0xf bank_mask:0xf')
        e(f'v_max3_f32 v10, v10, v{S}, v{S+1}'); e(f'v_max3_f32 v10, v10, v{S+2}, v{S+3}')
        e('s_mov_b64 exec, s[62:63]'); e(f'ds_write_b128 v11, v[{S}:{S+3}]'); e('s_mov_b64 exec, -1')
        e('v_add_u32 v11, s66, v11')
    e('s_sub_u32 s56, s56, 1'); e('s_cmp_lg_u32 s56, 0'); e('s_cbranch_scc1 L_loopK')
    c('end of a K pass: exact maximum of the scores of this wave')
    e('v_mov_b32 v9, v10'); e('s_nop 1'); e('v_permlane32_swap_b32 v10, v9'); e('v_max_f32 v10, v10, v9')
    e('v_mov_b32 v9, v10'); e('s_nop 1'); e('v_permlane16_swap_b32 v10, v9'); e('v_max_f32 v10, v10, v9')
    e('s_cmp_eq_u32 s57, 0'); e('s_cbranch_scc0 L_startVB')
    e(f'v_mov_b32 v{SAVE+2}, v10')
    e(f's_mov_b32 s60, {SPIN*4}')
    lab('L_waitqb')
    e('ds_read_b32 v8, v40'); e('s_waitcnt lgkmcnt(0)'); e('v_readfirstlane_b32 s67, v8')
    e('s_sub_u32 s60, s60, 1'); e('s_cbranch_scc1 L_exit')
    if not noserv:
        e('s_cmp_eq_u32 s67, 0'); e('s_cbranch_scc1 L_waitqb')
    e(f'ds_read_b128 v[{QQ}:{QQ+3}], v39')
    e(f's_mov_b32 s56, {NP_B}'); e('s_mov_b32 s57, 1')
    e(f'v_mov_b32 v11, v{SAVE+1}'); e('s_movk_i32 s66, 0x100'); e('s_mov_b32 s62, 0x11111111'); e('s_mov_b32 s63, 0x11111111')
    e(f'v_mov_b32 v10, 0x{f32(-3.0e38):08x}')
    e('s_waitcnt lgkmcnt(0)')
    stamp(3)
    e('s_branch L_loopK')
    def switch(ptr, lg, vreg, body):
        e(f's_lshl_b32 s60, s65, {lg}')
        srd(SL, ptr, 1 << lg, 's60')
        e(f's_mov_b32 s55, {(1<<lg)-1}')
        if lg == 18 and skewB != skew:
            e(f's_mul_i32 s54, s65, {skewB}'); e(f's_mul_i32 s60, s3, {T}'); e('s_add_u32 s54, s54, s60'); e('s_and_b32 s54, s54, s55')
        else:
            e('s_and_b32 s54, s58, s55')
        e(f'v_mov_b32 v42, v{vreg}')
        e(f's_branch {body}')
    lab('L_switchK')
    if lastdeep: e(f's_or_b32 s69, s69, {lastdeep}')
    e('s_cmp_eq_u32 s57, 0'); e('s_cbranch_scc0 L_sw1')
    switch(16, 18, 13, 'L_bodyK')
    lab('L_sw1')
    switch(18, 18, 14, 'L_bodyK')
    lab('L_switchV')
    if lastdeep: e(f's_or_b32 s69, s69, {lastdeep}')
    e('s_cmp_eq_u32 s57, 2'); e('s_cbranch_scc0 L_sw3')
    switch(8, 20, 14, 'L_bodyV')
    lab('L_sw3')
    e(f's_mov_b32 s{SL+2}, 0'); e(f's_mov_b32 s{SWS+2}, {WSBYTES}')
    e('s_branch L_bodyV')
    lab('L_startVB')
    e(f's_mov_b32 s56, {NP_B}'); e('s_mov_b32 s57, 2')
    e(f'v_mov_b32 v38, v{SAVE+1}')
    lab('L_startV')
    e('s_lshr_b32 s75, s74, 8')
    c('V pass: scores at v38 (stride s66), maximum v10')
    e(f'ds_read_b128 v[{QD}:{QD+3}], v38'); e('v_add_u32 v38, s66, v38')
    e('v_mul_f32 v11, s59, v10'); e('v_sub_f32 v11, 0, v11')
    e('v_mov_b32 v12, 0')
    for r in range(8): e(f'v_mov_b32 v{16+r}, 0')
    if pad and padidx == 5:
        e('s_memrealtime s[98:99]'); e('s_waitcnt lgkmcnt(0)')
    if DIAG:
        e('s_memrealtime s[70:71]'); e('s_add_u32 s60, s57, 2'); e('s_mov_b32 m0, s60'); e('s_waitcnt lgkmcnt(0)'); e('v_writelane_b32 v1, s70, m0')
    looptop('V')
    for t in range(4):
        V = RING + 16 * t
        e(f's_bitcmp1_b32 s69, {t}')
        e('s_waitcnt lgkmcnt(%d)' % (1 if (t == 0 and ctl) else 0))
        for r in range(4): e(f'v_fma_f32 v{4+r}, v{QD+r}, s59, v11')
        e(f'ds_read_b128 v[{QD}:{QD+3}], v38'); e('v_add_u32 v38, s66, v38')
        e('s_mov_b64 exec, 1'); e(f'ds_add_u32 v{SAVE+6}, v41'); e('s_mov_b64 exec, -1')
        for r in range(4): e(f'v_exp_f32 v{4+r}, v{4+r}')
        e('s_nop 0')
        e('v_cvt_pk_bf16_f32 v24, v4, v5'); e('v_cvt_pk_bf16_f32 v25, v6, v7')
        e('v_add_f32 v8, v4, v5'); e('v_add_f32 v9, v6, v7')
        for r in range(4):
            e(f'v_perm_b32 v{26+2*r}, v{24+(r>>1)}, v{24+(r>>1)}, v{34+(r&1)}')
            e(f'v_perm_b32 v{27+2*r}, v{24+(r>>1)}, v{24+(r>>1)}, v{36+(r&1)}')
        e('v_add_f32 v8, v8, v9'); e('v_add_f32 v12, v12, v8')
        for r in range(4):
            thr()
            e(f'v_mfma_f32_16x16x16_bf16 v[16:19], v[{V+4*r}:{V+4*r+1}], v[{26+2*r}:{27+2*r}], v[16:19]')
            e(f'v_mfma_f32_16x16x16_bf16 v[20:23], v[{V+4*r+2}:{V+4*r+3}], v[{26+2*r}:{27+2*r}], v[20:23]')
            load(t, r)
        adv(t)
    e('s_sub_u32 s56, s56, 1'); e('s_cmp_lg_u32 s56, 0'); e('s_cbranch_scc1 L_loopV')
    c('reduce l, publish the A partial (after the B pass the stores are dropped: zero-size descriptor)')
    e('v_mov_b32 v9, v12'); e('v_mul_f32 v4, s59, v10'); e('v_mov_b32 v6, s94'); e('v_permlane32_swap_b32 v12, v9'); e('v_add_f32 v12, v12, v9')
    e('v_mov_b32 v9, v12'); e('v_mov_b32 v7, s95')
    for k in range(8): e(f'v_bfi_b32 v{24+k}, v{SAVE+3}, s{TG+(k&3)}, v{16+k}')
    e('v_permlane16_swap_b32 v12, v9'); e('v_add_f32 v5, v12, v9')
    e('s_cmp_eq_u32 s67, 2'); e('s_cbranch_scc0 L_pubslow')
    def pubA(p):
        e('s_mov_b32 exec_lo, 0x000f000f'); e('s_mov_b32 exec_hi, 0x000f000f')
        e(f'buffer_store_dwordx4 v[24:27], v15, s[{SWS}:{SWS+3}], s68 offen offset:{BASE+128} {p}')
        e(f'buffer_store_dwordx4 v[28:31], v15, s[{SWS}:{SWS+3}], s68 offen offset:{BASE+384} {p}')
        e('s_mov_b64 exec, 0x5555')
        e(f'buffer_store_dwordx4 v[4:7], v{SAVE+4}, s[{SWS}:{SWS+3}], s68 offen offset:{BASE} {p}')
    pubA('')
    lab('L_pubdone')
    e('s_cmp_eq_u32 s57, 3'); e('s_cbranch_scc1 L_exit')
    e('s_mov_b64 exec, -1')
    c('hand the B state to the B finisher through LDS')
    e('s_mul_i32 s60, s3, 2560'); e('v_add_u32 v8, s60, v14'); e(f'v_add_u32 v9, s60, v{SAVE+4}')
    e('ds_write_b128 v8, v[16:19]'); e('ds_write_b128 v8, v[20:23] offset:1024'); e('ds_write_b64 v9, v[4:5] offset:2048')
    e('s_waitcnt lgkmcnt(0)')
    e('s_mov_b64 exec, 1'); e('ds_add_u32 v40, v41 offset:8'); e('s_mov_b64 exec, -1')
    e(f's_mov_b32 s56, {NP_A}'); e('s_mov_b32 s57, 3'); e('s_mov_b32 s66, 64')
    e(f'v_mov_b32 v38, v{SAVE}'); e(f'v_mov_b32 v10, v{SAVE+2}')
    e('s_branch L_startV')
    lab('L_pubslow')
    pubA('sc1')
    e('s_branch L_pubdone')
    lab('L_ret_qb')
    if noserv: e('s_branch L_exit')
    c('publish the die id of this workgroup')
    e('s_getreg_b32 s67, hwreg(HW_REG_XCC_ID, 0, 4)')
    e('v_mov_b32 v44, s67'); e('v_mov_b32 v45, s67'); e('v_mov_b32 v46, s94'); e('v_mov_b32 v47, s95')
    e(f's_add_u32 s60, s68, {IDO}')
    e('s_mov_b64 exec, 0xff')
    e(f'buffer_store_dwordx4 v[44:47], v14, s[{SWS}:{SWS+3}], s60 offen sc1')
    e('s_mov_b64 exec, -1')
    e(f'v_and_b32 v8, 31, v0'); e(f's_mov_b32 s60, {8*STRIDE}'); e('v_mul_lo_u32 v13, v8, s60')
    e(f's_mul_i32 s75, s30, {STRIDE}'); e(f's_add_u32 s75, s75, {IDO+BASE}')
    waitlds('L_waitq', 4, WS * (NP_A - tQ))
    e('v_lshrrev_b32 v8, 5, v0'); e(f's_mov_b32 s60, {HS*STRIDE}'); e('v_mul_lo_u32 v10, v8, s60'); e('v_add_u32 v10, v10, v12')
    e('v_lshl_add_u32 v11, v8, 8, v11')
    e(f's_mov_b32 s62, {SPIN}')
    e('s_branch L_qg1')
    lab('L_qg')
    e('s_sleep 32')
    lab('L_qg1')
    e(f's_mul_i32 s60, s30, {STRIDE*(32 if qmap else 1)}'); e('s_lshl_b32 s61, s53, 7'); e('s_add_u32 s60, s60, s61'); e(f's_add_u32 s60, s60, {QBO+BASE}')
    for a in range(2):
        for p in range(8):
            n = a * 8 + p
            if gD < 16: e(f's_waitcnt vmcnt({gD})')
            e(f'buffer_load_dwordx4 v[{64+4*n}:{64+4*n+3}], v10, s[{SWS}:{SWS+3}], s60 offen sc1')
            if p < 7: e(f's_add_u32 s60, s60, {PS*STRIDE}')
        if a == 0: e(f's_add_u32 s60, s60, {(2*HS-7*PS)*STRIDE}')
    e(f'buffer_load_dwordx4 v[44:47], v13, s[{SWS}:{SWS+3}], s75 offen sc1')
    e('s_sub_u32 s62, s62, 1'); e('s_cbranch_scc1 L_exit')
    e('s_waitcnt vmcnt(0)')
    untag(64, 64, 8)
    e('v_xor_b32 v46, s94, v46'); e('v_xor_b32 v47, s95, v47'); e('v_or_b32 v46, v46, v47')
    e('v_and_or_b32 v8, v8, v60, v46'); e('v_cmp_ne_u32 vcc, 0, v8'); e('s_cbranch_vccnz L_qg')
    c('flag value 2: all 32 workgroups of the group share this die, 1: they do not')
    e('v_cmp_ne_u32 vcc, s67, v44'); e('s_cmp_eq_u64 vcc, 0'); e(f's_cselect_b32 s67, {2 if (local and not forceslow) else 1}, 1')
    for a in range(2):
        for p in range(1, 8):
            for r in range(4): e(f'v_add_f32 v{64+32*a+r}, v{64+32*a+r}, v{64+32*a+4*p+r}')
        for r in range(4):
            e(f'v_cvt_pk_bf16_f32 v{64+32*a+r}, v{64+32*a+r}, v{64+32*a+r}')
        for r in range(4):
            e(f'ds_write_b16 v11, v{64+32*a+r} offset:{L_QB + 512*a + 16*r}')
    e('v_mov_b32 v8, s67')
    e('ds_write_b32 v59, v8')
    stamp(4)
    e('s_branch L_exit')
    lab('L_finisher')
    if nofin or noserv: e('s_branch L_exit')
    if prio: e(f's_setprio {prio}')
    c('parameters: s74 record base (ML), s84..87 O offsets, s76 own Y, s80 Y gather, s77 out offset, s78 n0 stride, s79 is-B')
    e(f's_lshl_b32 s76, s79, 10'); e('s_mov_b32 s77, s76'); e(f's_add_u32 s76, s76, {YA}')
    e('s_cmp_eq_u32 s79, 0'); e('s_cbranch_scc0 L_parB')
    e('s_and_b32 s60, s2, 0xc7'); e(f's_mul_i32 s74, s60, {STRIDE}'); e(f's_add_u32 s74, s74, {BASE}'); e('s_add_u32 s75, s74, 128'); e(f's_mov_b32 s78, {RA}')
    e('s_branch L_par')
    lab('L_parB')
    e(f's_mul_i32 s74, s30, {STRIDE}'); e(f's_add_u32 s74, s74, {OB+BASE}'); e('s_lshr_b32 s60, s31, 3')
    e('s_lshl_b32 s61, s60, 9'); e('s_add_u32 s75, s74, s61'); e('s_add_u32 s75, s75, 128')
    e('s_lshl_b32 s61, s60, 5'); e('s_add_u32 s74, s74, s61'); e(f's_mov_b32 s78, {64*STRIDE}')
    lab('L_par')
    e('s_lshl_b32 s60, s53, 8'); e('s_add_u32 s84, s75, s60')
    e('s_add_u32 s85, s84, s78'); e(f's_add_u32 s86, s84, {32*STRIDE}'); e('s_add_u32 s87, s86, s78')
    for k in range(4): e(f's_add_u32 s{88+k}, s{84+k}, {128*STRIDE}')
    e(f's_add_u32 s92, s74, {128*STRIDE}')
    e(f's_mov_b32 s60, {8*STRIDE}')
    e('v_mul_lo_u32 v15, v2, s60'); e('v_add_u32 v15, v15, v4')
    e('v_and_b32 v8, 3, v0'); e('v_xor_b32 v8, v8, v2'); e('v_lshl_add_u32 v8, v7, 2, v8'); e('v_mul_lo_u32 v13, v8, s60')
    e('v_bfe_u32 v8, v0, 2, 1'); e('v_mul_lo_u32 v8, v8, s78'); e('v_add_u32 v13, v13, v8')
    lgy = NY.bit_length() - 1
    NC = 256 // NY
    e(f'v_lshrrev_b32 v8, {lgy}, v0'); e('v_and_b32 v9, 7, v8'); e('v_lshrrev_b32 v8, 3, v8'); e('v_lshl_add_u32 v8, v8, 5, v9')
    e(f's_mov_b32 s60, {STRIDE}'); e('v_mul_lo_u32 v12, v8, s60')
    e(f'v_and_b32 v10, {NY-1}, v0'); e('v_lshl_add_u32 v12, v10, 4, v12')
    c('LDS scratch addresses: v57 write, v58 read')
    e('s_lshl_b32 s60, s79, 8'); e(f's_add_u32 s60, s60, {L_X}')
    e('v_lshrrev_b32 v8, 1, v2'); e('v_lshlrev_b32 v8, 7, v8'); e('v_and_b32 v9, 1, v2'); e('v_lshl_add_u32 v8, v9, 2, v8')
    e('v_lshrrev_b32 v9, 1, v4'); e('v_add3_u32 v57, v8, v9, s60')
    e('v_lshlrev_b32 v8, 7, v7'); e('v_lshl_add_u32 v8, v2, 5, v8'); e('v_add_u32 v58, s60, v8')
    c('consumer role: s81 = 0 when this workgroup reduces outputs of its branch')
    e(f's_lshr_b32 s81, s2, {8-lgy}')
    if NY > 1:
        e(f's_mul_i32 s60, s79, {NY//2}'); e('s_xor_b32 s81, s81, s60')
    e('s_and_b32 s61, s2, 3'); e(f's_mul_i32 s80, s61, {8*STRIDE}'); e('s_add_u32 s80, s80, s76'); e(f's_add_u32 s80, s80, {BASE}')
    e(f's_and_b32 s63, s2, {NC-1}'); e('s_lshr_b32 s63, s63, 2'); e(f's_lshl_b32 s63, s63, {lgy}')
    e('s_lshl_b32 s60, s63, 4'); e('s_add_u32 s80, s80, s60')
    e('s_lshl_b32 s61, s61, 8'); e('s_add_u32 s77, s77, s61')
    e('s_lshr_b32 s61, s63, 4'); e('s_lshl_b32 s61, s61, 6'); e('s_add_u32 s77, s77, s61')
    e('s_bfe_u32 s61, s63, 0x10003'); e('s_lshl_b32 s61, s61, 11'); e('s_add_u32 s77, s77, s61')
    e('s_and_b32 s61, s63, 7'); e('s_lshl_b32 s61, s61, 1'); e('s_add_u32 s77, s77, s61')
    e('v_and_b32 v8, 1, v2'); e('v_lshrrev_b32 v9, 1, v2'); e('v_lshl_add_u32 v8, v8, 1, v9'); e('v_lshlrev_b32 v11, 4, v8')
    e('v_lshl_add_u32 v11, v10, 1, v11')
    e('s_add_u32 s76, s76, s68')
    e('s_mov_b32 s64, 2')
    srd(SX, 24, 0)
    if dry:
        c('dry run of the tail code through zero-size descriptors (instruction cache warm-up)')
        e(f's_mov_b32 s{SWS+2}, 0'); e('s_mov_b32 s83, 1')
        for k in range(4): e(f's_mov_b32 s{TG+k}, 0')
        e('s_mov_b32 s94, 0'); e('s_mov_b32 s95, 0')
        e('s_branch L_fin')
    lab('L_real')
    e('s_mov_b64 exec, -1')
    e('s_mov_b32 s83, 0'); e(f's_mov_b32 s{SWS+2}, {WSBYTES}'); e(f's_mov_b32 s{SX+2}, 4096')
    waitlds('L_waittag', 12, 1)
    e('ds_read_b32 v8, v59 offset:16'); e('s_waitcnt lgkmcnt(0)'); e('v_readfirstlane_b32 s93, v8')
    tags()
    e('s_cmp_eq_u32 s79, 0'); e('s_cbranch_scc1 L_waitA')
    c('B finisher: merge the two B states, publish near the end')
    waitlds('L_waitB', 8, WS)
    BO = 128
    e('v_lshlrev_b32 v10, 3, v0')
    e('ds_read_b32 v53, v59')
    e(f'ds_read_b128 v[{BO}:{BO+3}], v14'); e(f'ds_read_b128 v[{BO+4}:{BO+7}], v14 offset:1024'); e('ds_read_b64 v[44:45], v10 offset:2048')
    e(f'ds_read_b128 v[{BO+8}:{BO+11}], v14 offset:2560'); e(f'ds_read_b128 v[{BO+12}:{BO+15}], v14 offset:3584'); e('ds_read_b64 v[46:47], v10 offset:4608')
    e('s_waitcnt lgkmcnt(0)')
    e('v_readfirstlane_b32 s67, v53')
    e('v_max_f32 v48, v44, v46'); e('v_sub_f32 v8, v44, v48'); e('v_sub_f32 v9, v46, v48'); e('v_exp_f32 v8, v8'); e('v_exp_f32 v9, v9'); e('s_nop 0')
    e('v_mul_f32 v49, v45, v8'); e('v_fmac_f32 v49, v47, v9'); e('v_mov_b32 v50, s94'); e('v_mov_b32 v51, s95')
    for r in range(8):
        e(f'v_mul_f32 v{BO+r}, v{BO+r}, v8'); e(f'v_fmac_f32 v{BO+r}, v{BO+8+r}, v9')
    puttag(BO, 8, 60)
    e('v_and_b32 v8, 3, v0'); e('v_lshl_add_u32 v8, v2, 2, v8'); e('v_lshlrev_b32 v8, 4, v8'); e('v_bfe_u32 v9, v0, 2, 2'); e('v_lshl_add_u32 v52, v9, 9, v8')
    stamp(3)
    waitlds('L_waitpub', 4, WS * (NIT - tPub))
    e(f's_add_u32 s60, s68, {OB}')
    def pubB(p):
        e(f'buffer_store_dwordx4 v[{BO}:{BO+3}], v52, s[{SWS}:{SWS+3}], s60 offen offset:128 {p}')
        e(f'buffer_store_dwordx4 v[{BO+4}:{BO+7}], v52, s[{SWS}:{SWS+3}], s60 offen offset:384 {p}')
        e('s_mov_b64 exec, 0x5555')
        e(f'buffer_store_dwordx4 v[48:51], v10, s[{SWS}:{SWS+3}], s60 offen {p}')
        e('s_mov_b64 exec, -1')
    e('s_cmp_eq_u32 s67, 2'); e('s_cbranch_scc1 L_pubBfast')
    pubB('sc1')
    e('s_branch L_pubBdone')
    lab('L_pubBfast')
    pubB('')
    lab('L_pubBdone')
    e('s_waitcnt vmcnt(0)')
    e('s_branch L_fin1')
    lab('L_waitA')
    if ctl:
        c('pace keeper: compare the progress of this workgroup with the mean of its group and pick the load depth')
        e(f's_lshl_b32 s61, s30, 7'); e(f's_add_u32 s96, s61, {PGO}')
        e('s_lshl_b32 s61, s31, 2'); e('v_mov_b32 v44, s61')
        e('v_and_b32 v45, 31, v0'); e('v_lshlrev_b32 v45, 2, v45')
        e('s_and_b32 s97, s94, 0xffff0000')
        e('v_mov_b32 v50, 0'); e('v_mov_b32 v51, 0')
        e(f's_mov_b32 s60, {SPIN*4}')
        lab('L_ctl')
        if cslp: e(f's_sleep {cslp}')
        e('ds_read_b64 v[8:9], v59 offset:24'); e('s_waitcnt lgkmcnt(0)')
        e('v_add_u32 v46, v8, v9'); e('v_or_b32 v47, s97, v46')
        e('v_readfirstlane_b32 s61, v46')
        e('s_mov_b64 exec, 1'); e(f'buffer_store_dword v47, v44, s[{SWS}:{SWS+3}], s96 offen'); e('s_mov_b64 exec, -1')
        e(f'buffer_load_dword v48, v45, s[{SWS}:{SWS+3}], s96 offen {cpol}')
        e('v_add_u32 v50, v50, v8'); e('v_add_u32 v51, v51, v9')
        e('s_sub_u32 s60, s60, 1'); e('s_cbranch_scc1 L_exit')
        e(f's_cmp_ge_u32 s61, {8*(NIT-ctlend)}'); e('s_cbranch_scc1 L_ctlend')
        e('s_waitcnt vmcnt(0)')
        e('v_xor_b32 v48, s97, v48'); e('v_cmp_lt_u32 vcc, 0xffff, v48')
        for d in (8, 4, 2, 1):
            e('s_nop 1'); e(f'v_add_u32_dpp v48, v48, v48 row_ror:{d} row_mask:0xf bank_mask:0xf')
        e('v_mov_b32 v49, v48'); e('s_nop 1'); e('v_permlane16_swap_b32 v48, v49'); e('v_add_u32 v48, v48, v49')
        e('v_lshlrev_b32 v50, 5, v50'); e('v_lshlrev_b32 v51, 5, v51')
        e('v_sub_u32 v50, v48, v50'); e('v_sub_u32 v51, v48, v51')
        e('s_cmp_eq_u64 vcc, 0'); e(f's_mov_b32 s62, {thU}'); e('s_cselect_b32 s62, s62, 0x7fffffff'); e(f's_mov_b32 s63, {-thD}'); e('s_cselect_b32 s63, s63, 0x80000000')
        for r in (50, 51):
            e(f'v_cmp_lt_i32 vcc, s62, v{r}'); e('s_nop 1'); e(f'v_cndmask_b32 v{r+2}, 0, 1, vcc')
            e(f'v_cmp_gt_i32 vcc, s63, v{r}'); e('s_nop 1'); e(f'v_cndmask_b32 v{r+2}, v{r+2}, 2, vcc')
        e('ds_write_b64 v59, v[52:53] offset:32')
        e('v_mov_b32 v50, v8'); e('v_mov_b32 v51, v9')
        e('s_branch L_ctl')
        lab('L_ctlend')
    waitlds('L_waitown', 4, WS * NIT)
    lab('L_fin1')
    stamp(5)
    lab('L_fin')
    O1 = 128; O2 = 144; M1 = 44; M2 = 160
    def gather(label, A, M, so, sm):
        e(f's_mov_b32 s60, {SPIN}')
        if gslp:
            e(f's_branch {label}a'); lab(label); e(f's_sleep {gslp}'); lab(label + 'a')
        else:
            lab(label)
        e(f'buffer_load_dwordx4 v[{M}:{M+3}], v13, s[{SWS}:{SWS+3}], s{sm} offen {pgpol}')
        for k in range(4): e(f'buffer_load_dwordx4 v[{A+4*k}:{A+4*k+3}], v15, s[{SWS}:{SWS+3}], s{so+k} offen {pgpol}')
        e('s_sub_u32 s60, s60, 1'); e('s_cbranch_scc1 L_exit')
        e('s_waitcnt vmcnt(4)')
        e(f'v_xor_b32 v9, s94, v{M+2}'); e(f'v_xor_b32 v10, s95, v{M+3}'); e('v_or_b32 v9, v9, v10')
        for k in range(4):
            e(f's_waitcnt vmcnt({3-k})')
            untag(A + 4 * k, 4, 8, first=(k == 0))
        e('v_and_or_b32 v8, v8, v60, v9')
        e('v_cmp_ne_u32 vcc, 0, v8')
        e(f's_cbranch_vccnz {label}')
    e('s_cmp_eq_u32 s79, 0'); e('s_cbranch_scc1 L_g0s')
    gather('L_g1', O2, M2, 88, 92)
    lab('L_g0s')
    for r in range(4): e(f'v_mov_b32 v{DD+r}, 0')
    gather('L_g0', O1, M1, 84, 74)
    stamp(6)
    DP = ['quad_perm:[1,0,3,2]', 'quad_perm:[2,3,0,1]', 'row_half_mirror']
    AC = 48
    e(f'v_mov_b32 v8, v{M1}')
    e('s_cmp_eq_u32 s79, 0'); e('s_cbranch_scc1 L_m1')
    e(f'v_max_f32 v8, v8, v{M2}')
    lab('L_m1')
    for d in DP:
        e('s_nop 1'); e(f'v_max_f32_dpp v8, v8, v8 {d} row_mask:0xf bank_mask:0xf')
    e(f'v_sub_f32 v9, v{M1}, v8'); e('v_exp_f32 v9, v9'); e('s_nop 0')
    e(f'v_mul_f32 v10, v{M1+1}, v9')
    e('s_cbranch_scc1 L_m2')
    e(f'v_sub_f32 v56, v{M2}, v8'); e('v_exp_f32 v56, v56'); e('s_nop 0'); e(f'v_fmac_f32 v10, v{M2+1}, v56')
    lab('L_m2')
    for d in DP:
        e('s_nop 1'); e(f'v_add_f32_dpp v10, v10, v10 {d} row_mask:0xf bank_mask:0xf')
    e('v_rcp_f32 v10, v10'); e('s_nop 0'); e('v_mul_f32 v9, v9, v10'); e('v_mul_f32 v56, v56, v10'); e('s_nop 0')
    for b in range(2):
        for k in range(4): e(f'v_mul_f32_dpp v{AC+4*b+k}, v9, v{O1+8*b+k} row_newbcast:{8*b} row_mask:0xf bank_mask:0xf')
    for b in range(2):
        for k in range(4): e(f'v_fmac_f32_dpp v{AC+4*b+k}, v9, v{O1+8*b+4+k} row_newbcast:{8*b+4} row_mask:0xf bank_mask:0xf')
    e('s_cbranch_scc1 L_m3')
    for n0 in range(2):
        for b in range(2):
            for k in range(4): e(f'v_fmac_f32_dpp v{AC+4*b+k}, v56, v{O2+8*b+4*n0+k} row_newbcast:{8*b+4*n0} row_mask:0xf bank_mask:0xf')
    lab('L_m3')
    for k in range(4): e(f'v_permlane32_swap_b32 v{AC+k}, v{AC+4+k}')
    for k in range(4): e(f'v_add_f32 v{AC+k}, v{AC+k}, v{AC+4+k}')
    e('s_nop 0')
    e(f'v_permlane16_swap_b32 v{AC}, v{AC+2}'); e(f'v_permlane16_swap_b32 v{AC+1}, v{AC+3}')
    e(f'v_add_f32 v{AC}, v{AC}, v{AC+2}'); e(f'v_add_f32 v{AC+1}, v{AC+1}, v{AC+3}')
    e(f'v_cvt_pk_bf16_f32 v8, v{AC}, v{AC+1}')
    e('ds_write_b32 v57, v8')
    e(f'ds_read_b128 v[{XP}:{XP+3}], v58'); e(f'ds_read_b128 v[{XP+4}:{XP+7}], v58 offset:16')
    e('s_waitcnt lgkmcnt(0)')
    e('s_branch L_projmm')
    lab('L_ret_fin')
    stamp(7)
    e('s_cmp_lg_u32 s81, 0'); e('s_cbranch_scc1 L_done')
    if yslp:
        e('s_branch L_ya'); lab('L_y'); e(f's_sleep {yslp}'); lab('L_ya')
    else:
        lab('L_y')
    e('s_mov_b32 s61, s80')
    for n in range(NY):
        e(f'buffer_load_dwordx4 v[{O1+4*n}:{O1+4*n+3}], v12, s[{SWS}:{SWS+3}], s61 offen sc1')
        if n < NY - 1: e(f's_add_u32 s61, s61, {(256//NY)*STRIDE}')
    e('s_sub_u32 s60, s60, 1'); e('s_cbranch_scc1 L_exit')
    for n in range(NY):
        e(f's_waitcnt vmcnt({NY-1-n})')
        untag(O1 + 4 * n, 4, 8, first=(n == 0))
        if n > 0:
            for k in range(4): e(f'v_add_f32 v{O1+k}, v{O1+k}, v{O1+4*n+k}')
    e('v_and_b32 v8, 0xff, v8'); e('v_cmp_ne_u32 vcc, 0, v8'); e('s_cbranch_vccnz L_y')
    stamp(8)
    e(f'v_permlane32_swap_b32 v{O1}, v{O1+1}'); e(f'v_permlane32_swap_b32 v{O1+2}, v{O1+3}')
    e(f'v_add_f32 v{O1}, v{O1}, v{O1+1}'); e(f'v_add_f32 v{O1+2}, v{O1+2}, v{O1+3}'); e('s_nop 1')
    e(f'v_permlane16_swap_b32 v{O1}, v{O1+2}'); e(f'v_add_f32 v8, v{O1}, v{O1+2}')
    for d in (8, 4, 2, 1):
        if d >= NY:
            e('s_nop 1'); e(f'v_add_f32_dpp v8, v8, v8 row_ror:{d} row_mask:0xf bank_mask:0xf')
    e('v_cvt_pk_bf16_f32 v8, v8, v8')
    m = ((1 << NY) - 1) * 0x00010001
    e(f's_mov_b32 exec_lo, 0x{m:08x}'); e(f's_mov_b32 exec_hi, 0x{m:08x}')
    e(f'buffer_store_short v8, v11, s[{SX}:{SX+3}], s77 offen')
    c('every workgroup has read the tag word by now: leave this launch\'s tag behind')
    e('s_or_b32 s60, s2, s79'); e('s_cbranch_scc1 L_done')
    e('s_mov_b64 exec, 1'); e('v_mov_b32 v9, s94'); e('v_mov_b32 v10, 0')
    e(f'buffer_store_dword v9, v10, s[{SWS}:{SWS+3}], 0 offen')
    lab('L_done')
    if dry:
        e('s_cmp_eq_u32 s83, 1'); e('s_cbranch_scc1 L_real')
    lab('L_exit')
    if pad:
        if padidx == 9:
            e('s_memrealtime s[98:99]'); e('s_waitcnt lgkmcnt(0)')
        if padwg >= 0:
            e(f's_cmp_lg_u32 s2, {padwg}'); e('s_cbranch_scc1 L_end')
        e(f's_cmp_lg_u32 s3, {padw}'); e('s_cbranch_scc1 L_end')
        if padidx >= 0:
            e('s_sub_u32 s98, s98, s72'); e(f's_mul_i32 s98, s98, {padscale}'); e('s_min_u32 s98, s98, 100000')
        else:
            e('s_mov_b32 s98, 0')
        e(f's_add_u32 s98, s98, {pad*100}')
        lab('L_pad')
        e('s_sleep 1'); e('s_memrealtime s[100:101]'); e('s_waitcnt lgkmcnt(0)'); e('s_sub_u32 s100, s100, s72')
        e('s_cmp_lt_u32 s100, s98'); e('s_cbranch_scc1 L_pad')
    if DIAG:
        e('s_mov_b64 exec, -1')
        e('s_waitcnt vmcnt(0)')
        stamp(9)
        e('s_add_u32 s48, s28, 0x4000000'); e('s_addc_u32 s49, s29, 0'); e('s_mov_b32 s50, 0x100000'); e('s_mov_b32 s51, 0x20000')
        e('s_lshl_b32 s60, s2, 4'); e('s_add_u32 s60, s60, s3'); e('s_lshl_b32 s60, s60, 7')
        e('v_lshlrev_b32 v2, 2, v0')
        e('s_mov_b64 exec, 0xffffffff')
        e(f'buffer_store_dword v1, v2, s[{SWS}:{SWS+3}], s60 offen')
        if DIAG >= 2:
            e(f's_cmp_ge_u32 s3, {WS}'); e('s_cbranch_scc1 L_end')
            e('s_mov_b64 exec, -1'); e('s_mov_b32 s50, 0x400000'); e('s_lshl_b32 s60, s60, 2'); e('s_add_u32 s60, s60, 0x100000')
            e(f'buffer_store_dword v3, v2, s[{SWS}:{SWS+3}], s60 offen')
            e(f'buffer_store_dword v43, v2, s[{SWS}:{SWS+3}], s60 offen offset:256')
    lab('L_end')
    e('s_endpgm')
    L.append('.section .rodata,"a"'); L.append('.p2align 6'); L.append(f'.amdhsa_kernel {NAME}')
    L.append('  .amdhsa_next_free_vgpr 168'); L.append('  .amdhsa_next_free_sgpr %d' % 102); L.append('  .amdhsa_accum_offset 168')
    L.append('  .amdhsa_group_segment_fixed_size 0'); L.append('  .amdhsa_kernarg_size 104'); L.append('  .amdhsa_user_sgpr_count 2')
    L.append('  .amdhsa_user_sgpr_kernarg_segment_ptr 1'); L.append('  .amdhsa_system_sgpr_workgroup_id_x 1'); L.append('.end_amdhsa_kernel')
    return '\n'.join(L) + '\n'

if __name__ == '__main__':
    kw = {}
    for a in sys.argv[2:]:
        k, v = a.split('=')
        kw[k] = v if k.endswith('pol') else int(v)
    open(sys.argv[1], 'w').write(gen(**kw))
```

```python
import sys, struct, os
NAME = 'concat_heads__mha_block_cached__gqa_block_cached__decode_kernel'
def f32(x): return struct.unpack('<I', struct.pack('<f', x))[0]
_ref = 'concat_heads__mha_block_cached__gqa_block_cached__decode.s.ref'
HEADER = open(_ref).read().split('; Override launch')[0] if os.path.exists(_ref) else ''

LAY_A = {
    0: ((12, 14), 13, (20, 21), [1, 2, 4, 8, 16, 32, 0, 0]),
    1: ((12, 14), 13, (15, 21), [1, 0, 44, 30, 30, 32, 34, 0]),
    2: ((15, 12), 13, (20, 21), [32, 0, 16, 24, 57, 32, 2, 34]),
    3: ((12, 13), 21, (15, 16), [0, 1, 20, 16, 24, 32, 53, 1]),
    4: ((15, 21), 13, (12, 16), [40, 0, 17, 36, 42, 48, 30, 0]),
    5: ((15, 16), 13, (12, 21), [16, 0, 32, 18, 16, 16, 1, 34]),
    6: ((15, 13), 12, (16, 21), [63, 0, 61, 37, 29, 16, 32, 44]),
    7: ((12, 14), 21, (15, 13), [1, 0, 50, 62, 32, 32, 0, 0]),
    8: ((12, 14), 13, (20, 21), [32, 0, 16, 24, 2, 19, 2, 31]),
    9: ((15, 12), 13, (14, 21), [32, 0, 18, 3, 0, 0, 1, 0]),
    10: ((12, 14), 13, (15, 21), [1, 0, 18, 60, 30, 0, 34, 0]),
}
LAY_B = {
    0: ((12, 14), 13, (18, 19, 20, 21), [4, 8, 0, 0, 0, 0, 0, 0]),
    1: ((15, 12), 13, (18, 19, 20, 21), [14, 9, 0, 0, 6, 0, 1, 0]),
    2: ((12, 14), 13, (15, 21, 17, 18), [0, 0, 8, 3, 5, 4, 0, 12]),
    3: ((15, 12), 13, (14, 16, 21, 20), [9, 14, 0, 2, 13, 8, 11, 0]),
}

def gen(layA=1, layB=1, D=9, D2=0, mE=0x33, mO=0, mEV=-1, mOV=-1, skew=16384, skewB=65536, T=8192, DIAG=0, pol='nt', wpol='nt',
        ctl=1, thU=32, thF=0, cslp=0, ctlend=2, nfree=1, NH=0, Dr=3, Dp=3, qslp=3, tRe=1, KF=6, gD=3, tQ=14, tPub=3,
        prio=3, slp=4, dry=1, dryV=1, NY=4, NS=1, ysp=8, tG=2, tYB=6, ywait=1, sig=0, gpol='sc1', tpre=0, rewb=0, xctl=0, xsm=1, xgain=0, xnull=0, xmask=0, xdiv=1, local=1, WS=2, NB=2, freeT=0):
    assert WS == 2 and NH in (0, 2, 4)
    if not D2: D2 = D + 1
    if mEV < 0: mEV = mE
    if mOV < 0: mOV = mO
    NW = 6 + NH
    BASE = 128
    RA = 640; OB = 2 * RA; YA = OB + 128 + 2048; YB = YA + 1024; QBO = YB + 1024; QAO = QBO + 1024; IDO = QAO + 1024; STRIDE = IDO + 128
    PGO = BASE + 256 * STRIDE; WSBYTES = PGO + 8 * 128
    L_QA = 8192; L_QB = L_QA + 256; L_FLAG = L_QB + 1024; L_X = L_FLAG + 64
    L_SA = 10240; L_SB = L_SA + 16384; LDS = L_SB + 16384 + 1024
    NP_A = 32; NP_B = 8; NPK = NP_A - NH // 2; NIT = NPK + NP_A + 2 * NP_B
    SPIN = 1 << 18
    W3, W0, W1, W2, WH = 2, 3, 4, 5, 6
    FULL = DIAG in (1, 2)
    L = []
    def e(s): L.append('    ' + s)
    def lab(s): L.append(s + ':')
    def c(s): L.append('    ; ' + s)
    L.append(HEADER.rstrip('\n'))
    L.append(f'; @launch grid=(256,1,1) block=({NW*64},1,1) lds={LDS}')
    L.append('.amdgcn_target "amdgcn-amd-amdhsa--gfx950"')
    L.append('.text'); L.append(f'.globl {NAME}'); L.append('.p2align 8'); L.append(f'.type {NAME},@function')
    lab(NAME)
    def stamp(idx, tail=False):
        if not (FULL or (tail and DIAG == 4)): return
        e('s_memrealtime s[70:71]'); e('s_waitcnt lgkmcnt(0)'); e(f'v_writelane_b32 v1, s70, {idx}')
    def srd(d, lo, size, off=None):
        if off is None:
            e(f's_mov_b32 s{d}, s{lo}'); e(f's_mov_b32 s{d+1}, s{lo+1}')
        else:
            e(f's_add_u32 s{d}, s{lo}, {off}'); e(f's_addc_u32 s{d+1}, s{lo+1}, 0')
        e(f's_mov_b32 s{d+2}, {size}'); e(f's_mov_b32 s{d+3}, 0x20000')
    def basesel():
        e('s_mov_b32 s62, 0xaaaaaaaa'); e('s_mov_b32 s63, 0xaaaaaaaa')
        e('v_mov_b32 v8, 0x0c0c0100'); e('v_mov_b32 v9, 0x01000c0c')
        e('v_cndmask_b32 v60, v8, v9, s[62:63]')
        e('v_mov_b32 v8, 0x0c0c0302'); e('v_mov_b32 v9, 0x03020c0c')
        e('v_cndmask_b32 v61, v8, v9, s[62:63]')
        e('v_mov_b32 v62, 0x0c0c0c0c')
    TG = 36
    def tags():
        e('s_add_u32 s94, s93, 0x01010101'); e('s_not_b32 s95, s94')
        e(f's_and_b32 s{TG}, s94, 0xff'); e(f's_bfe_u32 s{TG+1}, s94, 0x80008'); e(f's_bfe_u32 s{TG+2}, s94, 0x80010'); e(f's_lshr_b32 s{TG+3}, s94, 24')
    def puttag(r, n, vm, src=None):
        for k in range(n): e(f'v_bfi_b32 v{r+k}, v{vm}, s{TG+(k&3)}, v{(r if src is None else src)+k}')
    def untag_ops(r, n, acc, first=True):
        ops = [f'v_xor_b32 v{r+k}, s{TG+(k&3)}, v{r+k}' for k in range(n)]
        k = 0
        if first:
            ops.append(f'v_or3_b32 v{acc}, v{r}, v{r+1}, v{r+2}'); k = 3
        while k + 1 < n:
            ops.append(f'v_or3_b32 v{acc}, v{acc}, v{r+k}, v{r+k+1}'); k += 2
        if k < n: ops.append(f'v_or_b32 v{acc}, v{acc}, v{r+k}')
        return ops
    def untag(*a, **k):
        for o in untag_ops(*a, **k): e(o)
    def waitlds(label, off, target, addr=59, sl=None):
        e(f's_mov_b32 s60, {SPIN*4}')
        lab(label)
        e(f's_sleep {slp if sl is None else sl}')
        e(f'ds_read_b32 v8, v{addr} offset:{off}'); e('s_waitcnt lgkmcnt(0)'); e('v_readfirstlane_b32 s61, v8')
        e('s_sub_u32 s60, s60, 1'); e('s_cbranch_scc1 L_exit')
        e(f's_cmp_lt_u32 s61, {target}'); e(f's_cbranch_scc1 {label}')
    def waitprog(label, it, sl=None, tiles=None):
        e(f's_mov_b32 s60, {SPIN*4}')
        lab(label)
        e(f's_sleep {slp if sl is None else sl}')
        e(f'ds_read_b64 v[8:9], v59 offset:24'); e('s_waitcnt lgkmcnt(0)'); e('v_add_u32 v8, v8, v9')
        e('s_sub_u32 s60, s60, 1'); e('v_readfirstlane_b32 s61, v8'); e('s_cbranch_scc1 L_exit')
        e(f's_cmp_lt_u32 s61, {8*it-6 if tiles is None else tiles}'); e(f's_cbranch_scc1 {label}')
    SL, SW, SX, SWS = 32, 40, 44, 48
    RING = 64; WT = 64; XP = 16; SEL = 24; RR = 32; DD = 40; QQ = 44; QD = 48; SAVE = 128
    e('s_cmp_ge_u32 s2, 256'); e('s_cbranch_scc1 L_end')
    e('s_load_dwordx16 s[4:19], s[0:1], 0')
    e('s_load_dwordx8 s[20:27], s[0:1], 64')
    e('s_load_dwordx2 s[28:29], s[0:1], 96')
    if DIAG: e('s_memrealtime s[72:73]')
    e('v_lshrrev_b32 v1, 6, v0')
    e('v_and_b32 v0, 63, v0')
    e('v_readfirstlane_b32 s3, v1')
    e('s_and_b32 s30, s2, 7')
    e('s_lshr_b32 s31, s2, 3')
    e('s_lshr_b32 s60, s31, 3')
    e('s_lshl_b32 s52, s30, 2')
    e('s_add_u32 s52, s52, s60')
    e('s_bfe_u32 s53, s31, 0x10002')
    e('v_lshrrev_b32 v2, 4, v0')
    e('v_lshlrev_b32 v14, 4, v0')
    if DIAG: e('v_mov_b32 v1, 0')
    e('s_sub_u32 s60, s3, 2'); e('s_cmp_lt_u32 s60, 4')
    e('s_cbranch_scc0 L_str_pro')
    e('v_and_b32 v4, 0xf0, v14')
    e('v_bfe_u32 v7, v0, 3, 1')
    e('v_lshlrev_b32 v6, 5, v2')
    e('v_lshl_add_u32 v6, v7, 10, v6')
    e('s_and_b32 s61, s31, 7')
    e(f's_cmp_eq_u32 s3, {W3}')
    e('s_cselect_b32 s66, s61, s30')
    e('s_cselect_b32 s62, s52, s31')
    e('s_lshl_b32 s60, s66, 19'); e('s_lshl_b32 s62, s62, 8'); e('s_add_u32 s60, s60, s62')
    e('s_lshl_b32 s61, s52, 17'); e('s_lshl_b32 s62, s53, 12'); e('s_add_u32 s61, s61, s62')
    e('s_and_b32 s62, s31, 3'); e('s_lshl_b32 s62, s62, 8'); e('s_add_u32 s61, s61, s62')
    e('s_movk_i32 s63, 0x2000')
    e(f's_sub_u32 s79, s3, {W0}'); e('s_cmp_lt_u32 s79, 2')
    e('s_cselect_b32 s60, s61, s60'); e('s_cselect_b32 s62, 15, 17'); e(f's_cselect_b32 s63, {1024-3*8192}, s63')
    e(f's_cselect_b32 s{SX+2}, 0, 2048')
    e('v_lshlrev_b32 v5, s62, v2'); e('v_add_u32 v5, v5, v4')
    e(f's_mov_b32 s{SW+2}, {1<<22}'); e(f's_mov_b32 s{SW+3}, 0x20000'); e(f's_mov_b32 s{SX+3}, 0x20000')
    e('s_lshl_b32 s61, s66, 7')
    e(f's_cmp_eq_u32 s3, {W3}'); e('s_cselect_b64 vcc, -1, 0')
    e('s_waitcnt lgkmcnt(0)')
    e('s_load_dword s93, s[28:29], 0')
    e(f's_cselect_b32 s{SW}, s10, s20'); e(f's_cselect_b32 s{SW+1}, s11, s21')
    e(f's_cselect_b32 s{SX}, s4, s14'); e(f's_cselect_b32 s{SX+1}, s5, s15')
    e('s_cbranch_scc1 L_first')
    e(f's_cmp_eq_u32 s3, {W0}'); e(f's_cselect_b32 s{SW}, s12, s{SW}'); e(f's_cselect_b32 s{SW+1}, s13, s{SW+1}')
    e(f's_cmp_eq_u32 s3, {W1}'); e(f's_cselect_b32 s{SW}, s22, s{SW}'); e(f's_cselect_b32 s{SW+1}, s23, s{SW+1}')
    c('the loads of the q-A wave go first')
    e('s_barrier')
    lab('L_first')
    e(f'buffer_load_dwordx4 v[{XP}:{XP+3}], v6, s[{SX}:{SX+3}], s61 offen')
    e(f'buffer_load_dwordx4 v[{XP+4}:{XP+7}], v6, s[{SX}:{SX+3}], s61 offen offset:16')
    for t in range(16):
        if t > Dp:
            e(f's_cbranch_vccnz L_nt{t}'); e(f's_waitcnt vmcnt({Dp})'); lab(f'L_nt{t}')
        e(f'buffer_load_dwordx4 v[{WT+4*t}:{WT+4*t+3}], v5, s[{SW}:{SW+3}], s60 offen {wpol}')
        if t < 15:
            if t & 3 == 3: e('s_add_u32 s60, s60, s63')
            else: e('s_addk_i32 s60, 0x2000')
    e('s_cbranch_vccz L_nb1'); e('s_barrier'); lab('L_nb1')
    if prio: e(f's_setprio {prio}')
    if FULL: e('v_writelane_b32 v1, s72, 0')
    stamp(10)
    basesel()
    e('s_mov_b32 s62, 0x03030303'); e('s_mov_b32 s63, 0x03030303')
    for k in range(4):
        e(f'v_cndmask_b32 v{SEL+2*k}, v62, v60, s[62:63]')
        e(f'v_cndmask_b32 v{SEL+2*k+1}, v62, v61, s[62:63]')
        if k < 3: e('s_lshl_b64 s[62:63], s[62:63], 2')
    e('v_and_b32 v3, 7, v0')
    e(f'v_mov_b32 v59, {L_FLAG}'); e('v_mov_b32 v60, 0xff'); e('v_mov_b32 v61, 1.0')
    srd(SWS, 28, WSBYTES)
    e(f's_mul_i32 s68, s2, {STRIDE}'); e(f's_add_u32 s68, s68, {BASE}')
    e('s_cmp_lt_u32 s79, 2'); e('s_cbranch_scc1 L_finisher')
    for r in range(4): e(f'v_mov_b32 v{DD+r}, 0')
    e('s_mov_b32 s98, 0')
    e(f's_cmp_eq_u32 s3, {W3}'); e(f's_cselect_b32 s76, 1024, 0'); e('s_add_u32 s76, s76, s68'); e(f's_add_u32 s76, s76, {QBO}')
    c('q gather lane offset: two producers per load')
    e('v_lshrrev_b32 v8, 5, v0'); e('v_bfe_u32 v9, v0, 3, 2')
    e('v_lshlrev_b32 v12, 8, v9'); e('v_lshl_add_u32 v12, v3, 4, v12')
    e('v_lshlrev_b32 v11, 6, v9'); e('v_lshl_add_u32 v11, v3, 1, v11')
    e(f's_mov_b32 s60, {8*STRIDE}'); e('v_mul_lo_u32 v10, v8, s60'); e('v_add_u32 v10, v10, v12')
    e('s_and_b32 s60, s2, 0xc7')
    e(f's_mul_i32 s74, s60, {STRIDE}'); e('s_lshl_b32 s61, s53, 7'); e('s_add_u32 s74, s74, s61'); e(f's_add_u32 s74, s74, {QAO+BASE}')
    for k in range(1, 4): e(f's_add_u32 s{84+k}, s74, {16*k*STRIDE}')
    e('s_waitcnt lgkmcnt(0)')
    tags()
    e('s_waitcnt vmcnt(0)')
    stamp(11)
    lab('L_projmm')
    c('D[chunk][(b,i)] += sum_t W_t x delta(XP_t), scaled by v61')
    for t in range(16):
        r = RR + 4 * (t & 1)
        for k in range(4):
            e(f'v_perm_b32 v{r+k}, v{XP+(t>>1)}, v{XP+(t>>1)}, v{SEL+2*k+(t&1)}')
        if t > 0:
            tp = t - 1; rp = RR + 4 * (tp & 1)
            e(f'v_mfma_f32_16x16x32_bf16 v[{DD}:{DD+3}], v[{WT+4*tp}:{WT+4*tp+3}], v[{rp}:{rp+3}], v[{DD}:{DD+3}]')
    e('s_nop 0')
    e(f'v_mfma_f32_16x16x32_bf16 v[{DD}:{DD+3}], v[{WT+60}:{WT+63}], v[{RR+4}:{RR+7}], v[{DD}:{DD+3}]')
    e(f's_mov_b32 s60, {SPIN}')
    e(f's_cmp_eq_u32 s3, {W3}')
    e('s_nop 5')
    for r in range(4): e(f'v_mul_f32 v{DD+r}, v{DD+r}, v61')
    puttag(DD, 4, 60)
    e('s_cbranch_scc1 L_qa0')
    e(f'buffer_store_dwordx4 v[{DD}:{DD+3}], v14, s[{SWS}:{SWS+3}], s76 offen sc1')
    e('s_cmp_eq_u32 s98, 1'); e('s_cbranch_scc1 L_ret_fin')
    stamp(1)
    e('s_branch L_ret_qb')
    lab('L_qa0')
    c('q of branch A: publish the k-slice in the cache of this die first, gather the eight slices')
    e(f'buffer_store_dwordx4 v[{DD}:{DD+3}], v14, s[{SWS}:{SWS+3}], s76 offen')
    stamp(1)
    lab('L_qa')
    if qslp: e(f's_sleep {qslp}')
    for k in range(4):
        e(f'buffer_load_dwordx4 v[{64+4*k}:{64+4*k+3}], v10, s[{SWS}:{SWS+3}], s{74 if k == 0 else 84+k} offen sc1')
    e('s_sub_u32 s60, s60, 1'); e('s_cbranch_scc1 L_exit')
    for k in range(4):
        e(f's_waitcnt vmcnt({3-k})')
        untag(64 + 4 * k, 4, 8, first=(k == 0))
        if k > 0:
            for r in range(4): e(f'v_add_f32 v{64+r}, v{64+r}, v{64+4*k+r}')
    e('v_and_b32 v8, 0xff, v8'); e('v_cmp_ne_u32 vcc, 0, v8'); e('s_cbranch_vccnz L_qafail')
    e('v_permlane32_swap_b32 v64, v66'); e('v_permlane32_swap_b32 v65, v67')
    e('v_add_f32 v64, v64, v66'); e('v_add_f32 v65, v65, v67')
    e('v_and_b32 v8, 32, v0'); e('v_add_u32 v11, v11, v8')
    e('v_cvt_pk_bf16_f32 v64, v64, v65')
    e('v_mov_b32 v8, 1'); e('v_mov_b32 v9, s93')
    e(f'ds_write_b16 v11, v64 offset:{L_QA}'); e(f'ds_write_b16_d16_hi v11, v64 offset:{L_QA+16}')
    e('ds_write_b32 v59, v9 offset:16'); e('ds_write_b32 v59, v8 offset:12')
    stamp(2)
    c('write the slice through to memory for readers on other dies')
    if tRe: waitprog('L_waitre', tRe)
    if rewb == 0:
        e(f'buffer_store_dwordx4 v[{DD}:{DD+3}], v14, s[{SWS}:{SWS+3}], s76 offen sc1')
    elif rewb == 1:
        e('buffer_wbl2 sc1')
    else:
        e(f's_and_b32 s60, s31, {rewb-1}'); e('s_cbranch_scc1 L_nowb'); e('buffer_wbl2 sc1'); lab('L_nowb')
    if dryV:
        c('run the V loop and the publish code once through zero-size descriptors (instruction cache warm-up)')
        e('s_waitcnt vmcnt(0)')
        e('s_setprio 0')
        srd(SL, 8, 0); e(f's_mov_b32 s{SWS+2}, 0')
        e('s_mov_b32 s54, 0'); e('s_mov_b32 s55, 0'); e('s_mov_b32 s84, 0'); e('s_mov_b32 s88, 0'); e('s_mov_b32 s56, 1'); e('s_mov_b32 s57, 3'); e('s_mov_b32 s66, 0'); e('s_mov_b32 s67, 2'); e('s_mov_b32 s69, 0'); e('s_mov_b32 s59, 0')
        e(f'v_mov_b32 v{SAVE+6}, {L_FLAG+40}'); e('v_mov_b32 v41, 0'); e('s_mov_b64 vcc, 0')
        e('v_mov_b32 v38, 0'); e('v_mov_b32 v42, 0'); e('v_mov_b32 v15, 0'); e(f'v_mov_b32 v{SAVE+4}, 0')
        e('s_branch L_bodyV')
    else:
        e('s_branch L_exit')
    lab('L_qafail')
    e(f's_cmp_eq_u32 s60, {SPIN-KF}'); e('s_cbranch_scc0 L_qa')
    e(f'buffer_store_dwordx4 v[{DD}:{DD+3}], v14, s[{SWS}:{SWS+3}], s76 offen sc1')
    e('s_branch L_qa')
    lab('L_str_pro')
    e('s_lshl_b32 s60, s53, 5'); e('s_add_u32 s60, s60, s52'); e('s_lshl_b32 s60, s60, 2')
    e('s_and_b32 s62, s31, 3'); e('s_add_u32 s65, s60, s62')
    e('v_and_b32 v10, 3, v0'); e('v_bfe_u32 v9, v0, 2, 2')
    e('v_lshl_add_u32 v10, v2, 2, v10')
    e('v_lshlrev_b32 v10, 4, v10')
    e('v_lshl_add_u32 v42, v9, 8, v10')
    e('s_and_b32 s64, s3, 1')
    assert NH == 0
    def itmask(lay):
        ld, wv, wg, cc = lay
        used = list(ld) + [wv] + list(wg)
        return [b for b in range(12, 22) if b not in used]
    def layout(lay, sSt, sB0):
        ld, wv, wg, cc = lay
        itb = itmask(lay)
        first = True
        for k in range(8):
            if cc[k] == 0: continue
            e(f's_bitcmp1_b32 s65, {k}')
            if first: e(f's_cselect_b32 s60, {cc[k]}, 0'); first = False
            else: e(f's_cselect_b32 s61, {cc[k]}, 0'); e('s_add_u32 s60, s60, s61')
        e(f's_lshl_b32 s{sB0}, s64, {wv}')
        def deposit(dst, src, srcbit, bits, init):
            k = 0
            while k < len(bits):
                n = 1
                while k + n < len(bits) and bits[k + n] == bits[k] + n: n += 1
                e(f's_bfe_u32 s61, s{src}, 0x{(n << 16) | (srcbit + k):x}')
                if init: e(f's_lshl_b32 s{dst}, s61, {bits[k]}'); init = False
                else: e(f's_lshl_b32 s61, s61, {bits[k]}'); e(f's_or_b32 s{dst}, s{dst}, s61')
                k += n
        deposit(sB0, 65, 0, wg, False)
        if any(v & 1 for v in cc): deposit(sB0, 60, 0, [ld[1]], False)
        deposit(sSt, 60, 1, itb, True)
    def usepass(lay, sSt, sB0):
        ld = lay[0]
        e(f's_mov_b32 s54, s{sSt}'); e(f's_mov_b32 s55, {sum(1 << b for b in itmask(lay))}')
        e(f's_mov_b32 s84, s{sB0}'); e(f's_xor_b32 s85, s84, {1 << ld[0]}'); e(f's_xor_b32 s86, s84, {1 << ld[1]}'); e(f's_xor_b32 s87, s85, {1 << ld[1]}')
    LA = LAY_A[layA]; LB = LAY_B[layB]
    layout(LA, 58, 76)
    usepass(LA, 58, 76)
    e('s_lshr_b32 s60, s65, 2'); e('s_lshl_b32 s60, s60, 22')
    e(f'v_mov_b32 v40, {L_FLAG}'); e('v_mov_b32 v4, 0'); e('v_mov_b32 v5, 0')
    for o in (0, 8, 16, 24, 32): e(f'ds_write_b64 v40, v[4:5] offset:{o}')
    e('s_waitcnt lgkmcnt(0)')
    srd(SL, 6, 1 << 22, 's60')
    e('s_add_u32 s88, s54, s84')
    e('s_barrier')
    def load(t, j): e(f'buffer_load_dwordx4 v[{RING+16*t+4*j}:{RING+16*t+4*j+3}], v42, s[{SL}:{SL+3}], s88 offen offset:{1024*j} {pol}')
    def adv(t):
        if t == 3:
            e('s_orn2_b32 s54, s54, s55'); e('s_add_u32 s54, s54, 1'); e('s_and_b32 s54, s54, s55')
        else:
            e('s_nop 0')
        e(f's_add_u32 s88, s54, s{84 + ((t + 1) & 3)}')
    def ringload(n0, n1):
        for n in range(n0, n1):
            if n > Dr: e(f's_waitcnt vmcnt({Dr})')
            load(n >> 2, n & 3)
            if n & 3 == 3: adv(n >> 2)
    ringload(0, min(16, Dr + 1))
    if FULL: e('v_writelane_b32 v1, s72, 0')
    e('v_mov_b32 v13, v42')
    e('v_lshl_add_u32 v15, v9, 9, v10')
    e(f'v_add_u32 v38, {L_QA}, v10')
    e(f'v_lshl_add_u32 v39, v9, 8, v38'); e(f'v_add_u32 v39, {L_QB-L_QA}, v39')
    e('s_lshl_b32 s60, s64, 13'); e(f's_add_u32 s60, s60, {L_SA}')
    e(f'v_lshl_add_u32 v{SAVE}, v2, 4, s60')
    e(f'v_lshl_add_u32 v8, v2, 2, v9'); e(f's_add_u32 s60, s60, {L_SB-L_SA}')
    e(f'v_lshl_add_u32 v{SAVE+1}, v8, 4, s60')
    e(f'v_mov_b32 v{SAVE+3}, 0xff'); e(f'v_lshlrev_b32 v{SAVE+4}, 3, v0')
    basesel()
    e('s_mov_b32 s62, 0x33333333'); e('s_mov_b32 s63, 0x33333333')
    e('v_cndmask_b32 v34, v62, v60, s[62:63]'); e('v_cndmask_b32 v35, v62, v61, s[62:63]')
    e('v_cndmask_b32 v36, v60, v62, s[62:63]'); e('v_cndmask_b32 v37, v61, v62, s[62:63]')
    e('v_mov_b32 v41, 1')
    e(f's_mov_b32 s59, 0x{f32(128**-0.5*1.4426950408889634):08x}')
    srd(SWS, 28, WSBYTES)
    e(f's_mul_i32 s68, s2, {STRIDE}'); e(f's_mul_i32 s60, s64, {RA}'); e('s_add_u32 s68, s68, s60')
    e('s_mov_b32 s82, 0')
    c('pass 0: K of A')
    e(f's_mov_b32 s56, {NPK}'); e('s_mov_b32 s57, 0'); e(f's_mov_b32 s78, {freeT}')
    c('tiles that may keep one more load in flight: the even dies see a slightly longer memory latency')
    e('s_getreg_b32 s60, hwreg(HW_REG_XCC_ID, 0, 1)'); e('s_cmp_eq_u32 s60, 0'); e(f's_mov_b32 s60, {mO + (mOV << 8)}'); e(f's_cselect_b32 s74, {mE + (mEV << 8)}, s60')
    if xmask:
        e('s_getreg_b32 s60, hwreg(HW_REG_XCC_ID, 0, 3)'); e(f's_bitcmp1_b32 {xmask}, s60'); e('s_cselect_b32 s74, 0xffff, s74')
    e('s_lshl_b32 s60, s64, 2'); e('s_lshr_b32 s74, s74, s60'); e('s_mov_b32 s75, s74')
    e(f's_add_u32 s60, s60, {L_FLAG+24}'); e(f'v_mov_b32 v{SAVE+6}, s60'); e(f'v_mov_b32 v{SAVE+5}, 0')
    e(f'v_mov_b32 v11, v{SAVE}')
    layout(LB, 77, 79)
    e('s_mov_b32 s66, 64'); e('s_mov_b32 s62, 0x00010001'); e('s_mov_b32 s63, 0x00010001')
    e(f'v_mov_b32 v10, 0x{f32(-3.0e38):08x}')
    ringload(min(16, Dr + 1), 16)
    stamp(10)
    e(f's_mov_b32 s60, {SPIN*4}')
    lab('L_waitqa')
    e('ds_read_b32 v4, v40 offset:12'); e('ds_read_b32 v5, v40 offset:16'); e(f'ds_read_b128 v[{QQ}:{QQ+3}], v38')
    e('s_waitcnt lgkmcnt(0)'); e('v_readfirstlane_b32 s61, v4'); e('v_readfirstlane_b32 s93, v5')
    e('s_sub_u32 s60, s60, 1'); e('s_cbranch_scc1 L_exit')
    e('s_cmp_eq_u32 s61, 0'); e('s_cbranch_scc1 L_waitqa')
    tags()
    stamp(2)
    if NH:
        e('s_cmp_eq_u32 s76, 0'); e('s_cbranch_scc1 L_loopK')
        e(f's_mov_b32 s{SL+2}, 0'); e('s_mov_b32 s56, 1'); e('s_mov_b32 s57, 4'); e('s_mov_b32 s69, 0'); e('s_mov_b64 vcc, -1')
        e(f'v_mov_b32 v{SAVE+6}, {L_FLAG+40}')
        e('s_branch L_bodyK')
    nthr = [0]
    def thr():
        nthr[0] += 1; n = nthr[0]
        e(f's_cbranch_vccnz L_thf{n}'); e(f's_cbranch_scc1 L_thd{n}'); e(f's_waitcnt vmcnt({D})')
        lab(f'L_thd{n}'); e(f's_waitcnt vmcnt({D2})'); lab(f'L_thf{n}'); e('s_waitcnt vmcnt(15)')
    def looptop(x):
        lab(f'L_loop{x}')
        if DIAG == 2:
            e('s_memrealtime s[70:71]'); e('s_and_b32 m0, s82, 63'); e('s_cmp_lt_u32 s82, 64'); e('s_waitcnt lgkmcnt(0)')
            e(f's_cbranch_scc0 L_st2{x}'); e('v_writelane_b32 v3, s70, m0'); e(f's_branch L_st3{x}')
            lab(f'L_st2{x}'); e('v_writelane_b32 v43, s70, m0'); lab(f'L_st3{x}'); e('s_add_u32 s82, s82, 1')
        c('depth level from the pace keeper')
        e('s_waitcnt lgkmcnt(0)'); e(f'v_readfirstlane_b32 s60, v{SAVE+5}')
        e(f'ds_read_b32 v{SAVE+5}, v{SAVE+6} offset:8')
        e('s_or_b32 s69, s75, s60')
        e('s_cmp_le_u32 s56, s78'); e('s_cselect_b64 vcc, -1, 0')
        if thF:
            e('s_bitcmp1_b32 s60, 4'); e('s_cselect_b64 vcc, -1, vcc')
        e('s_cmp_eq_u32 s56, 1'); e(f's_cbranch_scc1 L_switch{x}')
        lab(f'L_body{x}')
    def count():
        e('s_mov_b64 exec, 1'); e(f'ds_add_u32 v{SAVE+6}, v41'); e('s_mov_b64 exec, -1')
    looptop('K')
    for t in range(4):
        K = RING + 16 * t
        count(); e(f's_bitcmp1_b32 s69, {t}')
        for j in range(4):
            thr()
            e(f'v_mfma_f32_16x16x32_bf16 v[{QD+4*j}:{QD+4*j+3}], v[{K+4*j}:{K+4*j+3}], v[{QQ}:{QQ+3}], 0')
            load(t, j)
        adv(t)
        e('s_nop 1')
        S = 4 if t % 2 == 0 else 16
        for k in range(4):
            for j in range(4):
                if k == 0: e(f'v_mov_b32_dpp v{S+j}, v{QD+4*j} quad_perm:[0,0,0,0] row_mask:0xf bank_mask:0xf')
                else: e(f'v_add_f32_dpp v{S+j}, v{QD+4*j+k}, v{S+j} quad_perm:[{k},{k},{k},{k}] row_mask:0xf bank_mask:0xf')
        e(f'v_max3_f32 v10, v10, v{S}, v{S+1}'); e(f'v_max3_f32 v10, v10, v{S+2}, v{S+3}')
        e('s_mov_b64 exec, s[62:63]'); e(f'ds_write_b128 v11, v[{S}:{S+3}]'); e('s_mov_b64 exec, -1')
        e('v_add_u32 v11, s66, v11')
    e('s_sub_u32 s56, s56, 1'); e('s_cmp_lg_u32 s56, 0'); e('s_cbranch_scc1 L_loopK')
    c('end of a K pass: exact maximum of the scores of this wave')
    e('s_cmp_eq_u32 s57, 1'); e('s_cbranch_scc0 L_endK')
    e(f'v_mov_b32 v38, v{SAVE+1}')
    e(f'ds_read_b128 v[{QD}:{QD+3}], v38')
    lab('L_endK')
    e('v_mov_b32 v9, v10'); e('s_nop 1'); e('v_permlane32_swap_b32 v10, v9'); e('v_max_f32 v10, v10, v9')
    e('v_mov_b32 v9, v10'); e(f's_mov_b32 s56, {NP_B}'); e('s_nop 0'); e('v_permlane16_swap_b32 v10, v9'); e('v_max_f32 v10, v10, v9')
    e('s_cbranch_scc0 L_endKA')
    e('s_mov_b32 s57, 2')
    lab('L_startV')
    c('V pass: scores at v38 (stride s66), maximum v10')
    e('v_add_u32 v38, s66, v38')
    e('s_lshr_b32 s75, s74, 8')
    e('v_mul_f32 v11, s59, v10'); e('v_sub_f32 v11, 0, v11')
    e('v_mov_b32 v12, 0')
    for r in range(8): e(f'v_mov_b32 v{16+r}, 0')
    if FULL:
        e('s_memrealtime s[70:71]'); e('s_add_u32 s60, s57, 2'); e('s_mov_b32 m0, s60'); e('s_waitcnt lgkmcnt(0)'); e('v_writelane_b32 v1, s70, m0')
    looptop('V')
    for t in range(4):
        V = RING + 16 * t
        e(f's_bitcmp1_b32 s69, {t}')
        e('s_waitcnt lgkmcnt(%d)' % (1 if t == 0 else 0))
        for r in range(4): e(f'v_fma_f32 v{4+r}, v{QD+r}, s59, v11')
        e(f'ds_read_b128 v[{QD}:{QD+3}], v38'); e('v_add_u32 v38, s66, v38')
        count()
        for r in range(4): e(f'v_exp_f32 v{4+r}, v{4+r}')
        e('s_nop 0')
        e('v_cvt_pk_bf16_f32 v24, v4, v5'); e('v_cvt_pk_bf16_f32 v25, v6, v7')
        e('v_add_f32 v8, v4, v5'); e('v_add_f32 v9, v6, v7')
        for r in range(4):
            e(f'v_perm_b32 v{26+2*r}, v{24+(r>>1)}, v{24+(r>>1)}, v{34+(r&1)}')
            e(f'v_perm_b32 v{27+2*r}, v{24+(r>>1)}, v{24+(r>>1)}, v{36+(r&1)}')
        e('v_add_f32 v8, v8, v9'); e('v_add_f32 v12, v12, v8')
        for r in range(4):
            thr()
            e(f'v_mfma_f32_16x16x16_bf16 v[16:19], v[{V+4*r}:{V+4*r+1}], v[{26+2*r}:{27+2*r}], v[16:19]')
            e(f'v_mfma_f32_16x16x16_bf16 v[20:23], v[{V+4*r+2}:{V+4*r+3}], v[{26+2*r}:{27+2*r}], v[20:23]')
            load(t, r)
        adv(t)
    e('s_sub_u32 s56, s56, 1'); e('s_cmp_lg_u32 s56, 0'); e('s_cbranch_scc1 L_loopV')
    e('v_mov_b32 v9, v12'); e('v_mul_f32 v4, s59, v10')
    e('s_cmp_eq_u32 s57, 2'); e('s_cbranch_scc1 L_endVB')
    c('reduce l, publish the A partial')
    e('v_permlane32_swap_b32 v12, v9'); e('v_add_f32 v12, v12, v9')
    e('v_mov_b32 v9, v12')
    puttag(24, 8, SAVE + 3, src=16)
    e('v_permlane16_swap_b32 v12, v9'); e('v_add_f32 v5, v12, v9'); e('v_mov_b32 v6, s94'); e('v_mov_b32 v7, s95')
    stamp(6)
    if DIAG == 4:
        e('s_memrealtime s[70:71]'); e('s_waitcnt lgkmcnt(0)'); e('v_mov_b32 v8, s70'); e(f'ds_write_b32 v{SAVE+6}, v8 offset:24')
    e('s_cmp_eq_u32 s67, 2'); e('s_cbranch_scc0 L_pubslow')
    def pubA(p):
        e('s_mov_b32 exec_lo, 0x000f000f'); e('s_mov_b32 exec_hi, 0x000f000f')
        e(f'buffer_store_dwordx4 v[24:27], v15, s[{SWS}:{SWS+3}], s68 offen offset:{BASE+128} {p}')
        e(f'buffer_store_dwordx4 v[28:31], v15, s[{SWS}:{SWS+3}], s68 offen offset:{BASE+384} {p}')
        e('s_mov_b64 exec, 0x5555')
        e(f'buffer_store_dwordx4 v[4:7], v{SAVE+4}, s[{SWS}:{SWS+3}], s68 offen offset:{BASE} {p}')
        if sig:
            e('s_mov_b64 exec, 1'); e(f'ds_add_u32 v{SAVE+6}, v41')
        e('s_branch L_exit')
    pubA('')
    lab('L_pubslow')
    pubA('sc1')
    lab('L_endVB')
    c('hand the B state to the B finisher through LDS')
    e(f'v_mov_b32 v38, v{SAVE}'); e('v_mov_b32 v5, v12')
    e('s_mul_i32 s60, s64, 2560'); e('v_add_u32 v8, s60, v14'); e(f'v_add_u32 v9, s60, v{SAVE+4}')
    e('ds_write_b128 v8, v[16:19]'); e('ds_write_b128 v8, v[20:23] offset:1024'); e('ds_write_b64 v9, v[4:5] offset:2048')
    e('s_mov_b64 exec, 1'); e('ds_add_u32 v40, v41 offset:8'); e('s_mov_b64 exec, -1')
    e(f'ds_read_b128 v[{QD}:{QD+3}], v38')
    e(f's_mov_b32 s56, {NP_A}'); e('s_mov_b32 s57, 3'); e('s_mov_b32 s66, 64'); e(f's_mov_b32 s78, {nfree}')
    e(f'v_mov_b32 v10, v{SAVE+2}')
    e('s_waitcnt lgkmcnt(2)')
    e('s_branch L_startV')
    lab('L_endKA')
    if NH:
        e('s_cmp_eq_u32 s57, 4'); e('s_cbranch_scc0 L_endKA2')
        c('helper: leave the maximum for the streaming wave')
        e('s_lshl_b32 s60, s3, 2'); e(f'v_add_u32 v8, s60, v40')
        e('s_mov_b64 exec, 1'); e(f'ds_write_b32 v8, v10 offset:{48-4*WH}'); e('ds_add_u32 v40, v41 offset:4')
        e('s_branch L_exit')
        lab('L_endKA2')
    e(f's_mov_b32 s60, {SPIN*4}')
    lab('L_waitqb')
    e('ds_read_b64 v[8:9], v40')
    if NH: e(f'ds_read_b32 v4, v{SAVE+6} offset:24')
    if NH == 4: e(f'ds_read_b32 v5, v{SAVE+6} offset:32')
    e(f'ds_read_b128 v[{QQ}:{QQ+3}], v39')
    e('s_waitcnt lgkmcnt(0)'); e('v_readfirstlane_b32 s67, v8'); e('v_readfirstlane_b32 s61, v9')
    e('s_sub_u32 s60, s60, 1'); e('s_cbranch_scc1 L_exit')
    e('s_cmp_eq_u32 s67, 0'); e('s_cbranch_scc1 L_waitqb')
    if NH:
        e(f's_cmp_lt_u32 s61, {NH}'); e('s_cbranch_scc1 L_waitqb')
        e('v_max_f32 v10, v10, v4')
        if NH == 4: e('v_max_f32 v10, v10, v5')
    e(f'v_mov_b32 v{SAVE+2}, v10')
    e('s_mov_b32 s57, 1')
    e(f'v_mov_b32 v11, v{SAVE+1}'); e('s_movk_i32 s66, 0x100'); e('s_mov_b32 s62, 0x11111111'); e('s_mov_b32 s63, 0x11111111')
    e(f'v_mov_b32 v10, 0x{f32(-3.0e38):08x}')
    stamp(3)
    e('s_branch L_loopK')
    def switch(ptr, lg, vreg, body):
        e(f's_lshr_b32 s60, s65, {22-lg}'); e('s_lshl_b32 s60, s60, 22')
        srd(SL, ptr, 1 << 22, 's60')
        if lg == 18: usepass(LB, 77, 79)
        else: usepass(LA, 58, 76)
        e('s_add_u32 s88, s54, s84')
        e(f'v_mov_b32 v42, v{vreg}')
        e(f's_branch {body}')
    lab('L_switchK')
    e('s_cmp_eq_u32 s57, 0'); e('s_cbranch_scc0 L_sw1')
    switch(16, 18, 13, 'L_bodyK')
    lab('L_sw1')
    switch(18, 18, 14, 'L_bodyK')
    lab('L_switchV')
    e(f's_mov_b32 s{SL+2}, 0')
    e('s_cmp_eq_u32 s57, 2'); e('s_cbranch_scc0 L_bodyV')
    switch(8, 20, 14, 'L_bodyV')
    lab('L_ret_qb')
    c('publish the die id of this workgroup')
    e('s_getreg_b32 s67, hwreg(HW_REG_XCC_ID, 0, 4)')
    e('v_mov_b32 v44, s67'); e('v_mov_b32 v45, s67'); e('v_mov_b32 v46, s94'); e('v_mov_b32 v47, s95')
    e(f's_add_u32 s60, s68, {IDO}')
    e('s_mov_b64 exec, 0xff')
    e(f'buffer_store_dwordx4 v[44:47], v14, s[{SWS}:{SWS+3}], s60 offen sc1')
    e('s_mov_b64 exec, -1')
    e(f'v_and_b32 v8, 31, v0'); e(f's_mov_b32 s60, {8*STRIDE}'); e('v_mul_lo_u32 v13, v8, s60')
    e(f's_mul_i32 s75, s30, {STRIDE}'); e(f's_add_u32 s75, s75, {IDO+BASE}')
    e('v_lshrrev_b32 v15, 5, v0'); e('v_lshl_add_u32 v11, v15, 8, v11')
    waitprog('L_waitq', NPK - tQ)
    e(f's_mov_b32 s62, {SPIN}')
    e('s_branch L_qg1')
    lab('L_qg')
    e('s_sleep 32')
    lab('L_qg1')
    e(f's_mul_i32 s60, s30, {STRIDE*32}'); e('s_lshl_b32 s61, s53, 7'); e('s_add_u32 s60, s60, s61'); e(f's_add_u32 s60, s60, {QBO+BASE}')
    for a in range(2):
        for p in range(8):
            n = a * 8 + p
            if gD < 16: e(f's_waitcnt vmcnt({gD})')
            e(f'buffer_load_dwordx4 v[{64+4*n}:{64+4*n+3}], v10, s[{SWS}:{SWS+3}], s60 offen sc1')
            if p < 7: e(f's_add_u32 s60, s60, {STRIDE}')
        if a == 0: e(f's_add_u32 s60, s60, {9*STRIDE}')
    e(f'buffer_load_dwordx4 v[44:47], v13, s[{SWS}:{SWS+3}], s75 offen sc1')
    e('s_sub_u32 s62, s62, 1'); e('s_cbranch_scc1 L_exit')
    e('s_waitcnt vmcnt(0)')
    untag(64, 64, 8)
    e('v_xor_b32 v46, s94, v46'); e('v_xor_b32 v47, s95, v47'); e('v_or_b32 v46, v46, v47')
    e('v_and_or_b32 v8, v8, v60, v46'); e('v_cmp_ne_u32 vcc, 0, v8'); e('s_cbranch_vccnz L_qg')
    c('flag value 2: all 32 workgroups of the group share this die, 1: they do not')
    e('v_cmp_ne_u32 vcc, s67, v44'); e('s_cmp_eq_u64 vcc, 0'); e(f's_cselect_b32 s67, {2 if local else 1}, 1')
    for a in range(2):
        for p in range(1, 8):
            for r in range(4): e(f'v_add_f32 v{64+32*a+r}, v{64+32*a+r}, v{64+32*a+4*p+r}')
        for r in range(4):
            e(f'v_cvt_pk_bf16_f32 v{64+32*a+r}, v{64+32*a+r}, v{64+32*a+r}')
        for r in range(4):
            e(f'ds_write_b16 v11, v{64+32*a+r} offset:{L_QB + 512*a + 16*r}')
    e('v_mov_b32 v8, s67')
    e('ds_write_b32 v59, v8')
    stamp(4)
    e('s_branch L_exit')
    lab('L_finisher')
    O1 = 128; O2 = 144; M1 = 44; M2 = 160; AC = 48
    c('parameters: s74 record base (ML), s84..87 O offsets, s76 own Y, s80 Y gather, s77 out offset, s78 n0 stride, s79 is-B')
    e(f's_lshl_b32 s76, s79, 10'); e('s_mov_b32 s77, s76'); e(f's_add_u32 s76, s76, {YA}')
    e('s_cmp_eq_u32 s79, 0'); e('s_cbranch_scc0 L_parB')
    e('s_and_b32 s60, s2, 0xc7'); e(f's_mul_i32 s74, s60, {STRIDE}'); e(f's_add_u32 s74, s74, {BASE}'); e('s_add_u32 s75, s74, 128'); e(f's_mov_b32 s78, {RA}')
    e('s_branch L_par')
    lab('L_parB')
    e(f's_mul_i32 s74, s30, {STRIDE}'); e(f's_add_u32 s74, s74, {OB+BASE}'); e('s_lshr_b32 s60, s31, 3')
    e('s_lshl_b32 s61, s60, 9'); e('s_add_u32 s75, s74, s61'); e('s_add_u32 s75, s75, 128')
    e('s_lshl_b32 s61, s60, 5'); e('s_add_u32 s74, s74, s61'); e(f's_mov_b32 s78, {64*STRIDE}')
    lab('L_par')
    e('s_lshl_b32 s60, s53, 8'); e('s_add_u32 s84, s75, s60')
    e('s_add_u32 s85, s84, s78'); e(f's_add_u32 s86, s84, {32*STRIDE}'); e('s_add_u32 s87, s86, s78')
    for k in range(4): e(f's_add_u32 s{88+k}, s{84+k}, {128*STRIDE}')
    e(f's_add_u32 s92, s74, {128*STRIDE}')
    e(f's_mov_b32 s60, {8*STRIDE}')
    e('v_mul_lo_u32 v15, v2, s60'); e('v_add_u32 v15, v15, v4')
    e('v_and_b32 v8, 3, v0'); e('v_xor_b32 v8, v8, v2'); e('v_lshl_add_u32 v8, v7, 2, v8'); e('v_mul_lo_u32 v13, v8, s60')
    e('v_bfe_u32 v8, v0, 2, 1'); e('v_mul_lo_u32 v8, v8, s78'); e('v_add_u32 v13, v13, v8')
    lgy = NY.bit_length() - 1
    NC = 256 // NY
    e(f'v_lshrrev_b32 v8, {lgy}, v0'); e('v_and_b32 v9, 7, v8'); e('v_lshrrev_b32 v8, 3, v8'); e('v_lshl_add_u32 v8, v8, 5, v9')
    e(f's_mov_b32 s60, {STRIDE}'); e('v_mul_lo_u32 v12, v8, s60')
    e(f'v_and_b32 v10, {NY-1}, v0'); e('v_lshl_add_u32 v12, v10, 4, v12')
    c('LDS scratch addresses: v57 write, v58 read')
    e('s_lshl_b32 s60, s79, 8'); e(f's_add_u32 s60, s60, {L_X}')
    e('v_lshrrev_b32 v8, 1, v2'); e('v_lshlrev_b32 v8, 7, v8'); e('v_and_b32 v9, 1, v2'); e('v_lshl_add_u32 v8, v9, 2, v8')
    e('v_lshrrev_b32 v9, 1, v4'); e('v_add3_u32 v57, v8, v9, s60')
    e('v_lshlrev_b32 v8, 7, v7'); e('v_lshl_add_u32 v8, v2, 5, v8'); e('v_add_u32 v58, s60, v8')
    c('consumer role: s81 = 0 when this workgroup reduces outputs of its branch')
    e(f's_lshr_b32 s81, s2, {8-lgy}')
    if NY > 1:
        e(f's_mul_i32 s60, s79, {NY//2}'); e('s_xor_b32 s81, s81, s60')
    e('s_and_b32 s61, s2, 3'); e(f's_mul_i32 s80, s61, {8*STRIDE}'); e('s_add_u32 s80, s80, s76'); e(f's_add_u32 s80, s80, {BASE}')
    e(f's_and_b32 s63, s2, {NC-1}'); e('s_lshr_b32 s63, s63, 2'); e(f's_lshl_b32 s63, s63, {lgy}')
    e('s_lshl_b32 s60, s63, 4'); e('s_add_u32 s80, s80, s60')
    e('s_lshl_b32 s61, s61, 8'); e('s_add_u32 s77, s77, s61')
    e('s_lshr_b32 s61, s63, 4'); e('s_lshl_b32 s61, s61, 6'); e('s_add_u32 s77, s77, s61')
    e('s_bfe_u32 s61, s63, 0x10003'); e('s_lshl_b32 s61, s61, 11'); e('s_add_u32 s77, s77, s61')
    e('s_and_b32 s61, s63, 7'); e('s_lshl_b32 s61, s61, 1'); e('s_add_u32 s77, s77, s61')
    e('v_and_b32 v8, 1, v2'); e('v_lshrrev_b32 v9, 1, v2'); e('v_lshl_add_u32 v8, v8, 1, v9'); e('v_lshlrev_b32 v11, 4, v8')
    e('v_lshl_add_u32 v11, v10, 1, v11')
    e('s_add_u32 s76, s76, s68'); e('s_mov_b32 s98, 1')
    e(f'v_mov_b32 v{M2}, 0x{f32(-3.0e38):08x}')
    srd(SX, 24, 0)
    if dry:
        c('dry run of the tail code through zero-size descriptors (instruction cache warm-up)')
        e(f's_mov_b32 s{SWS+2}, 0'); e('s_mov_b32 s83, 1')
        for k in range(4): e(f's_mov_b32 s{TG+k}, 0')
        e('s_mov_b32 s94, 0'); e('s_mov_b32 s95, 0')
        e('s_branch L_fin')
    lab('L_real')
    e('s_mov_b64 exec, -1')
    e('s_mov_b32 s83, 0'); e(f's_mov_b32 s{SWS+2}, {WSBYTES}'); e(f's_mov_b32 s{SX+2}, 4096')
    waitlds('L_waittag', 12, 1)
    e('ds_read_b32 v8, v59 offset:16'); e('s_waitcnt vmcnt(0) lgkmcnt(0)'); e('v_readfirstlane_b32 s93, v8')
    tags()
    e('s_cmp_eq_u32 s79, 0'); e('s_cbranch_scc1 L_waitA')
    c('B finisher: merge the two B states, publish near the end')
    waitlds('L_waitB', 8, WS)
    BO = 128
    e('v_lshlrev_b32 v10, 3, v0')
    e('ds_read_b32 v53, v59')
    e(f'ds_read_b128 v[{BO}:{BO+3}], v14'); e(f'ds_read_b128 v[{BO+4}:{BO+7}], v14 offset:1024'); e('ds_read_b64 v[44:45], v10 offset:2048')
    e(f'ds_read_b128 v[{BO+8}:{BO+11}], v14 offset:2560'); e(f'ds_read_b128 v[{BO+12}:{BO+15}], v14 offset:3584'); e('ds_read_b64 v[46:47], v10 offset:4608')
    e('s_waitcnt lgkmcnt(0)')
    e('v_readfirstlane_b32 s67, v53')
    e('v_max_f32 v48, v44, v46'); e('v_sub_f32 v8, v44, v48'); e('v_sub_f32 v9, v46, v48'); e('v_exp_f32 v8, v8'); e('v_exp_f32 v9, v9'); e('s_nop 0')
    e('v_mul_f32 v49, v45, v8'); e('v_fmac_f32 v49, v47, v9')
    e('v_mov_b32 v50, v49'); e('s_nop 1'); e('v_permlane32_swap_b32 v49, v50'); e('v_add_f32 v49, v49, v50')
    e('v_mov_b32 v50, v49'); e('s_nop 1'); e('v_permlane16_swap_b32 v49, v50'); e('v_add_f32 v49, v49, v50')
    e('v_mov_b32 v50, s94'); e('v_mov_b32 v51, s95')
    for r in range(8):
        e(f'v_mul_f32 v{BO+r}, v{BO+r}, v8'); e(f'v_fmac_f32 v{BO+r}, v{BO+8+r}, v9')
    puttag(BO, 8, 60)
    e('v_and_b32 v8, 3, v0'); e('v_lshl_add_u32 v8, v2, 2, v8'); e('v_lshlrev_b32 v8, 4, v8'); e('v_bfe_u32 v9, v0, 2, 2'); e('v_lshl_add_u32 v52, v9, 9, v8')
    stamp(3)
    waitprog('L_waitpub', NIT - tPub)
    e(f's_add_u32 s60, s68, {OB}')
    def pubB(p):
        e(f'buffer_store_dwordx4 v[{BO}:{BO+3}], v52, s[{SWS}:{SWS+3}], s60 offen offset:128 {p}')
        e(f'buffer_store_dwordx4 v[{BO+4}:{BO+7}], v52, s[{SWS}:{SWS+3}], s60 offen offset:384 {p}')
        e('s_mov_b64 exec, 0x5555')
        e(f'buffer_store_dwordx4 v[48:51], v10, s[{SWS}:{SWS+3}], s60 offen {p}')
        e('s_mov_b64 exec, -1')
    e('s_cmp_eq_u32 s67, 2'); e('s_cbranch_scc1 L_pubBfast')
    pubB('sc1')
    e('s_branch L_pubBdone')
    lab('L_pubBfast')
    pubB('')
    lab('L_pubBdone')
    e('s_waitcnt vmcnt(0)')
    if tG >= 0: waitprog('L_waitg', NIT - tG)
    e('s_branch L_fin1')
    lab('L_waitA')
    if ctl:
        c('pace keeper: a wave that lags behind the mean progress of its group keeps one more load in flight')
        e(f's_lshl_b32 s61, s30, 7'); e(f's_add_u32 s96, s61, {PGO}')
        e('s_lshl_b32 s61, s31, 2'); e('v_mov_b32 v44, s61')
        e('v_and_b32 v45, 31, v0'); e('v_lshlrev_b32 v45, 2, v45')
        e('s_and_b32 s97, s94, 0xffff0000')
        e('v_mov_b32 v50, 0'); e('v_mov_b32 v51, 0')
        BIAS = 4096
        c('group leader: s54 true group sum, s55 last reported, s56 reported before that, s57 offset folded into the own word, s58 first-report mark')
        e('s_mov_b32 s54, 0'); e('s_mov_b32 s55, 0'); e('s_mov_b32 s56, 0'); e('s_mov_b32 s57, 0'); e(f's_mov_b32 s58, {1<<24}')
        e(f's_mov_b32 s60, {SPIN*4}')
        lab('L_ctl')
        if cslp: e(f's_sleep {cslp}')
        e('ds_read_b64 v[8:9], v59 offset:24'); e(f's_add_u32 s63, s57, {BIAS}'); e('s_waitcnt lgkmcnt(0)')
        e('v_add_u32 v46, v8, v9'); e('v_add_u32 v47, s63, v46')
        e('v_readfirstlane_b32 s61, v46'); e('v_or_b32 v47, s97, v47')
        e('s_mov_b64 exec, 1'); e(f'buffer_store_dword v47, v44, s[{SWS}:{SWS+3}], s96 offen'); e('s_mov_b64 exec, -1')
        e('s_sub_u32 s60, s60, 1'); e('s_cbranch_scc1 L_exit')
        e(f's_cmp_ge_u32 s61, {8*(NIT-ctlend)}'); e('s_cbranch_scc1 L_ctlend')
        e(f'buffer_load_dword v48, v45, s[{SWS}:{SWS+3}], s96 offen sc1')
        e('v_add_u32 v50, v50, v8'); e('v_add_u32 v51, v51, v9')
        e('s_mov_b32 s59, s57')
        if xctl:
            e('s_cmp_eq_u32 s54, 0'); e('s_cbranch_scc1 L_nox')
            if xdiv > 1:
                e(f's_and_b32 s62, s60, {xdiv-1}'); e('s_cbranch_scc1 L_nox')
            e('s_sub_u32 s62, s54, s55'); e('s_add_u32 s62, s62, s58')
            e('s_atomic_add s62, s[26:27], 0 glc')
            e('s_mov_b32 s56, s55'); e('s_mov_b32 s55, s54')
            e('s_waitcnt lgkmcnt(0)')
            e('s_lshr_b32 s63, s62, 24'); e('s_or_b32 s63, s63, s58'); e('s_mov_b32 s58, 0')
            e('s_cmp_eq_u32 s63, 8'); e('s_cbranch_scc0 L_nox')
            e('s_and_b32 s62, s62, 0xffffff'); e('s_sub_u32 s62, s62, s56')
            e('s_add_u32 s63, s55, s56'); e('s_lshr_b32 s63, s63, 1'); e('s_mul_i32 s63, s63, 7')
            e('s_sub_u32 s62, s62, s63'); e(f's_ashr_i32 s62, s62, {3-xgain}')
            e('s_min_i32 s62, s62, 2048'); e('s_max_i32 s62, s62, -2048')
            if xsm:
                e(f's_mul_i32 s57, s57, {(1<<xsm)-1}'); e('s_add_u32 s57, s57, s62'); e(f's_ashr_i32 s57, s57, {xsm}')
            else:
                e('s_mov_b32 s57, s62')
            if xnull: e('s_mov_b32 s57, 0')
            lab('L_nox')
        e('s_waitcnt vmcnt(0)')
        e('v_xor_b32 v48, s97, v48'); e('v_cmp_lt_u32 vcc, 0xffff, v48')
        for d in (8, 4, 2, 1):
            e('s_nop 1'); e(f'v_add_u32_dpp v48, v48, v48 row_ror:{d} row_mask:0xf bank_mask:0xf')
        e('v_mov_b32 v49, v48'); e('s_nop 1'); e('v_permlane16_swap_b32 v48, v49'); e('v_add_u32 v48, v48, v49')
        e(f'v_subrev_u32 v48, {32*BIAS}, v48')
        e('v_lshlrev_b32 v50, 5, v50'); e('v_lshlrev_b32 v51, 5, v51')
        e('v_readfirstlane_b32 s63, v48')
        e('v_sub_u32 v50, v48, v50'); e('v_sub_u32 v51, v48, v51')
        e('s_sub_u32 s63, s63, s59')
        e('s_cmp_eq_u64 vcc, 0'); e(f's_mov_b32 s62, {thU}'); e('s_cselect_b32 s62, s62, 0x7fffffff'); e('s_cselect_b32 s54, s63, s54')
        e('s_cmp_eq_u32 s31, 0'); e('s_cselect_b32 s54, s54, 0')
        for r in (50, 51):
            e(f'v_cmp_lt_i32 vcc, s62, v{r}'); e('s_nop 1'); e(f'v_cndmask_b32 v{r+2}, 0, 15, vcc')
            if thF:
                e(f's_max_i32 s63, s62, {thF}'); e(f'v_cmp_lt_i32 vcc, s63, v{r}'); e('s_nop 1'); e(f'v_cndmask_b32 v{r+2}, v{r+2}, 31, vcc')
        e('ds_write_b64 v59, v[52:53] offset:32')
        e('v_mov_b32 v50, v8'); e('v_mov_b32 v51, v9')
        e('s_branch L_ctl')
        lab('L_ctlend')
    if tpre:
        c('touch the records once so that later polls find them in the cache')
        e(f'buffer_load_dwordx4 v[{M1}:{M1+3}], v13, s[{SWS}:{SWS+3}], s74 offen sc1')
        for k in range(4): e(f'buffer_load_dwordx4 v[{O1+4*k}:{O1+4*k+3}], v15, s[{SWS}:{SWS+3}], s{84+k} offen sc1')
    waitprog('L_waitown', NIT, sl=(0 if sig else 1), tiles=(8 * NIT + sig - 1 if sig else None))
    lab('L_fin1')
    stamp(5, True)
    lab('L_fin')
    DP = ['quad_perm:[1,0,3,2]', 'quad_perm:[2,3,0,1]', 'row_half_mirror']
    def gather(label, A, M, so, sm, weights):
        e(f's_mov_b32 s60, {SPIN}')
        lab(label)
        e(f'buffer_load_dwordx4 v[{M}:{M+3}], v13, s[{SWS}:{SWS+3}], s{sm} offen {gpol}')
        for k in range(4): e(f'buffer_load_dwordx4 v[{A+4*k}:{A+4*k+3}], v15, s[{SWS}:{SWS+3}], s{so+k} offen {gpol}')
        e('s_sub_u32 s60, s60, 1'); e('s_cbranch_scc1 L_exit')
        e('s_waitcnt vmcnt(4)')
        if weights: e(f'v_max_f32 v62, v{M1}, v{M2}')
        e(f'v_xor_b32 v9, s94, v{M+2}'); e(f'v_xor_b32 v10, s95, v{M+3}')
        if weights: e(f'v_max_f32_dpp v62, v62, v62 {DP[0]} row_mask:0xf bank_mask:0xf')
        e('v_or_b32 v9, v9, v10')
        extra = [f'v_max_f32_dpp v62, v62, v62 {DP[1]} row_mask:0xf bank_mask:0xf', f'v_max_f32_dpp v62, v62, v62 {DP[2]} row_mask:0xf bank_mask:0xf',
                 f'v_sub_f32 v63, v{M1}, v62', 'v_exp_f32 v63, v63'] if weights else []
        for k in range(4):
            e(f's_waitcnt vmcnt({3-k})')
            ops = untag_ops(A + 4 * k, 4, 8, first=(k == 0))
            if extra and k < 2:
                ops.insert(1, extra[2 * k]); ops.insert(4, extra[2 * k + 1])
            for o in ops: e(o)
        e('v_and_or_b32 v8, v8, v60, v9')
        e('v_cmp_ne_u32 vcc, 0, v8')
        e(f's_cbranch_vccnz {label}')
    e('s_cmp_eq_u32 s79, 0'); e('s_cbranch_scc1 L_g0s')
    gather('L_g1', O2, M2, 88, 92, False)
    lab('L_g0s')
    for r in range(4): e(f'v_mov_b32 v{DD+r}, 0')
    gather('L_g0', O1, M1, 84, 74, True)
    stamp(6, True)
    if DIAG == 4: e('v_writelane_b32 v1, s60, 14')
    c('v62 = maximum of the group, v63 = weight of the own record')
    for b in range(2):
        for k in range(4): e(f'v_mul_f32_dpp v{AC+4*b+k}, v63, v{O1+8*b+k} row_newbcast:{8*b} row_mask:0xf bank_mask:0xf')
    for b in range(2):
        for k in range(4): e(f'v_fmac_f32_dpp v{AC+4*b+k}, v63, v{O1+8*b+4+k} row_newbcast:{8*b+4} row_mask:0xf bank_mask:0xf')
    e(f'v_mul_f32 v61, v{M1+1}, v63')
    e('s_cmp_eq_u32 s79, 0'); e('s_cbranch_scc1 L_m3')
    e(f'v_sub_f32 v56, v{M2}, v62'); e('v_exp_f32 v56, v56'); e('s_nop 0'); e(f'v_fmac_f32 v61, v{M2+1}, v56'); e('s_nop 0')
    for n0 in range(2):
        for b in range(2):
            for k in range(4): e(f'v_fmac_f32_dpp v{AC+4*b+k}, v56, v{O2+8*b+4*n0+k} row_newbcast:{8*b+4*n0} row_mask:0xf bank_mask:0xf')
    lab('L_m3')
    for k in range(4): e(f'v_permlane32_swap_b32 v{AC+k}, v{AC+4+k}')
    for k in range(4): e(f'v_add_f32 v{AC+k}, v{AC+k}, v{AC+4+k}')
    e(f'v_add_f32_dpp v61, v61, v61 {DP[0]} row_mask:0xf bank_mask:0xf')
    e(f'v_permlane16_swap_b32 v{AC}, v{AC+2}'); e(f'v_permlane16_swap_b32 v{AC+1}, v{AC+3}')
    e(f'v_add_f32 v{AC}, v{AC}, v{AC+2}'); e(f'v_add_f32 v{AC+1}, v{AC+1}, v{AC+3}')
    e(f'v_cvt_pk_bf16_f32 v8, v{AC}, v{AC+1}')
    e('ds_write_b32 v57, v8')
    e(f'ds_read_b128 v[{XP}:{XP+3}], v58'); e(f'ds_read_b128 v[{XP+4}:{XP+7}], v58 offset:16')
    e(f'v_add_f32_dpp v61, v61, v61 {DP[1]} row_mask:0xf bank_mask:0xf'); e('s_nop 1')
    e(f'v_add_f32_dpp v61, v61, v61 {DP[2]} row_mask:0xf bank_mask:0xf')
    e('v_rcp_f32 v61, v61')
    e('s_waitcnt lgkmcnt(0)')
    if tYB >= 0:
        e('s_andn2_b32 s60, s79, s83'); e('s_cbranch_scc0 L_projmm')
        waitprog('L_waityb', NIT, sl=1, tiles=8 * NIT - tYB)
    e('s_branch L_projmm')
    lab('L_ret_fin')
    stamp(7, True)
    if ywait:
        e('s_cmp_eq_u32 s83, 1'); e('s_cbranch_scc1 L_yw2')
        e('s_cmp_eq_u32 s79, 0'); e('s_cbranch_scc0 L_yw1')
        e('v_mov_b32 v8, 1'); e('ds_write_b32 v59, v8 offset:20')
        e('s_branch L_yw2')
        lab('L_yw1')
        e('s_cmp_lg_u32 s81, 0'); e('s_cbranch_scc1 L_done')
        waitlds('L_yw', 20, 1, sl=1)
        lab('L_yw2')
    e('s_cmp_lg_u32 s81, 0'); e('s_cbranch_scc1 L_done')
    assert NS * NY * 4 <= 32
    def yissue(s):
        for n in range(NY):
            if n == 0: so = 's80'
            else:
                e(f's_add_u32 s61, s80, {n*(256//NY)*STRIDE}'); so = 's61'
            r = O1 + 4 * (s * NY + n)
            e(f'buffer_load_dwordx4 v[{r}:{r+3}], v12, s[{SWS}:{SWS+3}], {so} offen sc1')
    for s in range(NS):
        if s: e(f's_sleep {ysp}')
        yissue(s)
    lab('L_y')
    for s in range(NS):
        for n in range(NY):
            r = O1 + 4 * (s * NY + n)
            e(f's_waitcnt vmcnt({(NS-1)*NY + NY-1-n})')
            untag(r, 4, 8, first=(n == 0))
            if n == 1:
                for k in range(4): e(f'v_add_f32 v{AC+k}, v{r-4+k}, v{r+k}')
            elif n > 1:
                for k in range(4): e(f'v_add_f32 v{AC+k}, v{AC+k}, v{r+k}')
            elif NY == 1:
                for k in range(4): e(f'v_mov_b32 v{AC+k}, v{r+k}')
        e('v_and_b32 v8, 0xff, v8'); e('v_cmp_ne_u32 vcc, 0, v8'); e('s_cbranch_vccz L_yok')
        yissue(s)
    e('s_sub_u32 s60, s60, 1'); e('s_cbranch_scc0 L_y')
    e('s_branch L_exit')
    lab('L_yok')
    stamp(8, True)
    e(f'v_permlane32_swap_b32 v{AC}, v{AC+1}'); e(f'v_permlane32_swap_b32 v{AC+2}, v{AC+3}')
    e(f'v_add_f32 v{AC}, v{AC}, v{AC+1}'); e(f'v_add_f32 v{AC+2}, v{AC+2}, v{AC+3}'); e('s_nop 1')
    e(f'v_permlane16_swap_b32 v{AC}, v{AC+2}'); e(f'v_add_f32 v8, v{AC}, v{AC+2}')
    for d in (8, 4, 2, 1):
        if d >= NY:
            e('s_nop 1'); e(f'v_add_f32_dpp v8, v8, v8 row_ror:{d} row_mask:0xf bank_mask:0xf')
    e('v_cvt_pk_bf16_f32 v8, v8, v8')
    m = ((1 << NY) - 1) * 0x00010001
    e(f's_mov_b32 exec_lo, 0x{m:08x}'); e(f's_mov_b32 exec_hi, 0x{m:08x}')
    e(f'buffer_store_short v8, v11, s[{SX}:{SX+3}], s77 offen')
    c('every workgroup has read the tag word by now: leave the tag of this launch behind')
    e('s_or_b32 s60, s2, s79'); e('s_cbranch_scc1 L_done')
    e('s_mov_b64 exec, 1'); e('v_mov_b32 v9, s94'); e('v_mov_b32 v10, 0')
    e(f'buffer_store_dword v9, v10, s[{SWS}:{SWS+3}], 0 offen')
    lab('L_done')
    if dry:
        e('s_cmp_eq_u32 s83, 1'); e('s_cbranch_scc1 L_real')
    if DIAG in (3, 4):
        e('s_mov_b64 exec, -1')
        if DIAG == 4:
            e('ds_read_b64 v[8:9], v59 offset:48'); e('s_waitcnt lgkmcnt(0)'); e('v_readfirstlane_b32 s60, v8'); e('v_readfirstlane_b32 s61, v9'); e('s_nop 3'); e('v_writelane_b32 v1, s60, 12'); e('v_writelane_b32 v1, s61, 13')
        e('s_memrealtime s[70:71]'); e('s_waitcnt lgkmcnt(0)'); e('v_writelane_b32 v1, s70, 9'); e('v_writelane_b32 v1, s72, 0')
        e('s_add_u32 s48, s28, 0x4000000'); e('s_addc_u32 s49, s29, 0'); e('s_mov_b32 s50, 0x100000'); e('s_mov_b32 s51, 0x20000')
        e('s_lshl_b32 s60, s2, 4'); e('s_add_u32 s60, s60, s3'); e('s_lshl_b32 s60, s60, 7')
        e('v_lshlrev_b32 v2, 2, v0')
        e('s_mov_b64 exec, 0xffffffff')
        e(f'buffer_store_dword v1, v2, s[{SWS}:{SWS+3}], s60 offen')
    lab('L_exit')
    if FULL:
        e('s_mov_b64 exec, -1')
        stamp(9)
        e('s_add_u32 s48, s28, 0x4000000'); e('s_addc_u32 s49, s29, 0'); e('s_mov_b32 s50, 0x100000'); e('s_mov_b32 s51, 0x20000')
        e('s_lshl_b32 s60, s2, 4'); e('s_add_u32 s60, s60, s3'); e('s_lshl_b32 s60, s60, 7')
        e('v_lshlrev_b32 v2, 2, v0')
        e('s_mov_b64 exec, 0xffffffff')
        e(f'buffer_store_dword v1, v2, s[{SWS}:{SWS+3}], s60 offen')
        if DIAG == 2:
            e(f's_cmp_ge_u32 s3, {WS}'); e('s_cbranch_scc1 L_end')
            e('s_mov_b64 exec, -1'); e('s_mov_b32 s50, 0x400000'); e('s_lshl_b32 s60, s60, 2'); e('s_add_u32 s60, s60, 0x100000')
            e(f'buffer_store_dword v3, v2, s[{SWS}:{SWS+3}], s60 offen')
            e(f'buffer_store_dword v43, v2, s[{SWS}:{SWS+3}], s60 offen offset:256')
    lab('L_end')
    e('s_endpgm')
    L.append('.section .rodata,"a"'); L.append('.p2align 6'); L.append(f'.amdhsa_kernel {NAME}')
    L.append('  .amdhsa_next_free_vgpr 168'); L.append('  .amdhsa_next_free_sgpr 99'); L.append('  .amdhsa_accum_offset 168')
    L.append('  .amdhsa_group_segment_fixed_size 0'); L.append('  .amdhsa_kernarg_size 104'); L.append('  .amdhsa_user_sgpr_count 2')
    L.append('  .amdhsa_user_sgpr_kernarg_segment_ptr 1'); L.append('  .amdhsa_system_sgpr_workgroup_id_x 1'); L.append('.end_amdhsa_kernel')
    return '\n'.join(L) + '\n'

if __name__ == '__main__':
    kw = {}
    for a in sys.argv[2:]:
        k, v = a.split('=')
        kw[k] = v if k.endswith('pol') else int(v, 0)
    open(sys.argv[1], 'w').write(gen(**kw))
```

```python
import sys, struct, os
NAME = 'concat_heads__mha_block_cached__gqa_block_cached__decode_kernel'
def f32(x): return struct.unpack('<I', struct.pack('<f', x))[0]
_ref = 'concat_heads__mha_block_cached__gqa_block_cached__decode.s.ref'
HEADER = open(_ref).read().split('; Override launch')[0] if os.path.exists(_ref) else ''

LAY_A = {
    0: ((12, 14), 13, (20, 21), [1, 2, 4, 8, 16, 32, 0, 0]),
    1: ((12, 14), 13, (15, 21), [1, 0, 44, 30, 30, 32, 34, 0]),
    2: ((15, 12), 13, (20, 21), [32, 0, 16, 24, 57, 32, 2, 34]),
    3: ((12, 13), 21, (15, 16), [0, 1, 20, 16, 24, 32, 53, 1]),
    4: ((15, 21), 13, (12, 16), [40, 0, 17, 36, 42, 48, 30, 0]),
    5: ((15, 16), 13, (12, 21), [16, 0, 32, 18, 16, 16, 1, 34]),
    6: ((15, 13), 12, (16, 21), [63, 0, 61, 37, 29, 16, 32, 44]),
    7: ((12, 14), 21, (15, 13), [1, 0, 50, 62, 32, 32, 0, 0]),
    8: ((12, 14), 13, (20, 21), [32, 0, 16, 24, 2, 19, 2, 31]),
    9: ((15, 12), 13, (14, 21), [32, 0, 18, 3, 0, 0, 1, 0]),
    10: ((12, 14), 13, (15, 21), [1, 0, 18, 60, 30, 0, 34, 0]),
    11: ((13, 16), 12, (15, 21), [0, 0, 51, 48, 25, 32, 62, 63]),
    12: ((21, 16), 12, (13, 15), [0, 0, 31, 16, 9, 32, 33, 63]),
    13: ((13, 15), 12, (16, 21), [0, 0, 48, 40, 32, 38, 34, 18]),
}
LAY_B = {
    0: ((12, 14), 13, (18, 19, 20, 21), [4, 8, 0, 0, 0, 0, 0, 0]),
    1: ((15, 12), 13, (18, 19, 20, 21), [14, 9, 0, 0, 6, 0, 1, 0]),
    2: ((12, 14), 13, (15, 21, 17, 18), [0, 0, 8, 3, 5, 4, 0, 12]),
    3: ((15, 12), 13, (14, 16, 21, 20), [9, 14, 0, 2, 13, 8, 11, 0]),
    4: ((13, 16), 12, (15, 21, 19, 20), [0, 0, 8, 8, 14, 2, 2, 14]),
    5: ((13, 16), 12, (15, 21, 14, 18), [0, 0, 8, 1, 1, 14, 6, 4]),
}

def gen(layA=13, layB=4, TAB=0, pipeV=1, late=1, tWL=5, touch=0, n1=2, eoff=0, salign=12, dryK=0, NQ=3, qsp=8, early=1, tWB=0, tT=0, tpol='', ab=0, q0=3, seq=0, seqk=10, D=9, D2=0, mE=0x33, mO=0, mEV=-1, mOV=-1, skew=16384, skewB=65536, T=8192, DIAG=0, pol='nt', wpol='nt',
        ctl=1, thU=32, thF=120, cslp=0, ctlend=2, nfree=1, NH=0, Dr=3, Dp=3, qslp=3, tRe=2, KF=6, gD=3, tQ=14, tPub=3,
        prio=3, slp=4, dry=1, dryV=1, NY=4, NS=2, ysp=8, tG=2, tYB=6, ywait=1, sig=1, gpol='sc1', tpre=0, rewb=0, xctl=0, xsm=1, xgain=0, xnull=0, xmask=0, xdiv=1, local=1, WS=2, NB=2, freeT=0):
    assert WS == 2 and NH in (0, 2, 4)
    if not D2: D2 = D + 1
    if mEV < 0: mEV = mE
    if mOV < 0: mOV = mO
    NW = 6 + NH
    BASE = 128
    RA = 640; OB = 2 * RA; YA = OB + 128 + 2048; YB = YA + 1024; QBO = YB + 1024; QAO = QBO + 1024; IDO = QAO + 1024; STRIDE = IDO + 128
    PGO = BASE + 256 * STRIDE; WSBYTES = PGO + 8 * 128
    L_QA = 8192; L_QB = L_QA + 256; L_FLAG = L_QB + 1024; L_X = L_FLAG + 64
    L_SA = 10240; L_SB = L_SA + 16384; LDS = L_SB + 16384 + 1024
    NP_A = 32; NP_B = 8; NPK = NP_A - NH // 2; NIT = NPK + NP_A + 2 * NP_B
    SPIN = 1 << 18
    W3, W0, W1, W2, WH = 2, 3, 4, 5, 6
    FULL = DIAG in (1, 2)
    L = []
    def e(s): L.append('    ' + s)
    def lab(s): L.append(s + ':')
    def c(s): L.append('    ; ' + s)
    L.append(HEADER.rstrip('\n'))
    L.append(f'; @launch grid=(256,1,1) block=({NW*64},1,1) lds={LDS}')
    L.append('.amdgcn_target "amdgcn-amd-amdhsa--gfx950"')
    L.append('.text'); L.append(f'.globl {NAME}')
    if eoff >= 0:
        L.append('.p2align 12'); L.append(f'.fill {((eoff - 0x300) % 4096) // 4}, 4, 0xbf810000')
    L.append('.p2align 8'); L.append(f'.type {NAME},@function')
    lab(NAME)
    def stamp(idx, tail=False):
        if not (FULL or (tail and DIAG == 4)): return
        e('s_memrealtime s[70:71]'); e('s_waitcnt lgkmcnt(0)'); e(f'v_writelane_b32 v1, s70, {idx}')
    def srd(d, lo, size, off=None):
        if off is None:
            e(f's_mov_b32 s{d}, s{lo}'); e(f's_mov_b32 s{d+1}, s{lo+1}')
        else:
            e(f's_add_u32 s{d}, s{lo}, {off}'); e(f's_addc_u32 s{d+1}, s{lo+1}, 0')
        e(f's_mov_b32 s{d+2}, {size}'); e(f's_mov_b32 s{d+3}, 0x20000')
    def basesel():
        e('s_mov_b32 s62, 0xaaaaaaaa'); e('s_mov_b32 s63, 0xaaaaaaaa')
        e('v_mov_b32 v8, 0x0c0c0100'); e('v_mov_b32 v9, 0x01000c0c')
        e('v_cndmask_b32 v60, v8, v9, s[62:63]')
        e('v_mov_b32 v8, 0x0c0c0302'); e('v_mov_b32 v9, 0x03020c0c')
        e('v_cndmask_b32 v61, v8, v9, s[62:63]')
        e('v_mov_b32 v62, 0x0c0c0c0c')
    TG = 36
    def tags():
        e('s_add_u32 s94, s93, 0x01010101'); e('s_not_b32 s95, s94')
        e(f's_and_b32 s{TG}, s94, 0xff'); e(f's_bfe_u32 s{TG+1}, s94, 0x80008'); e(f's_bfe_u32 s{TG+2}, s94, 0x80010'); e(f's_lshr_b32 s{TG+3}, s94, 24')
    def puttag(r, n, vm, src=None):
        for k in range(n): e(f'v_bfi_b32 v{r+k}, v{vm}, s{TG+(k&3)}, v{(r if src is None else src)+k}')
    def untag_ops(r, n, acc, first=True):
        ops = [f'v_xor_b32 v{r+k}, s{TG+(k&3)}, v{r+k}' for k in range(n)]
        k = 0
        if first:
            ops.append(f'v_or3_b32 v{acc}, v{r}, v{r+1}, v{r+2}'); k = 3
        while k + 1 < n:
            ops.append(f'v_or3_b32 v{acc}, v{acc}, v{r+k}, v{r+k+1}'); k += 2
        if k < n: ops.append(f'v_or_b32 v{acc}, v{acc}, v{r+k}')
        return ops
    def untag(*a, **k):
        for o in untag_ops(*a, **k): e(o)
    def waitlds(label, off, target, addr=59, sl=None):
        e(f's_mov_b32 s60, {SPIN*4}')
        lab(label)
        e(f's_sleep {slp if sl is None else sl}')
        e(f'ds_read_b32 v8, v{addr} offset:{off}'); e('s_waitcnt lgkmcnt(0)'); e('v_readfirstlane_b32 s61, v8')
        e('s_sub_u32 s60, s60, 1'); e('s_cbranch_scc1 L_exit')
        e(f's_cmp_lt_u32 s61, {target}'); e(f's_cbranch_scc1 {label}')
    def waitprog(label, it, sl=None, tiles=None):
        e(f's_mov_b32 s60, {SPIN*4}')
        lab(label)
        e(f's_sleep {slp if sl is None else sl}')
        e(f'ds_read_b64 v[8:9], v59 offset:24'); e('s_waitcnt lgkmcnt(0)'); e('v_add_u32 v8, v8, v9')
        e('s_sub_u32 s60, s60, 1'); e('v_readfirstlane_b32 s61, v8'); e('s_cbranch_scc1 L_exit')
        e(f's_cmp_lt_u32 s61, {8*it-6 if tiles is None else tiles}'); e(f's_cbranch_scc1 {label}')
    SL, SW, SX, SWS = 32, 40, 44, 48
    RING = 64; WT = 64; XP = 16; SEL = 24; RR = 32; DD = 40; QQ = 44; QD = 48; SAVE = 128
    e('s_cmp_ge_u32 s2, 256'); e('s_cbranch_scc1 L_end')
    e('s_load_dwordx16 s[4:19], s[0:1], 0')
    e('s_load_dwordx8 s[20:27], s[0:1], 64')
    e('s_load_dwordx2 s[28:29], s[0:1], 96')
    if DIAG: e('s_memrealtime s[72:73]')
    e('v_lshrrev_b32 v1, 6, v0')
    e('v_and_b32 v0, 63, v0')
    e('v_readfirstlane_b32 s3, v1')
    e('s_and_b32 s30, s2, 7')
    e('s_lshr_b32 s31, s2, 3')
    e('s_lshr_b32 s60, s31, 3')
    e('s_lshl2_add_u32 s52, s30, s60')
    e('v_lshrrev_b32 v2, 4, v0')
    e('v_lshlrev_b32 v14, 4, v0')
    e('s_bfe_u32 s53, s31, 0x10002')
    if DIAG: e('v_mov_b32 v1, 0')
    e(f's_sub_u32 s79, s3, {W0}'); e('s_cmp_lt_u32 s79, 3')
    e('s_cbranch_scc1 L_disp')
    e(f's_cmp_lg_u32 s3, {W3}')
    e('s_cbranch_scc1 L_str_pro')
    c('q-A wave: its first loads sit in the first 256 bytes of code')
    e('s_and_b32 s66, s31, 7')
    e('s_lshl_b32 s60, s66, 19'); e('s_lshl_b32 s62, s52, 8'); e('s_add_u32 s60, s60, s62')
    e('s_lshl_b32 s61, s66, 7')
    if touch: e('v_lshlrev_b32 v8, 13, v0')
    def lanes():
        e('v_and_b32 v4, 0xf0, v14')
        e('v_bfe_u32 v7, v0, 3, 1')
        e('v_lshlrev_b32 v6, 5, v2')
        e('v_lshl_add_u32 v6, v7, 10, v6')
        e(f's_mov_b32 s{SW+2}, {1<<22}'); e(f's_mov_b32 s{SW+3}, 0x20000'); e(f's_mov_b32 s{SX+3}, s{SW+3}')
    lanes()
    e('v_lshl_add_u32 v5, v2, 17, v4'); e(f's_movk_i32 s{SX+2}, 0x800')
    e('s_waitcnt lgkmcnt(0)')
    e(f's_mov_b64 s[{SW}:{SW+1}], s[10:11]'); e(f's_mov_b64 s[{SX}:{SX+1}], s[4:5]')
    if touch:
        e(f'buffer_load_dword v63, v8, s[{SW}:{SW+3}], s60 offen {tpol}')
        e(f'buffer_load_dword v63, v8, s[{SW}:{SW+3}], s60 offen offset:128 {tpol}')
    e('s_load_dword s93, s[28:29], 0')
    e(f'buffer_load_dwordx4 v[{XP}:{XP+3}], v6, s[{SX}:{SX+3}], s61 offen')
    e(f'buffer_load_dwordx4 v[{XP+4}:{XP+7}], v6, s[{SX}:{SX+3}], s61 offen offset:16')
    for t in range(16):
        if t == n1:
            e('s_branch L_w3')
            if eoff < 0: L.append('.p2align 8')
            lab('L_disp')
            e('s_branch L_other')
            lab('L_w3')
        e(f'buffer_load_dwordx4 v[{WT+4*t}:{WT+4*t+3}], v5, s[{SW}:{SW+3}], s60 offen {wpol}')
        if t < 15: e('s_addk_i32 s60, 0x2000')
    e('s_barrier')
    e('s_branch L_svc2')
    n0 = len(L)
    lab('L_str_pro')
    e('s_lshl_b32 s60, s53, 5'); e('s_add_u32 s60, s60, s52'); e('s_lshl_b32 s60, s60, 2')
    e('s_and_b32 s62, s31, 3'); e('s_add_u32 s65, s60, s62')
    e('v_and_b32 v10, 3, v0'); e('v_bfe_u32 v9, v0, 2, 2')
    e('v_lshl_add_u32 v10, v2, 2, v10')
    e('v_lshlrev_b32 v10, 4, v10')
    e('v_lshl_add_u32 v42, v9, 8, v10')
    e('s_and_b32 s64, s3, 1')
    assert NH in (0, 2)
    e('s_lshr_b32 s80, s3, 1')
    def itmask(lay):
        ld, wv, wg, cc = lay
        used = list(ld) + [wv] + list(wg)
        return [b for b in range(12, 22) if b not in used]
    def layout(lay, sSt, sB0):
        ld, wv, wg, cc = lay
        itb = itmask(lay)
        first = True
        for k in range(8):
            if cc[k] == 0: continue
            e(f's_bitcmp1_b32 s65, {k}')
            if first: e(f's_cselect_b32 s60, {cc[k]}, 0'); first = False
            else: e(f's_cselect_b32 s61, {cc[k]}, 0'); e('s_add_u32 s60, s60, s61')
        e(f's_lshl_b32 s{sB0}, s64, {wv}')
        def deposit(dst, src, srcbit, bits, init):
            k = 0
            while k < len(bits):
                n = 1
                while k + n < len(bits) and bits[k + n] == bits[k] + n: n += 1
                e(f's_bfe_u32 s61, s{src}, 0x{(n << 16) | (srcbit + k):x}')
                if init: e(f's_lshl_b32 s{dst}, s61, {bits[k]}'); init = False
                else: e(f's_lshl_b32 s61, s61, {bits[k]}'); e(f's_or_b32 s{dst}, s{dst}, s61')
                k += n
        deposit(sB0, 65, 0, wg, False)
        if any(v & 1 for v in cc): deposit(sB0, 60, 0, [ld[1]], False)
        deposit(sSt, 60, 1, itb, True)
    IT = 's89' if TAB == 2 else 's54'
    def scatter():
        e('s_lshl_b32 s89, s54, s90'); e('s_and_b32 s89, s89, s10')
        for k in (1, 2):
            e(f's_lshl_b32 s13, s54, s{90+k}'); e(f's_and_b32 s13, s13, s{10+k}'); e('s_or_b32 s89, s89, s13')
    def usepass(lay, sSt, sB0):
        ld = lay[0]
        if TAB:
            r = 40 if sSt == 58 else 96
            for k in range(4): e(f's_mov_b32 s{84+k}, s{r+k}')
            e(f's_mov_b32 s54, s{r+4}'); e(f's_mov_b32 s55, s{r+5}')
            if TAB == 2:
                if sSt == 58:
                    for k in range(3): e(f's_mov_b32 s{90+k}, s{20+k}'); e(f's_mov_b32 s{10+k}, s{23+k}')
                else:
                    e('s_mov_b32 s90, 0'); e('s_mov_b32 s91, 0'); e('s_mov_b32 s92, 0'); e('s_mov_b32 s10, -1'); e('s_mov_b32 s11, 0'); e('s_mov_b32 s12, 0')
                scatter()
            return
        e(f's_mov_b32 s54, s{sSt}'); e(f's_mov_b32 s55, {sum(1 << b for b in itmask(lay))}')
        e(f's_mov_b32 s84, s{sB0}'); e(f's_xor_b32 s85, s84, {1 << ld[0]}'); e(f's_xor_b32 s86, s84, {1 << ld[1]}'); e(f's_xor_b32 s87, s85, {1 << ld[1]}')
    LA = LAY_A[layA]; LB = LAY_B[layB]
    if TAB:
        e('s_lshl_b32 s60, s2, 1'); e('s_add_u32 s60, s60, s64'); e('s_lshl_b32 s60, s60, 6'); e('s_add_u32 s60, s60, 0x2000000')
        e('s_waitcnt lgkmcnt(0)')
        e('s_add_u32 s62, s28, s60'); e('s_addc_u32 s63, s29, 0')
        e('s_load_dwordx8 s[40:47], s[62:63], 0'); e('s_load_dwordx4 s[96:99], s[62:63], 32'); e('s_load_dwordx2 s[100:101], s[62:63], 48')
        if TAB == 2:
            e('s_add_u32 s62, s28, 0x2100000'); e('s_addc_u32 s63, s29, 0'); e('s_load_dwordx8 s[20:27], s[62:63], 0')
        e('s_waitcnt lgkmcnt(0)')
    else:
        layout(LA, 58, 76)
    usepass(LA, 58, 76)
    if NH:
        e('s_min_u32 s60, s80, 1'); e('s_sub_u32 s54, s54, s60'); e('s_and_b32 s54, s54, s55')
    e('s_lshr_b32 s60, s65, 2'); e('s_lshl_b32 s60, s60, 22')
    e(f'v_mov_b32 v40, {L_FLAG}'); e('v_mov_b32 v4, 0'); e('v_mov_b32 v5, 0')
    for o in (0, 8, 16, 24, 32): e(f'ds_write_b64 v40, v[4:5] offset:{o}')
    e('s_waitcnt lgkmcnt(0)')
    srd(SL, 6, 1 << 22, 's60')
    e(f's_add_u32 s88, {IT}, s84')
    e('s_barrier')
    def load(t, j): e(f'buffer_load_dwordx4 v[{RING+16*t+4*j}:{RING+16*t+4*j+3}], v42, s[{SL}:{SL+3}], s88 offen offset:{1024*j} {pol}')
    def adv(t):
        if t == 3:
            e('s_orn2_b32 s54, s54, s55'); e('s_add_u32 s54, s54, 1'); e('s_and_b32 s54, s54, s55')
            if TAB == 2: scatter()
        else:
            e('s_nop 0')
        e(f's_add_u32 s88, {IT}, s{84 + ((t + 1) & 3)}')
    def ringload(n0, n1):
        for n in range(n0, n1):
            if n > Dr: e(f's_waitcnt vmcnt({Dr})')
            load(n >> 2, n & 3)
            if n & 3 == 3: adv(n >> 2)
    if not seq: ringload(0, min(16, Dr + 1))
    if early:
        e('s_branch L_stream')
    else:
        STR = L[n0:]; del L[n0:]
    lab('L_other')
    lanes()
    e('s_lshl_b32 s60, s30, 19'); e('s_lshl_b32 s62, s31, 8'); e('s_add_u32 s60, s60, s62')
    e('s_lshl_b32 s61, s52, 17'); e('s_lshl_b32 s62, s53, 12'); e('s_add_u32 s61, s61, s62')
    e('s_and_b32 s62, s31, 3'); e('s_lshl_b32 s62, s62, 8'); e('s_add_u32 s61, s61, s62')
    e('s_movk_i32 s63, 0x2000')
    e('s_cmp_lt_u32 s79, 2')
    e('s_cselect_b32 s60, s61, s60'); e('s_cselect_b32 s62, 15, 17'); e(f's_cselect_b32 s63, {1024-3*8192}, s63')
    e(f's_cselect_b32 s{SX+2}, 0, 2048')
    e('v_lshlrev_b32 v5, s62, v2'); e('v_add_u32 v5, v5, v4')
    e('s_lshl_b32 s61, s30, 7'); e('s_mov_b32 s69, s60')
    e('s_waitcnt lgkmcnt(0)')
    e('s_load_dword s93, s[28:29], 0')
    e(f's_mov_b64 s[{SX}:{SX+1}], s[14:15]')
    e(f's_cmp_eq_u32 s3, {W0}'); e(f's_cselect_b32 s{SW}, s12, s20'); e(f's_cselect_b32 s{SW+1}, s13, s21')
    e(f's_cmp_eq_u32 s3, {W1}'); e(f's_cselect_b32 s{SW}, s22, s{SW}'); e(f's_cselect_b32 s{SW+1}, s23, s{SW+1}')
    c('the loads of the q-A wave go first')
    e('s_barrier')
    if late:
        e(f's_cmp_eq_u32 s3, {W0}'); e('s_cbranch_scc1 L_svc2')
    e(f'buffer_load_dwordx4 v[{XP}:{XP+3}], v6, s[{SX}:{SX+3}], s61 offen')
    e(f'buffer_load_dwordx4 v[{XP+4}:{XP+7}], v6, s[{SX}:{SX+3}], s61 offen offset:16')
    for t in range(16):
        if t > Dp: e(f's_waitcnt vmcnt({Dp})')
        e(f'buffer_load_dwordx4 v[{WT+4*t}:{WT+4*t+3}], v5, s[{SW}:{SW+3}], s60 offen {wpol}')
        if t < 15:
            if t & 3 == 3: e('s_add_u32 s60, s60, s63')
            else: e('s_addk_i32 s60, 0x2000')
    lab('L_svc2')
    if prio: e(f's_setprio {prio}')
    if FULL: e('v_writelane_b32 v1, s72, 0')
    stamp(10)
    basesel()
    e('s_mov_b32 s62, 0x03030303'); e('s_mov_b32 s63, 0x03030303')
    for k in range(4):
        e(f'v_cndmask_b32 v{SEL+2*k}, v62, v60, s[62:63]')
        e(f'v_cndmask_b32 v{SEL+2*k+1}, v62, v61, s[62:63]')
        if k < 3: e('s_lshl_b64 s[62:63], s[62:63], 2')
    e('v_and_b32 v3, 7, v0')
    e(f'v_mov_b32 v59, {L_FLAG}'); e('v_mov_b32 v60, 0xff'); e('v_mov_b32 v61, 1.0')
    srd(SWS, 28, WSBYTES)
    e(f's_mul_i32 s68, s2, {STRIDE}'); e(f's_add_u32 s68, s68, {BASE}')
    e('s_cmp_lt_u32 s79, 2'); e('s_cbranch_scc1 L_finisher')
    for r in range(4): e(f'v_mov_b32 v{DD+r}, 0')
    e('s_mov_b32 s98, 0')
    e(f's_cmp_eq_u32 s3, {W3}'); e(f's_cselect_b32 s76, 1024, 0'); e('s_add_u32 s76, s76, s68'); e(f's_add_u32 s76, s76, {QBO}')
    c('q gather lane offset: two producers per load')
    e('v_lshrrev_b32 v8, 5, v0'); e('v_bfe_u32 v9, v0, 3, 2')
    e('v_lshlrev_b32 v12, 8, v9'); e('v_lshl_add_u32 v12, v3, 4, v12')
    e('v_lshlrev_b32 v11, 6, v9'); e('v_lshl_add_u32 v11, v3, 1, v11')
    e(f's_mov_b32 s60, {8*STRIDE}'); e('v_mul_lo_u32 v10, v8, s60'); e('v_add_u32 v10, v10, v12')
    e('s_and_b32 s60, s2, 0xc7')
    e(f's_mul_i32 s74, s60, {STRIDE}'); e('s_lshl_b32 s61, s53, 7'); e('s_add_u32 s74, s74, s61'); e(f's_add_u32 s74, s74, {QAO+BASE}')
    for k in range(1, 4): e(f's_add_u32 s{84+k}, s74, {16*k*STRIDE}')
    e('s_waitcnt lgkmcnt(0)')
    tags()
    e('s_waitcnt vmcnt(0)')
    stamp(11)
    lab('L_projmm')
    c('D[chunk][(b,i)] += sum_t W_t x delta(XP_t), scaled by v61')
    for t in range(16):
        r = RR + 4 * (t & 1)
        for k in range(4):
            e(f'v_perm_b32 v{r+k}, v{XP+(t>>1)}, v{XP+(t>>1)}, v{SEL+2*k+(t&1)}')
        if t > 0:
            tp = t - 1; rp = RR + 4 * (tp & 1)
            e(f'v_mfma_f32_16x16x32_bf16 v[{DD}:{DD+3}], v[{WT+4*tp}:{WT+4*tp+3}], v[{rp}:{rp+3}], v[{DD}:{DD+3}]')
    e('s_nop 0')
    e(f'v_mfma_f32_16x16x32_bf16 v[{DD}:{DD+3}], v[{WT+60}:{WT+63}], v[{RR+4}:{RR+7}], v[{DD}:{DD+3}]')
    e(f's_mov_b32 s60, {SPIN}')
    e(f's_cmp_eq_u32 s3, {W3}')
    e('s_nop 5')
    for r in range(4): e(f'v_mul_f32 v{DD+r}, v{DD+r}, v61')
    puttag(DD, 4, 60)
    e('s_cbranch_scc1 L_qa0')
    if tWB:
        e('s_cmp_eq_u32 s98, 1'); e('s_cbranch_scc0 L_qbw'); lab('L_qbw1')
    if ab & 16:
        e('s_cmp_eq_u32 s98, 1'); e('s_cbranch_scc1 L_abx'); e('v_mov_b32 v8, 2'); e('ds_write_b32 v59, v8'); e('s_branch L_exit'); lab('L_abx')
    e(f'buffer_store_dwordx4 v[{DD}:{DD+3}], v14, s[{SWS}:{SWS+3}], s76 offen sc1')
    e('s_cmp_eq_u32 s98, 1'); e('s_cbranch_scc1 L_ret_fin')
    stamp(1)
    e('s_branch L_ret_qb')
    lab('L_qa0')
    if ab & 4:
        e('v_mov_b32 v8, 1'); e('v_mov_b32 v9, s93'); e('ds_write_b32 v59, v9 offset:16'); e('ds_write_b32 v59, v8 offset:12'); e('s_branch L_exit')
    c('q of branch A: publish the k-slice in the cache of this die first, gather the eight slices')
    e(f'buffer_store_dwordx4 v[{DD}:{DD+3}], v14, s[{SWS}:{SWS+3}], s76 offen')
    stamp(1)
    if q0: e(f's_sleep {q0}')
    def qissue(n):
        for k in range(4):
            e(f'buffer_load_dwordx4 v[{64+16*n+4*k}:{64+16*n+4*k+3}], v10, s[{SWS}:{SWS+3}], s{74 if k == 0 else 84+k} offen sc1')
    for n in range(NQ):
        if n: e(f's_sleep {qsp}')
        qissue(n)
    lab('L_qa')
    for n in range(NQ):
        r0 = 64 + 16 * n
        for k in range(4):
            e(f's_waitcnt vmcnt({4*(NQ-1)+3-k})')
            untag(r0 + 4 * k, 4, 8, first=(k == 0))
            if k == 1:
                for r in range(4): e(f'v_add_f32 v{44+r}, v{r0+r}, v{r0+4+r}')
            elif k > 1:
                for r in range(4): e(f'v_add_f32 v{44+r}, v{44+r}, v{r0+4*k+r}')
        e('v_and_b32 v8, 0xff, v8'); e('v_cmp_ne_u32 vcc, 0, v8'); e('s_cbranch_vccz L_qaok')
        if n == NQ - 1:
            e('s_sub_u32 s60, s60, 1'); e('s_cbranch_scc1 L_exit')
            e(f's_cmp_eq_u32 s60, {SPIN-KF}'); e('s_cbranch_scc0 L_qa1')
            e(f'buffer_store_dwordx4 v[{DD}:{DD+3}], v14, s[{SWS}:{SWS+3}], s76 offen sc1')
            lab('L_qa1')
        if qslp and NQ == 1: e(f's_sleep {qslp}')
        qissue(n)
    e('s_branch L_qa')
    lab('L_qaok')
    e('v_permlane32_swap_b32 v44, v46'); e('v_permlane32_swap_b32 v45, v47')
    e('v_add_f32 v44, v44, v46'); e('v_add_f32 v45, v45, v47')
    e('v_and_b32 v8, 32, v0'); e('v_add_u32 v11, v11, v8')
    e('v_cvt_pk_bf16_f32 v44, v44, v45')
    e('v_mov_b32 v8, 1'); e('v_mov_b32 v9, s93')
    e(f'ds_write_b16 v11, v44 offset:{L_QA}'); e(f'ds_write_b16_d16_hi v11, v44 offset:{L_QA+16}')
    e('ds_write_b32 v59, v9 offset:16'); e('ds_write_b32 v59, v8 offset:12')
    stamp(2)
    c('write the slice through to memory for readers on other dies')
    if tRe: waitprog('L_waitre', tRe, sl=1, tiles=(tT if tT else None))
    if ab & 8:
        pass
    elif rewb == 0:
        e(f'buffer_store_dwordx4 v[{DD}:{DD+3}], v14, s[{SWS}:{SWS+3}], s76 offen sc1')
    elif rewb == 1:
        e('buffer_wbl2 sc1')
    else:
        e(f's_and_b32 s60, s31, {rewb-1}'); e('s_cbranch_scc1 L_nowb'); e('buffer_wbl2 sc1'); lab('L_nowb')
    if dryV:
        c('run the V loop and the publish code once through zero-size descriptors (instruction cache warm-up)')
        e('s_waitcnt vmcnt(0)')
        e('s_setprio 0')
        srd(SL, 8, 0); e(f's_mov_b32 s{SWS+2}, 0')
        e('s_mov_b32 s54, 0'); e('s_mov_b32 s55, 0'); e('s_mov_b32 s84, 0'); e('s_mov_b32 s88, 0'); e('s_mov_b32 s56, 1'); e('s_mov_b32 s57, 3'); e('s_mov_b32 s66, 0'); e('s_mov_b32 s67, 2'); e('s_mov_b32 s69, 0'); e('s_mov_b32 s59, 0')
        e(f'v_mov_b32 v{SAVE+6}, {L_FLAG+40}'); e('v_mov_b32 v41, 0'); e('s_mov_b64 vcc, 0')
        e('v_mov_b32 v38, 0'); e('v_mov_b32 v42, 0'); e('v_mov_b32 v15, 0'); e(f'v_mov_b32 v{SAVE+4}, 0')
        e('s_branch L_bodyV')
    else:
        e('s_branch L_exit')
    if early:
        if salign: L.append(f'.p2align {salign}')
        lab('L_stream')
    else:
        if salign: L.append(f'.p2align {salign}')
        L.extend(STR)
    if FULL: e('v_writelane_b32 v1, s72, 0')
    e('v_mov_b32 v13, v42')
    e('v_lshl_add_u32 v15, v9, 9, v10')
    e(f'v_add_u32 v38, {L_QA}, v10')
    e(f'v_lshl_add_u32 v39, v9, 8, v38'); e(f'v_add_u32 v39, {L_QB-L_QA}, v39')
    e('s_lshl_b32 s60, s64, 13'); e(f's_add_u32 s60, s60, {L_SA}')
    e(f'v_lshl_add_u32 v{SAVE}, v2, 4, s60')
    e(f'v_lshl_add_u32 v8, v2, 2, v9'); e(f's_add_u32 s60, s60, {L_SB-L_SA}')
    e(f'v_lshl_add_u32 v{SAVE+1}, v8, 4, s60')
    e(f'v_mov_b32 v{SAVE+3}, 0xff'); e(f'v_lshlrev_b32 v{SAVE+4}, 3, v0')
    basesel()
    e('s_mov_b32 s62, 0x33333333'); e('s_mov_b32 s63, 0x33333333')
    e('v_cndmask_b32 v34, v62, v60, s[62:63]'); e('v_cndmask_b32 v35, v62, v61, s[62:63]')
    e('v_cndmask_b32 v36, v60, v62, s[62:63]'); e('v_cndmask_b32 v37, v61, v62, s[62:63]')
    e('v_mov_b32 v41, 1')
    e(f's_mov_b32 s59, 0x{f32(128**-0.5*1.4426950408889634):08x}')
    srd(SWS, 28, WSBYTES)
    e(f's_mul_i32 s68, s2, {STRIDE}'); e(f's_mul_i32 s60, s64, {RA}'); e('s_add_u32 s68, s68, s60')
    e('s_mov_b32 s82, 0')
    c('pass 0: K of A')
    e(f's_mov_b32 s56, {NPK}'); e('s_mov_b32 s57, 0'); e(f's_mov_b32 s78, {freeT}')
    c('tiles that may keep one more load in flight: the even dies see a slightly longer memory latency')
    e('s_getreg_b32 s60, hwreg(HW_REG_XCC_ID, 0, 1)'); e('s_cmp_eq_u32 s60, 0'); e(f's_mov_b32 s60, {mO + (mOV << 8)}'); e(f's_cselect_b32 s74, {mE + (mEV << 8)}, s60')
    if xmask:
        e('s_getreg_b32 s60, hwreg(HW_REG_XCC_ID, 0, 3)'); e(f's_bitcmp1_b32 {xmask}, s60'); e('s_cselect_b32 s74, 0xffff, s74')
    e('s_lshl_b32 s60, s64, 2'); e('s_lshr_b32 s74, s74, s60'); e('s_mov_b32 s75, s74')
    e(f's_add_u32 s60, s60, {L_FLAG+24}'); e(f'v_mov_b32 v{SAVE+6}, s60'); e(f'v_mov_b32 v{SAVE+5}, 0')
    e(f'v_mov_b32 v11, v{SAVE}')
    if NH:
        e('s_cmp_eq_u32 s80, 0'); e(f's_cselect_b32 s60, 0, {NPK*256}'); e(f'v_add_u32 v11, s60, v11')
    if not TAB: layout(LB, 77, 79)
    e('s_mov_b32 s66, 64'); e('s_mov_b32 s62, 0x00010001'); e('s_mov_b32 s63, 0x00010001')
    e(f'v_mov_b32 v10, 0x{f32(-3.0e38):08x}')
    if seq:
        e(f's_mov_b32 s60, {SPIN*4}')
        lab('L_waitsq')
        e('ds_read_b32 v4, v40 offset:4'); e('s_waitcnt lgkmcnt(0)'); e('v_readfirstlane_b32 s61, v4')
        e('s_sub_u32 s60, s60, 1'); e('s_cbranch_scc1 L_exit')
        e(f's_cmp_lt_u32 s61, {seq}'); e('s_cbranch_scc1 L_waitsq')
        ringload(0, 16)
    else:
        ringload(min(16, Dr + 1), 16)
    stamp(10)
    e(f's_mov_b32 s60, {SPIN*4}')
    lab('L_waitqa')
    e('ds_read_b32 v4, v40 offset:12'); e('ds_read_b32 v5, v40 offset:16'); e(f'ds_read_b128 v[{QQ}:{QQ+3}], v38')
    e('s_waitcnt lgkmcnt(0)'); e('v_readfirstlane_b32 s61, v4'); e('v_readfirstlane_b32 s93, v5')
    e('s_sub_u32 s60, s60, 1'); e('s_cbranch_scc1 L_exit')
    e('s_cmp_eq_u32 s61, 0'); e('s_cbranch_scc1 L_waitqa')
    tags()
    stamp(2)
    if NH:
        e('s_cmp_eq_u32 s80, 0'); e('s_cbranch_scc1 L_loopK')
        e(f's_mov_b32 s{SL+2}, 0'); e('s_mov_b32 s56, 1'); e('s_mov_b32 s57, 4'); e('s_mov_b32 s69, 0'); e('s_mov_b64 vcc, -1')
        e(f'v_mov_b32 v{SAVE+6}, {L_FLAG+40}')
        e('s_branch L_bodyK')
    nthr = [0]
    def thr():
        nthr[0] += 1; n = nthr[0]
        e(f's_cbranch_vccnz L_thf{n}'); e(f's_cbranch_scc1 L_thd{n}'); e(f's_waitcnt vmcnt({D})')
        lab(f'L_thd{n}'); e(f's_waitcnt vmcnt({D2})'); lab(f'L_thf{n}'); e('s_waitcnt vmcnt(15)')
    def looptop(x):
        lab(f'L_loop{x}')
        if DIAG == 2:
            e('s_memrealtime s[70:71]'); e('s_and_b32 m0, s82, 63'); e('s_cmp_lt_u32 s82, 64'); e('s_waitcnt lgkmcnt(0)')
            e(f's_cbranch_scc0 L_st2{x}'); e('v_writelane_b32 v3, s70, m0'); e(f's_branch L_st3{x}')
            lab(f'L_st2{x}'); e('v_writelane_b32 v43, s70, m0'); lab(f'L_st3{x}'); e('s_add_u32 s82, s82, 1')
        c('depth level from the pace keeper')
        e('s_waitcnt lgkmcnt(0)'); e(f'v_readfirstlane_b32 s60, v{SAVE+5}')
        e(f'ds_read_b32 v{SAVE+5}, v{SAVE+6} offset:8')
        e('s_or_b32 s69, s75, s60')
        e('s_cmp_le_u32 s56, s78'); e('s_cselect_b64 vcc, -1, 0')
        if thF:
            e('s_bitcmp1_b32 s60, 4'); e('s_cselect_b64 vcc, -1, vcc')
        e('s_cmp_eq_u32 s56, 1'); e(f's_cbranch_scc1 L_switch{x}')
        lab(f'L_body{x}')
    def count():
        e('s_mov_b64 exec, 1'); e(f'ds_add_u32 v{SAVE+6}, v41'); e('s_mov_b64 exec, -1')
    looptop('K')
    for t in range(4):
        K = RING + 16 * t
        count(); e(f's_bitcmp1_b32 s69, {t}')
        for j in range(4):
            thr()
            e(f'v_mfma_f32_16x16x32_bf16 v[{QD+4*j}:{QD+4*j+3}], v[{K+4*j}:{K+4*j+3}], v[{QQ}:{QQ+3}], 0')
            load(t, j)
        adv(t)
        e('s_nop 1')
        S = 4 if t % 2 == 0 else 16
        for k in range(4):
            for j in range(4):
                if k == 0: e(f'v_mov_b32_dpp v{S+j}, v{QD+4*j} quad_perm:[0,0,0,0] row_mask:0xf bank_mask:0xf')
                else: e(f'v_add_f32_dpp v{S+j}, v{QD+4*j+k}, v{S+j} quad_perm:[{k},{k},{k},{k}] row_mask:0xf bank_mask:0xf')
        e(f'v_max3_f32 v10, v10, v{S}, v{S+1}'); e(f'v_max3_f32 v10, v10, v{S+2}, v{S+3}')
        e('s_mov_b64 exec, s[62:63]'); e(f'ds_write_b128 v11, v[{S}:{S+3}]'); e('s_mov_b64 exec, -1')
        e('v_add_u32 v11, s66, v11')
    e('s_sub_u32 s56, s56, 1'); e('s_cmp_lg_u32 s56, 0'); e('s_cbranch_scc1 L_loopK')
    c('end of a K pass: exact maximum of the scores of this wave')
    e('s_cmp_eq_u32 s57, 1'); e('s_cbranch_scc0 L_endK')
    e(f'v_mov_b32 v38, v{SAVE+1}')
    e(f'ds_read_b128 v[{QD}:{QD+3}], v38')
    lab('L_endK')
    e('v_mov_b32 v9, v10'); e('s_nop 1'); e('v_permlane32_swap_b32 v10, v9'); e('v_max_f32 v10, v10, v9')
    e('v_mov_b32 v9, v10'); e(f's_mov_b32 s56, {NP_B}'); e('s_nop 0'); e('v_permlane16_swap_b32 v10, v9'); e('v_max_f32 v10, v10, v9')
    e('s_cbranch_scc0 L_endKA')
    e('s_mov_b32 s57, 2')
    lab('L_startV')
    c('V pass: scores at v38 (stride s66), maximum v10')
    e('v_add_u32 v38, s66, v38')
    e('s_lshr_b32 s75, s74, 8')
    e('v_mul_f32 v11, s59, v10'); e('v_sub_f32 v11, 0, v11')
    e('v_mov_b32 v12, 0')
    for r in range(8): e(f'v_mov_b32 v{16+r}, 0')
    if FULL:
        e('s_memrealtime s[70:71]'); e('s_add_u32 s60, s57, 2'); e('s_mov_b32 m0, s60'); e('s_waitcnt lgkmcnt(0)'); e('v_writelane_b32 v1, s70, m0')
    RS = (26, SAVE + 8)
    def soft(k, R, lg):
        if k == 0:
            e(f's_waitcnt lgkmcnt({lg})')
            for r in range(4): e(f'v_fma_f32 v{4+r}, v{QD+r}, s59, v11')
            e(f'ds_read_b128 v[{QD}:{QD+3}], v38'); e('v_add_u32 v38, s66, v38')
        elif k == 1:
            for r in range(4): e(f'v_exp_f32 v{4+r}, v{4+r}')
        elif k == 2:
            e('v_cvt_pk_bf16_f32 v24, v4, v5'); e('v_cvt_pk_bf16_f32 v25, v6, v7')
            e('v_add_f32 v8, v4, v5'); e('v_add_f32 v9, v6, v7')
        if k >= 2:
            for r in (2 * k - 4, 2 * k - 3):
                e(f'v_perm_b32 v{R+2*r}, v{24+(r>>1)}, v{24+(r>>1)}, v{34+(r&1)}')
                e(f'v_perm_b32 v{R+2*r+1}, v{24+(r>>1)}, v{24+(r>>1)}, v{36+(r&1)}')
        if k == 3: e('v_add_f32 v8, v8, v9')
    if pipeV:
        soft(0, RS[0], 0); soft(1, RS[0], 0); e('s_nop 0'); soft(2, RS[0], 0); soft(3, RS[0], 0)
    looptop('V')
    for t in range(4):
        V = RING + 16 * t
        e(f's_bitcmp1_b32 s69, {t}')
        if pipeV:
            R = RS[t & 1]
            e('v_add_f32 v12, v12, v8')
        else:
            R = RS[0]
            soft(0, R, 1 if t == 0 else 0); count(); soft(1, R, 0); e('s_nop 0'); soft(2, R, 0); soft(3, R, 0)
            e('v_add_f32 v12, v12, v8')
        for r in range(4):
            thr()
            e(f'v_mfma_f32_16x16x16_bf16 v[16:19], v[{V+4*r}:{V+4*r+1}], v[{R+2*r}:{R+2*r+1}], v[16:19]')
            e(f'v_mfma_f32_16x16x16_bf16 v[20:23], v[{V+4*r+2}:{V+4*r+3}], v[{R+2*r}:{R+2*r+1}], v[20:23]')
            load(t, r)
            if pipeV:
                soft(r, RS[(t + 1) & 1], 1 if t == 0 else 0)
                if r == 0: count()
        adv(t)
    e('s_sub_u32 s56, s56, 1'); e('s_cmp_lg_u32 s56, 0'); e('s_cbranch_scc1 L_loopV')
    e('v_mov_b32 v9, v12'); e('v_mul_f32 v4, s59, v10')
    e('s_cmp_eq_u32 s57, 2'); e('s_cbranch_scc1 L_endVB')
    c('reduce l, publish the A partial')
    e('v_permlane32_swap_b32 v12, v9'); e('v_add_f32 v12, v12, v9')
    e('v_mov_b32 v9, v12')
    puttag(24, 8, SAVE + 3, src=16)
    e('v_permlane16_swap_b32 v12, v9'); e('v_add_f32 v5, v12, v9'); e('v_mov_b32 v6, s94'); e('v_mov_b32 v7, s95')
    stamp(6)
    if DIAG == 4:
        e('s_memrealtime s[70:71]'); e('s_waitcnt lgkmcnt(0)'); e('v_mov_b32 v8, s70'); e(f'ds_write_b32 v{SAVE+6}, v8 offset:32')
    e('s_cmp_eq_u32 s67, 2'); e('s_cbranch_scc0 L_pubslow')
    def pubA(p):
        e('s_mov_b32 exec_lo, 0x000f000f'); e('s_mov_b32 exec_hi, 0x000f000f')
        e(f'buffer_store_dwordx4 v[24:27], v15, s[{SWS}:{SWS+3}], s68 offen offset:{BASE+128} {p}')
        e(f'buffer_store_dwordx4 v[28:31], v15, s[{SWS}:{SWS+3}], s68 offen offset:{BASE+384} {p}')
        e('s_mov_b64 exec, 0x5555')
        e(f'buffer_store_dwordx4 v[4:7], v{SAVE+4}, s[{SWS}:{SWS+3}], s68 offen offset:{BASE} {p}')
        if sig:
            e('s_mov_b64 exec, 1'); e(f'ds_add_u32 v{SAVE+6}, v41')
        e('s_branch L_exit')
    pubA('')
    lab('L_pubslow')
    pubA('sc1')
    lab('L_endVB')
    c('hand the B state to the B finisher through LDS')
    e(f'v_mov_b32 v38, v{SAVE}'); e('v_mov_b32 v5, v12')
    e('s_mul_i32 s60, s64, 2560'); e('v_add_u32 v8, s60, v14'); e(f'v_add_u32 v9, s60, v{SAVE+4}')
    e('ds_write_b128 v8, v[16:19]'); e('ds_write_b128 v8, v[20:23] offset:1024'); e('ds_write_b64 v9, v[4:5] offset:2048')
    e('s_mov_b64 exec, 1'); e('ds_add_u32 v40, v41 offset:8'); e('s_mov_b64 exec, -1')
    e(f'ds_read_b128 v[{QD}:{QD+3}], v38')
    e(f's_mov_b32 s56, {NP_A}'); e('s_mov_b32 s57, 3'); e('s_mov_b32 s66, 64'); e(f's_mov_b32 s78, {nfree}')
    e(f'v_mov_b32 v10, v{SAVE+2}')
    e('s_waitcnt lgkmcnt(2)')
    e('s_branch L_startV')
    lab('L_endKA')
    if dryK:
        e('s_cmp_eq_u32 s57, 5'); e('s_cbranch_scc1 L_dryKret')
    if NH:
        e('s_cmp_eq_u32 s57, 4'); e('s_cbranch_scc0 L_endKA2')
        c('helper: leave the maximum for the streaming wave')
        e('s_lshl_b32 s60, s3, 2'); e(f'v_add_u32 v8, s60, v40')
        e('s_mov_b64 exec, 1'); e(f'ds_write_b32 v8, v10 offset:{48-4*WH}'); e('ds_add_u32 v40, v41 offset:4')
        e('s_branch L_exit')
        lab('L_endKA2')
    e(f's_mov_b32 s60, {SPIN*4}')
    lab('L_waitqb')
    e('ds_read_b64 v[8:9], v40')
    if NH: e(f'ds_read_b32 v4, v{SAVE+6} offset:24')
    if NH == 4: e(f'ds_read_b32 v5, v{SAVE+6} offset:32')
    e(f'ds_read_b128 v[{QQ}:{QQ+3}], v39')
    e('s_waitcnt lgkmcnt(0)'); e('v_readfirstlane_b32 s67, v8'); e('v_readfirstlane_b32 s61, v9')
    e('s_sub_u32 s60, s60, 1'); e('s_cbranch_scc1 L_exit')
    e('s_cmp_eq_u32 s67, 0'); e('s_cbranch_scc1 L_waitqb')
    if NH:
        e(f's_cmp_lt_u32 s61, {NH}'); e('s_cbranch_scc1 L_waitqb')
        e('v_max_f32 v10, v10, v4')
        if NH == 4: e('v_max_f32 v10, v10, v5')
    e(f'v_mov_b32 v{SAVE+2}, v10')
    e('s_mov_b32 s57, 1')
    e(f'v_mov_b32 v11, v{SAVE+1}'); e('s_movk_i32 s66, 0x100'); e('s_mov_b32 s62, 0x11111111'); e('s_mov_b32 s63, 0x11111111')
    e(f'v_mov_b32 v10, 0x{f32(-3.0e38):08x}')
    stamp(3)
    e('s_branch L_loopK')
    def switch(ptr, lg, vreg, body):
        e(f's_lshr_b32 s60, s65, {22-lg}'); e('s_lshl_b32 s60, s60, 22')
        srd(SL, ptr, 1 << 22, 's60')
        if lg == 18: usepass(LB, 77, 79)
        else: usepass(LA, 58, 76)
        e(f's_add_u32 s88, {IT}, s84')
        e(f'v_mov_b32 v42, v{vreg}')
        e(f's_branch {body}')
    lab('L_switchK')
    e('s_cmp_eq_u32 s57, 0'); e('s_cbranch_scc0 L_sw1')
    switch(16, 18, 13, 'L_bodyK')
    lab('L_sw1')
    switch(18, 18, 14, 'L_bodyK')
    lab('L_switchV')
    e(f's_mov_b32 s{SL+2}, 0')
    e('s_cmp_eq_u32 s57, 2'); e('s_cbranch_scc0 L_bodyV')
    switch(8, 20, 14, 'L_bodyV')
    if tWB:
        lab('L_qbw')
        waitprog('L_waitwb', tWB, sl=1, tiles=(tT if tT else None))
        e('s_branch L_qbw1')
    lab('L_ret_qb')
    c('publish the die id of this workgroup')
    e('s_getreg_b32 s67, hwreg(HW_REG_XCC_ID, 0, 4)')
    e('v_mov_b32 v44, s67'); e('v_mov_b32 v45, s67'); e('v_mov_b32 v46, s94'); e('v_mov_b32 v47, s95')
    e(f's_add_u32 s60, s68, {IDO}')
    e('s_mov_b64 exec, 0xff')
    e(f'buffer_store_dwordx4 v[44:47], v14, s[{SWS}:{SWS+3}], s60 offen sc1')
    e('s_mov_b64 exec, -1')
    e(f'v_and_b32 v8, 31, v0'); e(f's_mov_b32 s60, {8*STRIDE}'); e('v_mul_lo_u32 v13, v8, s60')
    e(f's_mul_i32 s75, s30, {STRIDE}'); e(f's_add_u32 s75, s75, {IDO+BASE}')
    e('v_lshrrev_b32 v15, 5, v0'); e('v_lshl_add_u32 v11, v15, 8, v11')
    if ab & 32:
        e('v_mov_b32 v8, 2'); e('ds_write_b32 v59, v8'); e('s_branch L_exit')
    waitprog('L_waitq', NPK - tQ)
    e(f's_mov_b32 s62, {SPIN}')
    e('s_branch L_qg1')
    lab('L_qg')
    e('s_sleep 32')
    lab('L_qg1')
    e(f's_mul_i32 s60, s30, {STRIDE*32}'); e('s_lshl_b32 s61, s53, 7'); e('s_add_u32 s60, s60, s61'); e(f's_add_u32 s60, s60, {QBO+BASE}')
    for a in range(2):
        for p in range(8):
            n = a * 8 + p
            if gD < 16: e(f's_waitcnt vmcnt({gD})')
            e(f'buffer_load_dwordx4 v[{64+4*n}:{64+4*n+3}], v10, s[{SWS}:{SWS+3}], s60 offen sc1')
            if p < 7: e(f's_add_u32 s60, s60, {STRIDE}')
        if a == 0: e(f's_add_u32 s60, s60, {9*STRIDE}')
    e(f'buffer_load_dwordx4 v[44:47], v13, s[{SWS}:{SWS+3}], s75 offen sc1')
    e('s_sub_u32 s62, s62, 1'); e('s_cbranch_scc1 L_exit')
    e('s_waitcnt vmcnt(0)')
    untag(64, 64, 8)
    e('v_xor_b32 v46, s94, v46'); e('v_xor_b32 v47, s95, v47'); e('v_or_b32 v46, v46, v47')
    e('v_and_or_b32 v8, v8, v60, v46'); e('v_cmp_ne_u32 vcc, 0, v8'); e('s_cbranch_vccnz L_qg')
    c('flag value 2: all 32 workgroups of the group share this die, 1: they do not')
    e('v_cmp_ne_u32 vcc, s67, v44'); e('s_cmp_eq_u64 vcc, 0'); e(f's_cselect_b32 s67, {2 if local else 1}, 1')
    for a in range(2):
        for p in range(1, 8):
            for r in range(4): e(f'v_add_f32 v{64+32*a+r}, v{64+32*a+r}, v{64+32*a+4*p+r}')
        for r in range(4):
            e(f'v_cvt_pk_bf16_f32 v{64+32*a+r}, v{64+32*a+r}, v{64+32*a+r}')
        for r in range(4):
            e(f'ds_write_b16 v11, v{64+32*a+r} offset:{L_QB + 512*a + 16*r}')
    e('v_mov_b32 v8, s67')
    e('ds_write_b32 v59, v8')
    stamp(4)
    e('s_branch L_exit')
    lab('L_finisher')
    if dryK:
        e('s_cmp_eq_u32 s79, 0'); e('s_cbranch_scc0 L_fin0')
        c('run the K loop once through a zero-size descriptor with the LDS stores masked off (instruction cache warm-up)')
        srd(SL, 6, 0)
        e('s_mov_b32 s54, 0'); e('s_mov_b32 s55, 0'); e('s_mov_b32 s56, 1'); e('s_mov_b32 s57, 5'); e('s_mov_b32 s66, 0'); e('s_mov_b64 s[62:63], 1')
        for k in range(84, 89): e(f's_mov_b32 s{k}, 0')
        e(f'v_mov_b32 v{SAVE+6}, {L_FLAG+40}'); e('v_mov_b32 v41, 0'); e('s_mov_b64 vcc, -1'); e('v_mov_b32 v42, 0'); e(f'v_mov_b32 v11, {L_X}')
        for r in (4, 5, 7): e(f'v_mov_b32 v{SAVE+16+r}, v{r}')
        e('s_branch L_bodyK')
        lab('L_dryKret')
        for r in (4, 5, 7): e(f'v_mov_b32 v{r}, v{SAVE+16+r}')
        e(f'v_mov_b32 v59, {L_FLAG}'); e('v_mov_b32 v60, 0xff')
        lab('L_fin0')
    O1 = 128; O2 = 144; M1 = 44; M2 = 160; AC = 48
    c('parameters: s74 record base (ML), s84..87 O offsets, s76 own Y, s80 Y gather, s77 out offset, s78 n0 stride, s79 is-B')
    e(f's_lshl_b32 s76, s79, 10'); e('s_mov_b32 s77, s76'); e(f's_add_u32 s76, s76, {YA}')
    e('s_cmp_eq_u32 s79, 0'); e('s_cbranch_scc0 L_parB')
    e('s_and_b32 s60, s2, 0xc7'); e(f's_mul_i32 s74, s60, {STRIDE}'); e(f's_add_u32 s74, s74, {BASE}'); e('s_add_u32 s75, s74, 128'); e(f's_mov_b32 s78, {RA}')
    e('s_branch L_par')
    lab('L_parB')
    e(f's_mul_i32 s74, s30, {STRIDE}'); e(f's_add_u32 s74, s74, {OB+BASE}'); e('s_lshr_b32 s60, s31, 3')
    e('s_lshl_b32 s61, s60, 9'); e('s_add_u32 s75, s74, s61'); e('s_add_u32 s75, s75, 128')
    e('s_lshl_b32 s61, s60, 5'); e('s_add_u32 s74, s74, s61'); e(f's_mov_b32 s78, {64*STRIDE}')
    lab('L_par')
    e('s_lshl_b32 s60, s53, 8'); e('s_add_u32 s84, s75, s60')
    e('s_add_u32 s85, s84, s78'); e(f's_add_u32 s86, s84, {32*STRIDE}'); e('s_add_u32 s87, s86, s78')
    for k in range(4): e(f's_add_u32 s{88+k}, s{84+k}, {128*STRIDE}')
    e(f's_add_u32 s92, s74, {128*STRIDE}')
    e(f's_mov_b32 s60, {8*STRIDE}')
    e('v_mul_lo_u32 v15, v2, s60'); e('v_add_u32 v15, v15, v4')
    e('v_and_b32 v8, 3, v0'); e('v_xor_b32 v8, v8, v2'); e('v_lshl_add_u32 v8, v7, 2, v8'); e('v_mul_lo_u32 v13, v8, s60')
    e('v_bfe_u32 v8, v0, 2, 1'); e('v_mul_lo_u32 v8, v8, s78'); e('v_add_u32 v13, v13, v8')
    lgy = NY.bit_length() - 1
    NC = 256 // NY
    e(f'v_lshrrev_b32 v8, {lgy}, v0'); e('v_and_b32 v9, 7, v8'); e('v_lshrrev_b32 v8, 3, v8'); e('v_lshl_add_u32 v8, v8, 5, v9')
    e(f's_mov_b32 s60, {STRIDE}'); e('v_mul_lo_u32 v12, v8, s60')
    e(f'v_and_b32 v10, {NY-1}, v0'); e('v_lshl_add_u32 v12, v10, 4, v12')
    c('LDS scratch addresses: v57 write, v58 read')
    e('s_lshl_b32 s60, s79, 8'); e(f's_add_u32 s60, s60, {L_X}')
    e('v_lshrrev_b32 v8, 1, v2'); e('v_lshlrev_b32 v8, 7, v8'); e('v_and_b32 v9, 1, v2'); e('v_lshl_add_u32 v8, v9, 2, v8')
    e('v_lshrrev_b32 v9, 1, v4'); e('v_add3_u32 v57, v8, v9, s60')
    e('v_lshlrev_b32 v8, 7, v7'); e('v_lshl_add_u32 v8, v2, 5, v8'); e('v_add_u32 v58, s60, v8')
    c('consumer role: s81 = 0 when this workgroup reduces outputs of its branch')
    e(f's_lshr_b32 s81, s2, {8-lgy}')
    if NY > 1:
        e(f's_mul_i32 s60, s79, {NY//2}'); e('s_xor_b32 s81, s81, s60')
    e('s_and_b32 s61, s2, 3'); e(f's_mul_i32 s80, s61, {8*STRIDE}'); e('s_add_u32 s80, s80, s76'); e(f's_add_u32 s80, s80, {BASE}')
    e(f's_and_b32 s63, s2, {NC-1}'); e('s_lshr_b32 s63, s63, 2'); e(f's_lshl_b32 s63, s63, {lgy}')
    e('s_lshl_b32 s60, s63, 4'); e('s_add_u32 s80, s80, s60')
    e('s_lshl_b32 s61, s61, 8'); e('s_add_u32 s77, s77, s61')
    e('s_lshr_b32 s61, s63, 4'); e('s_lshl_b32 s61, s61, 6'); e('s_add_u32 s77, s77, s61')
    e('s_bfe_u32 s61, s63, 0x10003'); e('s_lshl_b32 s61, s61, 11'); e('s_add_u32 s77, s77, s61')
    e('s_and_b32 s61, s63, 7'); e('s_lshl_b32 s61, s61, 1'); e('s_add_u32 s77, s77, s61')
    e('v_and_b32 v8, 1, v2'); e('v_lshrrev_b32 v9, 1, v2'); e('v_lshl_add_u32 v8, v8, 1, v9'); e('v_lshlrev_b32 v11, 4, v8')
    e('v_lshl_add_u32 v11, v10, 1, v11')
    e('s_add_u32 s76, s76, s68'); e('s_mov_b32 s98, 1')
    e(f'v_mov_b32 v{M2}, 0x{f32(-3.0e38):08x}')
    srd(SX, 24, 0)
    if dry:
        c('dry run of the tail code through zero-size descriptors (instruction cache warm-up)')
        e(f's_mov_b32 s{SWS+2}, 0'); e('s_mov_b32 s83, 1')
        for k in range(4): e(f's_mov_b32 s{TG+k}, 0')
        e('s_mov_b32 s94, 0'); e('s_mov_b32 s95, 0')
        if late:
            e(f's_mov_b32 s{SW+2}, 0'); e('s_cmp_eq_u32 s79, 0'); e('s_cbranch_scc1 L_wl')
        e('s_branch L_fin')
    lab('L_real')
    e('s_mov_b64 exec, -1')
    e('s_mov_b32 s83, 0'); e(f's_mov_b32 s{SWS+2}, {WSBYTES}'); e(f's_mov_b32 s{SX+2}, 4096'); e(f's_mov_b32 s{SW+2}, {1<<22}')
    waitlds('L_waittag', 12, 1)
    e('ds_read_b32 v8, v59 offset:16'); e('s_waitcnt vmcnt(0) lgkmcnt(0)'); e('v_readfirstlane_b32 s93, v8')
    tags()
    e('s_cmp_eq_u32 s79, 0'); e('s_cbranch_scc1 L_waitA')
    c('B finisher: merge the two B states, publish near the end')
    waitlds('L_waitB', 8, WS)
    BO = 128
    e('v_lshlrev_b32 v10, 3, v0')
    e('ds_read_b32 v53, v59')
    e(f'ds_read_b128 v[{BO}:{BO+3}], v14'); e(f'ds_read_b128 v[{BO+4}:{BO+7}], v14 offset:1024'); e('ds_read_b64 v[44:45], v10 offset:2048')
    e(f'ds_read_b128 v[{BO+8}:{BO+11}], v14 offset:2560'); e(f'ds_read_b128 v[{BO+12}:{BO+15}], v14 offset:3584'); e('ds_read_b64 v[46:47], v10 offset:4608')
    e('s_waitcnt lgkmcnt(0)')
    e('v_readfirstlane_b32 s67, v53')
    e('v_max_f32 v48, v44, v46'); e('v_sub_f32 v8, v44, v48'); e('v_sub_f32 v9, v46, v48'); e('v_exp_f32 v8, v8'); e('v_exp_f32 v9, v9'); e('s_nop 0')
    e('v_mul_f32 v49, v45, v8'); e('v_fmac_f32 v49, v47, v9')
    e('v_mov_b32 v50, v49'); e('s_nop 1'); e('v_permlane32_swap_b32 v49, v50'); e('v_add_f32 v49, v49, v50')
    e('v_mov_b32 v50, v49'); e('s_nop 1'); e('v_permlane16_swap_b32 v49, v50'); e('v_add_f32 v49, v49, v50')
    e('v_mov_b32 v50, s94'); e('v_mov_b32 v51, s95')
    for r in range(8):
        e(f'v_mul_f32 v{BO+r}, v{BO+r}, v8'); e(f'v_fmac_f32 v{BO+r}, v{BO+8+r}, v9')
    puttag(BO, 8, 60)
    e('v_and_b32 v8, 3, v0'); e('v_lshl_add_u32 v8, v2, 2, v8'); e('v_lshlrev_b32 v8, 4, v8'); e('v_bfe_u32 v9, v0, 2, 2'); e('v_lshl_add_u32 v52, v9, 9, v8')
    stamp(3)
    waitprog('L_waitpub', NIT - tPub)
    e(f's_add_u32 s60, s68, {OB}')
    def pubB(p):
        e(f'buffer_store_dwordx4 v[{BO}:{BO+3}], v52, s[{SWS}:{SWS+3}], s60 offen offset:128 {p}')
        e(f'buffer_store_dwordx4 v[{BO+4}:{BO+7}], v52, s[{SWS}:{SWS+3}], s60 offen offset:384 {p}')
        e('s_mov_b64 exec, 0x5555')
        e(f'buffer_store_dwordx4 v[48:51], v10, s[{SWS}:{SWS+3}], s60 offen {p}')
        e('s_mov_b64 exec, -1')
    e('s_cmp_eq_u32 s67, 2'); e('s_cbranch_scc1 L_pubBfast')
    pubB('sc1')
    e('s_branch L_pubBdone')
    lab('L_pubBfast')
    pubB('')
    lab('L_pubBdone')
    e('s_waitcnt vmcnt(0)')
    if tG >= 0: waitprog('L_waitg', NIT - tG)
    e('s_branch L_fin1')
    lab('L_waitA')
    if ctl:
        c('pace keeper: a wave that lags behind the mean progress of its group keeps one more load in flight')
        e(f's_lshl_b32 s61, s30, 7'); e(f's_add_u32 s96, s61, {PGO}')
        e('s_lshl_b32 s61, s31, 2'); e('v_mov_b32 v44, s61')
        e('v_and_b32 v45, 31, v0'); e('v_lshlrev_b32 v45, 2, v45')
        e('s_and_b32 s97, s94, 0xffff0000')
        e('v_mov_b32 v50, 0'); e('v_mov_b32 v51, 0')
        BIAS = 4096
        c('group leader: s54 true group sum, s55 last reported, s56 reported before that, s57 offset folded into the own word, s58 first-report mark')
        e('s_mov_b32 s54, 0'); e('s_mov_b32 s55, 0'); e('s_mov_b32 s56, 0'); e('s_mov_b32 s57, 0'); e(f's_mov_b32 s58, {1<<24}')
        e(f's_mov_b32 s60, {SPIN*4}')
        lab('L_ctl')
        if cslp: e(f's_sleep {cslp}')
        e('ds_read_b64 v[8:9], v59 offset:24'); e(f's_add_u32 s63, s57, {BIAS}'); e('s_waitcnt lgkmcnt(0)')
        e('v_add_u32 v46, v8, v9'); e('v_add_u32 v47, s63, v46')
        e('v_readfirstlane_b32 s61, v46'); e('v_or_b32 v47, s97, v47')
        e('s_mov_b64 exec, 1'); e(f'buffer_store_dword v47, v44, s[{SWS}:{SWS+3}], s96 offen'); e('s_mov_b64 exec, -1')
        e('s_sub_u32 s60, s60, 1'); e('s_cbranch_scc1 L_exit')
        e(f's_cmp_ge_u32 s61, {8*(NIT-ctlend)}'); e('s_cbranch_scc1 L_ctlend')
        e(f'buffer_load_dword v48, v45, s[{SWS}:{SWS+3}], s96 offen sc1')
        e('v_add_u32 v50, v50, v8'); e('v_add_u32 v51, v51, v9')
        e('s_mov_b32 s59, s57')
        if xctl:
            e('s_cmp_eq_u32 s54, 0'); e('s_cbranch_scc1 L_nox')
            if xdiv > 1:
                e(f's_and_b32 s62, s60, {xdiv-1}'); e('s_cbranch_scc1 L_nox')
            e('s_sub_u32 s62, s54, s55'); e('s_add_u32 s62, s62, s58')
            e('s_atomic_add s62, s[26:27], 0 glc')
            e('s_mov_b32 s56, s55'); e('s_mov_b32 s55, s54')
            e('s_waitcnt lgkmcnt(0)')
            e('s_lshr_b32 s63, s62, 24'); e('s_or_b32 s63, s63, s58'); e('s_mov_b32 s58, 0')
            e('s_cmp_eq_u32 s63, 8'); e('s_cbranch_scc0 L_nox')
            e('s_and_b32 s62, s62, 0xffffff'); e('s_sub_u32 s62, s62, s56')
            e('s_add_u32 s63, s55, s56'); e('s_lshr_b32 s63, s63, 1'); e('s_mul_i32 s63, s63, 7')
            e('s_sub_u32 s62, s62, s63'); e(f's_ashr_i32 s62, s62, {3-xgain}')
            e('s_min_i32 s62, s62, 2048'); e('s_max_i32 s62, s62, -2048')
            if xsm:
                e(f's_mul_i32 s57, s57, {(1<<xsm)-1}'); e('s_add_u32 s57, s57, s62'); e(f's_ashr_i32 s57, s57, {xsm}')
            else:
                e('s_mov_b32 s57, s62')
            if xnull: e('s_mov_b32 s57, 0')
            lab('L_nox')
        e('s_waitcnt vmcnt(0)')
        e('v_xor_b32 v48, s97, v48'); e('v_cmp_lt_u32 vcc, 0xffff, v48')
        for d in (8, 4, 2, 1):
            e('s_nop 1'); e(f'v_add_u32_dpp v48, v48, v48 row_ror:{d} row_mask:0xf bank_mask:0xf')
        e('v_mov_b32 v49, v48'); e('s_nop 1'); e('v_permlane16_swap_b32 v48, v49'); e('v_add_u32 v48, v48, v49')
        e(f'v_subrev_u32 v48, {32*BIAS}, v48')
        e('v_lshlrev_b32 v50, 5, v50'); e('v_lshlrev_b32 v51, 5, v51')
        e('v_readfirstlane_b32 s63, v48')
        e('v_sub_u32 v50, v48, v50'); e('v_sub_u32 v51, v48, v51')
        e('s_sub_u32 s63, s63, s59')
        e('s_cmp_eq_u64 vcc, 0'); e(f's_mov_b32 s62, {thU}'); e('s_cselect_b32 s62, s62, 0x7fffffff'); e('s_cselect_b32 s54, s63, s54')
        e('s_cmp_eq_u32 s31, 0'); e('s_cselect_b32 s54, s54, 0')
        for r in (50, 51):
            e(f'v_cmp_lt_i32 vcc, s62, v{r}'); e('s_nop 1'); e(f'v_cndmask_b32 v{r+2}, 0, 15, vcc')
            if thF:
                e(f's_max_i32 s63, s62, {thF}'); e(f'v_cmp_lt_i32 vcc, s63, v{r}'); e('s_nop 1'); e(f'v_cndmask_b32 v{r+2}, v{r+2}, 31, vcc')
        e('ds_write_b64 v59, v[52:53] offset:32')
        e('v_mov_b32 v50, v8'); e('v_mov_b32 v51, v9')
        e('s_branch L_ctl')
        lab('L_ctlend')
    if late:
        c('the output weights of branch A follow the last V loads')
        waitprog('L_waitwl', NIT, sl=1, tiles=8 * NIT - tWL)
        lab('L_wl')
        e('s_mov_b32 s60, s69')
        for t3 in range(4):
            for t2 in range(4):
                t = t2 * 4 + t3
                e(f'buffer_load_dwordx4 v[{WT+4*t}:{WT+4*t+3}], v5, s[{SW}:{SW+3}], s60 offen offset:{1024*t2} {wpol}')
            if t3 < 3: e('s_addk_i32 s60, 0x2000')
        if dry:
            e('s_cmp_eq_u32 s83, 1'); e('s_cbranch_scc1 L_fin')
    if tpre:
        c('touch the records once so that later polls find them in the cache')
        e(f'buffer_load_dwordx4 v[{M1}:{M1+3}], v13, s[{SWS}:{SWS+3}], s74 offen sc1')
        for k in range(4): e(f'buffer_load_dwordx4 v[{O1+4*k}:{O1+4*k+3}], v15, s[{SWS}:{SWS+3}], s{84+k} offen sc1')
    waitprog('L_waitown', NIT, sl=(0 if sig else 1), tiles=(8 * NIT + sig - 1 if sig else None))
    lab('L_fin1')
    stamp(5, True)
    lab('L_fin')
    DP = ['quad_perm:[1,0,3,2]', 'quad_perm:[2,3,0,1]', 'row_half_mirror']
    def gather(label, A, M, so, sm, weights):
        e(f's_mov_b32 s60, {SPIN}')
        lab(label)
        e(f'buffer_load_dwordx4 v[{M}:{M+3}], v13, s[{SWS}:{SWS+3}], s{sm} offen {gpol}')
        for k in range(4): e(f'buffer_load_dwordx4 v[{A+4*k}:{A+4*k+3}], v15, s[{SWS}:{SWS+3}], s{so+k} offen {gpol}')
        e('s_sub_u32 s60, s60, 1'); e('s_cbranch_scc1 L_exit')
        e('s_waitcnt vmcnt(4)')
        if weights: e(f'v_max_f32 v62, v{M1}, v{M2}')
        e(f'v_xor_b32 v9, s94, v{M+2}'); e(f'v_xor_b32 v10, s95, v{M+3}')
        if weights: e(f'v_max_f32_dpp v62, v62, v62 {DP[0]} row_mask:0xf bank_mask:0xf')
        e('v_or_b32 v9, v9, v10')
        extra = [f'v_max_f32_dpp v62, v62, v62 {DP[1]} row_mask:0xf bank_mask:0xf', f'v_max_f32_dpp v62, v62, v62 {DP[2]} row_mask:0xf bank_mask:0xf',
                 f'v_sub_f32 v63, v{M1}, v62', 'v_exp_f32 v63, v63'] if weights else []
        for k in range(4):
            e(f's_waitcnt vmcnt({3-k})')
            ops = untag_ops(A + 4 * k, 4, 8, first=(k == 0))
            if extra and k < 2:
                ops.insert(1, extra[2 * k]); ops.insert(4, extra[2 * k + 1])
            for o in ops: e(o)
        e('v_and_or_b32 v8, v8, v60, v9')
        e('v_cmp_ne_u32 vcc, 0, v8')
        e(f's_cbranch_vccnz {label}')
    e('s_cmp_eq_u32 s79, 0'); e('s_cbranch_scc1 L_g0s')
    gather('L_g1', O2, M2, 88, 92, False)
    lab('L_g0s')
    for r in range(4): e(f'v_mov_b32 v{DD+r}, 0')
    gather('L_g0', O1, M1, 84, 74, True)
    stamp(6, True)
    if DIAG == 4: e('v_writelane_b32 v1, s60, 14')
    c('v62 = maximum of the group, v63 = weight of the own record')
    for b in range(2):
        for k in range(4): e(f'v_mul_f32_dpp v{AC+4*b+k}, v63, v{O1+8*b+k} row_newbcast:{8*b} row_mask:0xf bank_mask:0xf')
    for b in range(2):
        for k in range(4): e(f'v_fmac_f32_dpp v{AC+4*b+k}, v63, v{O1+8*b+4+k} row_newbcast:{8*b+4} row_mask:0xf bank_mask:0xf')
    e(f'v_mul_f32 v61, v{M1+1}, v63')
    e('s_cmp_eq_u32 s79, 0'); e('s_cbranch_scc1 L_m3')
    e(f'v_sub_f32 v56, v{M2}, v62'); e('v_exp_f32 v56, v56'); e('s_nop 0'); e(f'v_fmac_f32 v61, v{M2+1}, v56'); e('s_nop 0')
    for n0 in range(2):
        for b in range(2):
            for k in range(4): e(f'v_fmac_f32_dpp v{AC+4*b+k}, v56, v{O2+8*b+4*n0+k} row_newbcast:{8*b+4*n0} row_mask:0xf bank_mask:0xf')
    lab('L_m3')
    for k in range(4): e(f'v_permlane32_swap_b32 v{AC+k}, v{AC+4+k}')
    for k in range(4): e(f'v_add_f32 v{AC+k}, v{AC+k}, v{AC+4+k}')
    e(f'v_add_f32_dpp v61, v61, v61 {DP[0]} row_mask:0xf bank_mask:0xf')
    e(f'v_permlane16_swap_b32 v{AC}, v{AC+2}'); e(f'v_permlane16_swap_b32 v{AC+1}, v{AC+3}')
    e(f'v_add_f32 v{AC}, v{AC}, v{AC+2}'); e(f'v_add_f32 v{AC+1}, v{AC+1}, v{AC+3}')
    e(f'v_cvt_pk_bf16_f32 v8, v{AC}, v{AC+1}')
    e('ds_write_b32 v57, v8')
    e(f'ds_read_b128 v[{XP}:{XP+3}], v58'); e(f'ds_read_b128 v[{XP+4}:{XP+7}], v58 offset:16')
    e(f'v_add_f32_dpp v61, v61, v61 {DP[1]} row_mask:0xf bank_mask:0xf'); e('s_nop 1')
    e(f'v_add_f32_dpp v61, v61, v61 {DP[2]} row_mask:0xf bank_mask:0xf')
    e('v_rcp_f32 v61, v61')
    e('s_waitcnt lgkmcnt(0)')
    if tYB >= 0:
        e('s_andn2_b32 s60, s79, s83'); e('s_cbranch_scc0 L_projmm')
        waitprog('L_waityb', NIT, sl=1, tiles=8 * NIT - tYB)
    e('s_branch L_projmm')
    lab('L_ret_fin')
    stamp(7, True)
    if ywait:
        e('s_cmp_eq_u32 s83, 1'); e('s_cbranch_scc1 L_yw2')
        e('s_cmp_eq_u32 s79, 0'); e('s_cbranch_scc0 L_yw1')
        e('v_mov_b32 v8, 1'); e('ds_write_b32 v59, v8 offset:20')
        e('s_branch L_yw2')
        lab('L_yw1')
        e('s_cmp_lg_u32 s81, 0'); e('s_cbranch_scc1 L_done')
        waitlds('L_yw', 20, 1, sl=1)
        lab('L_yw2')
    e('s_cmp_lg_u32 s81, 0'); e('s_cbranch_scc1 L_done')
    assert NS * NY * 4 <= 32
    def yissue(s):
        for n in range(NY):
            if n == 0: so = 's80'
            else:
                e(f's_add_u32 s61, s80, {n*(256//NY)*STRIDE}'); so = 's61'
            r = O1 + 4 * (s * NY + n)
            e(f'buffer_load_dwordx4 v[{r}:{r+3}], v12, s[{SWS}:{SWS+3}], {so} offen sc1')
    for s in range(NS):
        if s: e(f's_sleep {ysp}')
        yissue(s)
    lab('L_y')
    for s in range(NS):
        for n in range(NY):
            r = O1 + 4 * (s * NY + n)
            e(f's_waitcnt vmcnt({(NS-1)*NY + NY-1-n})')
            untag(r, 4, 8, first=(n == 0))
            if n == 1:
                for k in range(4): e(f'v_add_f32 v{AC+k}, v{r-4+k}, v{r+k}')
            elif n > 1:
                for k in range(4): e(f'v_add_f32 v{AC+k}, v{AC+k}, v{r+k}')
            elif NY == 1:
                for k in range(4): e(f'v_mov_b32 v{AC+k}, v{r+k}')
        e('v_and_b32 v8, 0xff, v8'); e('v_cmp_ne_u32 vcc, 0, v8'); e('s_cbranch_vccz L_yok')
        yissue(s)
    e('s_sub_u32 s60, s60, 1'); e('s_cbranch_scc0 L_y')
    e('s_branch L_exit')
    lab('L_yok')
    stamp(8, True)
    e(f'v_permlane32_swap_b32 v{AC}, v{AC+1}'); e(f'v_permlane32_swap_b32 v{AC+2}, v{AC+3}')
    e(f'v_add_f32 v{AC}, v{AC}, v{AC+1}'); e(f'v_add_f32 v{AC+2}, v{AC+2}, v{AC+3}'); e('s_nop 1')
    e(f'v_permlane16_swap_b32 v{AC}, v{AC+2}'); e(f'v_add_f32 v8, v{AC}, v{AC+2}')
    for d in (8, 4, 2, 1):
        if d >= NY:
            e('s_nop 1'); e(f'v_add_f32_dpp v8, v8, v8 row_ror:{d} row_mask:0xf bank_mask:0xf')
    e('v_cvt_pk_bf16_f32 v8, v8, v8')
    m = ((1 << NY) - 1) * 0x00010001
    e(f's_mov_b32 exec_lo, 0x{m:08x}'); e(f's_mov_b32 exec_hi, 0x{m:08x}')
    e(f'buffer_store_short v8, v11, s[{SX}:{SX+3}], s77 offen')
    c('every workgroup has read the tag word by now: leave the tag of this launch behind')
    e('s_or_b32 s60, s2, s79'); e('s_cbranch_scc1 L_done')
    e('s_mov_b64 exec, 1'); e('v_mov_b32 v9, s94'); e('v_mov_b32 v10, 0')
    e(f'buffer_store_dword v9, v10, s[{SWS}:{SWS+3}], 0 offen')
    lab('L_done')
    if dry:
        e('s_cmp_eq_u32 s83, 1'); e('s_cbranch_scc1 L_real')
    if DIAG in (3, 4):
        e('s_mov_b64 exec, -1')
        if DIAG == 4:
            e('ds_read_b64 v[8:9], v59 offset:56'); e('s_waitcnt lgkmcnt(0)'); e('v_readfirstlane_b32 s60, v8'); e('v_readfirstlane_b32 s61, v9'); e('s_nop 3'); e('v_writelane_b32 v1, s60, 12'); e('v_writelane_b32 v1, s61, 13')
        e('s_memrealtime s[70:71]'); e('s_waitcnt lgkmcnt(0)'); e('v_writelane_b32 v1, s70, 9'); e('v_writelane_b32 v1, s72, 0')
        e('s_add_u32 s48, s28, 0x4000000'); e('s_addc_u32 s49, s29, 0'); e('s_mov_b32 s50, 0x100000'); e('s_mov_b32 s51, 0x20000')
        e('s_lshl_b32 s60, s2, 4'); e('s_add_u32 s60, s60, s3'); e('s_lshl_b32 s60, s60, 7')
        e('v_lshlrev_b32 v2, 2, v0')
        e('s_mov_b64 exec, 0xffffffff')
        e(f'buffer_store_dword v1, v2, s[{SWS}:{SWS+3}], s60 offen')
    lab('L_exit')
    if FULL:
        e('s_mov_b64 exec, -1')
        stamp(9)
        e('s_add_u32 s48, s28, 0x4000000'); e('s_addc_u32 s49, s29, 0'); e('s_mov_b32 s50, 0x100000'); e('s_mov_b32 s51, 0x20000')
        e('s_lshl_b32 s60, s2, 4'); e('s_add_u32 s60, s60, s3'); e('s_lshl_b32 s60, s60, 7')
        e('v_lshlrev_b32 v2, 2, v0')
        e('s_mov_b64 exec, 0xffffffff')
        e(f'buffer_store_dword v1, v2, s[{SWS}:{SWS+3}], s60 offen')
        if DIAG == 2:
            e(f's_cmp_ge_u32 s3, {WS}'); e('s_cbranch_scc1 L_end')
            e('s_mov_b64 exec, -1'); e('s_mov_b32 s50, 0x400000'); e('s_lshl_b32 s60, s60, 2'); e('s_add_u32 s60, s60, 0x100000')
            e(f'buffer_store_dword v3, v2, s[{SWS}:{SWS+3}], s60 offen')
            e(f'buffer_store_dword v43, v2, s[{SWS}:{SWS+3}], s60 offen offset:256')
    lab('L_end')
    e('s_endpgm')
    L.append('.section .rodata,"a"'); L.append('.p2align 6'); L.append(f'.amdhsa_kernel {NAME}')
    L.append('  .amdhsa_next_free_vgpr 168'); L.append('  .amdhsa_next_free_sgpr %d' % (102 if TAB else 99)); L.append('  .amdhsa_accum_offset 168')
    L.append('  .amdhsa_group_segment_fixed_size 0'); L.append('  .amdhsa_kernarg_size 104'); L.append('  .amdhsa_user_sgpr_count 2')
    L.append('  .amdhsa_user_sgpr_kernarg_segment_ptr 1'); L.append('  .amdhsa_system_sgpr_workgroup_id_x 1'); L.append('.end_amdhsa_kernel')
    return '\n'.join(L) + '\n'

if __name__ == '__main__':
    kw = {}
    for a in sys.argv[2:]:
        k, v = a.split('=')
        kw[k] = v if k.endswith('pol') else int(v, 0)
    open(sys.argv[1], 'w').write(gen(**kw))
```

```python
import sys, struct, os
NAME = 'concat_heads__mha_block_cached__gqa_block_cached__decode_kernel'
def f32(x): return struct.unpack('<I', struct.pack('<f', x))[0]
_ref = 'concat_heads__mha_block_cached__gqa_block_cached__decode.s.ref'
HEADER = open(_ref).read().split('; Override launch')[0] if os.path.exists(_ref) else ''

LAY_A = ((13, 15), 12, (16, 21), [0, 0, 48, 40, 32, 38, 34, 18])
LAY_B = ((13, 16), 12, (15, 21, 19, 20), [0, 0, 8, 8, 14, 2, 2, 14])

DOC = r'''
; ---------------------------------------------------------------------------------------------
; Design
; ---------------------------------------------------------------------------------------------'''

def gen(DIAG=0, D=9, mE=0x33, thU=36, thF=144, halfF=0, ctlend=2, nfree=1, Dr=3, Dp=5, q0=3, qslp=3, KF=6, tQ=14, tPub=31, tG=28,
        tWL=5, tYB=5, DwA=12, DwB=12, slp=4, NY=4, NS=2, ysp=8, local=1, mmw=0, pre0=10, fastT=1, layA=None, layB=None):
    LA = layA or LAY_A; LB = layB or LAY_B
    D2 = D + 1
    NW = 6
    BASE = 128
    RA = 640; OB = 2 * RA; YA = OB + 128 + 2048; YB = YA + 1024; QBO = YB + 1024; QAO = QBO + 1024; IDO = QAO + 1024; STRIDE = IDO + 128
    PGO = BASE + 256 * STRIDE; WSBYTES = PGO + 8 * 128
    L_QA = 8192; L_QB = L_QA + 256; L_FLAG = L_QB + 1024; L_X = L_FLAG + 64
    L_SA = 10240; L_SB = L_SA + 16384; LDS = L_SB + 16384 + 1024
    NP_A = 32; NP_B = 8; NPK = NP_A - 1; NIT = NPK + NP_A + 2 * NP_B
    SPIN = 1 << 18
    WQA, WFA, WFB, WQB = 2, 3, 4, 5
    L = []
    def e(s): L.append('    ' + s)
    def lab(s): L.append(s + ':')
    def c(s): L.append('    ; ' + s)
    L.append(HEADER.rstrip('\n'))
    L.append(f'; @launch grid=(256,1,1) block=({NW*64},1,1) lds={LDS}')
    L.append(DOC.strip('\n'))
    L.append('.amdgcn_target "amdgcn-amd-amdhsa--gfx950"')
    L.append('.text'); L.append(f'.globl {NAME}')
    L.append('.p2align 12'); L.append(f'.fill {(4096 - 0x300) // 4}, 4, 0xbf810000')
    L.append('.p2align 8'); L.append(f'.type {NAME},@function')
    lab(NAME)
    def stamp(idx):
        if DIAG != 4: return
        e('s_memrealtime s[70:71]'); e('s_waitcnt lgkmcnt(0)'); e(f'v_writelane_b32 v1, s70, {idx}')
    def srd(d, lo, size, off=None):
        if off is None:
            e(f's_mov_b32 s{d}, s{lo}'); e(f's_mov_b32 s{d+1}, s{lo+1}')
        else:
            e(f's_add_u32 s{d}, s{lo}, {off}'); e(f's_addc_u32 s{d+1}, s{lo+1}, 0')
        e(f's_mov_b32 s{d+2}, {size}'); e(f's_mov_b32 s{d+3}, 0x20000')
    def basesel():
        e('s_mov_b32 s62, 0xaaaaaaaa'); e('s_mov_b32 s63, 0xaaaaaaaa')
        e('v_mov_b32 v8, 0x0c0c0100'); e('v_mov_b32 v9, 0x01000c0c')
        e('v_cndmask_b32 v60, v8, v9, s[62:63]')
        e('v_mov_b32 v8, 0x0c0c0302'); e('v_mov_b32 v9, 0x03020c0c')
        e('v_cndmask_b32 v61, v8, v9, s[62:63]')
        e('v_mov_b32 v62, 0x0c0c0c0c')
    TG = 36
    def tags():
        e('s_add_u32 s94, s93, 0x01010101'); e('s_not_b32 s95, s94')
        e(f's_and_b32 s{TG}, s94, 0xff'); e(f's_bfe_u32 s{TG+1}, s94, 0x80008'); e(f's_bfe_u32 s{TG+2}, s94, 0x80010'); e(f's_lshr_b32 s{TG+3}, s94, 24')
    def puttag(r, n, vm, src=None):
        for k in range(n): e(f'v_bfi_b32 v{r+k}, v{vm}, s{TG+(k&3)}, v{(r if src is None else src)+k}')
    def untag_ops(r, n, acc, first=True):
        ops = [f'v_xor_b32 v{r+k}, s{TG+(k&3)}, v{r+k}' for k in range(n)]
        k = 0
        if first:
            ops.append(f'v_or3_b32 v{acc}, v{r}, v{r+1}, v{r+2}'); k = 3
        while k + 1 < n:
            ops.append(f'v_or3_b32 v{acc}, v{acc}, v{r+k}, v{r+k+1}'); k += 2
        if k < n: ops.append(f'v_or_b32 v{acc}, v{acc}, v{r+k}')
        return ops
    def untag(*a, **k):
        for o in untag_ops(*a, **k): e(o)
    def waitlds(label, off, target, sl=None):
        e(f's_mov_b32 s60, {SPIN*4}')
        lab(label)
        e(f's_sleep {slp if sl is None else sl}')
        e(f'ds_read_b32 v8, v59 offset:{off}'); e('s_waitcnt lgkmcnt(0)'); e('v_readfirstlane_b32 s61, v8')
        e('s_sub_u32 s60, s60, 1'); e('s_cbranch_scc1 L_end')
        e(f's_cmp_lt_u32 s61, {target}'); e(f's_cbranch_scc1 {label}')
    def waittiles(label, tiles, sl=None):
        e(f's_mov_b32 s60, {SPIN*4}')
        lab(label)
        e(f's_sleep {slp if sl is None else sl}')
        e(f'ds_read_b64 v[8:9], v59 offset:24'); e('s_waitcnt lgkmcnt(0)'); e('v_add_u32 v8, v8, v9')
        e('s_sub_u32 s60, s60, 1'); e('v_readfirstlane_b32 s61, v8'); e('s_cbranch_scc1 L_end')
        e(f's_cmp_lt_u32 s61, {tiles}'); e(f's_cbranch_scc1 {label}')
    SL, SW, SX, SWS = 32, 40, 44, 48
    RING = 64; WT = 64; XP = 16; SEL = 24; RR = 32; DD = 40; QQ = 44; QD = 48; SAVE = 128; PF = 144
    def wload(dw):
        for t in range(16):
            if t > dw: e(f's_waitcnt vmcnt({dw})')
            e(f'buffer_load_dwordx4 v[{WT+4*t}:{WT+4*t+3}], v5, s[{SW}:{SW+3}], s60 offen nt')
            if t < 15: e('s_addk_i32 s60, 0x2000')
    def xload():
        e(f'buffer_load_dwordx4 v[{XP}:{XP+3}], v6, s[{SX}:{SX+3}], s61 offen')
        e(f'buffer_load_dwordx4 v[{XP+4}:{XP+7}], v6, s[{SX}:{SX+3}], s61 offen offset:16')
    e('s_cmp_ge_u32 s2, 256'); e('s_cbranch_scc1 L_end')
    e('s_load_dwordx16 s[4:19], s[0:1], 0')
    e('s_load_dwordx8 s[20:27], s[0:1], 64')
    e('s_load_dwordx2 s[28:29], s[0:1], 96')
    if DIAG: e('s_memrealtime s[72:73]')
    e('v_lshrrev_b32 v1, 6, v0')
    e('v_and_b32 v0, 63, v0')
    e('v_readfirstlane_b32 s3, v1')
    e('s_and_b32 s30, s2, 7')
    e('s_lshr_b32 s31, s2, 3')
    e('s_lshr_b32 s60, s31, 3')
    e('s_lshl2_add_u32 s52, s30, s60')
    e('v_lshrrev_b32 v2, 4, v0')
    e('v_lshlrev_b32 v14, 4, v0')
    e('s_bfe_u32 s53, s31, 0x10002')
    if DIAG: e('v_mov_b32 v1, 0')
    e(f's_bitcmp1_b32 {(1 << WQA) | (1 << WQB)}, s3')
    e('s_cbranch_scc0 L_str_pro')
    c('q waves: rows 64*(j&7).. of wq, columns of head h')
    e('s_and_b32 s66, s31, 7')
    e('s_lshl_b32 s60, s66, 19'); e('s_lshl_b32 s62, s52, 8'); e('s_add_u32 s60, s60, s62')
    e('s_lshl_b32 s61, s66, 7')
    e('v_and_b32 v4, 0xf0, v14')
    e('v_bfe_u32 v7, v0, 3, 1')
    e('v_lshlrev_b32 v6, 5, v2')
    e('v_lshl_add_u32 v6, v7, 10, v6')
    e('v_lshl_add_u32 v5, v2, 17, v4')
    e(f's_mov_b32 s{SW+2}, {1<<22}'); e(f's_mov_b32 s{SW+3}, 0x20000'); e(f's_movk_i32 s{SX+2}, 0x800'); e(f's_mov_b32 s{SX+3}, 0x20000')
    e(f's_cmp_eq_u32 s3, {WQA}')
    e('s_waitcnt lgkmcnt(0)')
    e(f's_cselect_b32 s{SW}, s10, s20'); e(f's_cselect_b32 s{SW+1}, s11, s21')
    e(f's_cselect_b32 s{SX}, s4, s14'); e(f's_cselect_b32 s{SX+1}, s5, s15')
    e('s_load_dword s93, s[28:29], 0')
    e('s_cbranch_scc0 L_qb_pro')
    xload(); wload(16)
    c('the loads of this wave go first: everyone else starts behind this barrier')
    e('s_barrier')
    e('s_branch L_qsetup')
    lab('L_str_pro')
    e('s_lshl_b32 s60, s53, 5'); e('s_add_u32 s60, s60, s52')
    e('s_and_b32 s62, s31, 3'); e('s_lshl2_add_u32 s65, s60, s62')
    e('v_and_b32 v10, 3, v0'); e('v_bfe_u32 v9, v0, 2, 2')
    e('v_lshl_add_u32 v10, v2, 2, v10')
    e('v_lshlrev_b32 v10, 4, v10')
    e('v_lshl_add_u32 v42, v9, 8, v10')
    e(f's_cmp_ge_u32 s3, {WFA}'); e('s_cselect_b32 s80, 1, 0')
    e('s_xor_b32 s64, s3, s80'); e('s_and_b32 s64, s64, 1')
    def itbits(lay):
        ld, wv, wg, cc = lay
        used = list(ld) + [wv] + list(wg)
        return [b for b in range(12, 22) if b not in used]
    def layout(lay, sSt, sB0):
        ld, wv, wg, cc = lay
        first = True
        for k in range(8):
            if cc[k] == 0: continue
            e(f's_bitcmp1_b32 s65, {k}')
            if first: e(f's_cselect_b32 s60, {cc[k]}, 0'); first = False
            else: e(f's_cselect_b32 s61, {cc[k]}, 0'); e('s_add_u32 s60, s60, s61')
        e(f's_lshl_b32 s{sB0}, s64, {wv}')
        def deposit(dst, src, srcbit, bits, init):
            k = 0
            while k < len(bits):
                n = 1
                while k + n < len(bits) and bits[k + n] == bits[k] + n: n += 1
                e(f's_bfe_u32 s61, s{src}, 0x{(n << 16) | (srcbit + k):x}')
                if init: e(f's_lshl_b32 s{dst}, s61, {bits[k]}'); init = False
                else: e(f's_lshl_b32 s61, s61, {bits[k]}'); e(f's_or_b32 s{dst}, s{dst}, s61')
                k += n
        deposit(sB0, 65, 0, wg, False)
        if any(v & 1 for v in cc): deposit(sB0, 60, 0, [ld[1]], False)
        deposit(sSt, 60, 1, itbits(lay), True)
    def usepass(lay, sSt, sB0):
        ld = lay[0]
        e(f's_mov_b32 s54, s{sSt}'); e(f's_mov_b32 s55, {sum(1 << b for b in itbits(lay))}')
        e(f's_mov_b32 s84, s{sB0}'); e(f's_xor_b32 s85, s84, {1 << ld[0]}'); e(f's_xor_b32 s86, s84, {1 << ld[1]}'); e(f's_xor_b32 s87, s85, {1 << ld[1]}')
    layout(LA, 58, 76)
    usepass(LA, 58, 76)
    e('s_sub_u32 s54, s54, s80'); e('s_and_b32 s54, s54, s55')
    e('s_lshr_b32 s60, s65, 2'); e('s_lshl_b32 s60, s60, 22')
    e(f'v_mov_b32 v40, {L_FLAG}'); e('v_mov_b32 v4, 0'); e('v_mov_b32 v5, 0')
    for o in (0, 8, 16, 24, 32): e(f'ds_write_b64 v40, v[4:5] offset:{o}')
    e('s_waitcnt lgkmcnt(0)')
    srd(SL, 6, 1 << 22, 's60')
    e('s_add_u32 s88, s54, s84')
    e('s_barrier')
    def load(t, j): e(f'buffer_load_dwordx4 v[{RING+16*t+4*j}:{RING+16*t+4*j+3}], v42, s[{SL}:{SL+3}], s88 offen offset:{1024*j} nt')
    def adv(t):
        if t == 3:
            e('s_orn2_b32 s54, s54, s55'); e('s_add_u32 s54, s54, 1'); e('s_and_b32 s54, s54, s55')
        e(f's_add_u32 s88, s54, s{84 + ((t + 1) & 3)}')
    def ringload(n0, n1):
        for n in range(n0, n1):
            if n > Dr: e(f's_waitcnt vmcnt({Dr})')
            load(n >> 2, n & 3)
            if n & 3 == 3: adv(n >> 2)
    ringload(0, Dr + 1)
    e('s_branch L_stream')
    lab('L_qb_pro')
    srd(SWS, 28, WSBYTES)
    e(f'v_min_u32 v8, {STRIDE//128-pre0-1}, v0'); e('v_lshlrev_b32 v8, 7, v8')
    e(f's_mul_i32 s62, s2, {STRIDE}'); e(f's_add_u32 s62, s62, {BASE+pre0*128}')
    e('s_barrier')
    c('touch the hand-off lines of this workgroup so that later write-backs meet them in the memory-side cache')
    e(f'buffer_load_dword v63, v8, s[{SWS}:{SWS+3}], s62 offen')
    xload(); wload(Dp)
    lab('L_qsetup')
    e('s_mov_b32 s98, 0')
    lab('L_svc')
    c('byte selectors that place one bf16 value at position lane&7 of an MFMA operand')
    e('s_setprio 3')
    basesel()
    e('s_mov_b32 s62, 0x03030303'); e('s_mov_b32 s63, 0x03030303')
    for k in range(4):
        e(f'v_cndmask_b32 v{SEL+2*k}, v62, v60, s[62:63]')
        e(f'v_cndmask_b32 v{SEL+2*k+1}, v62, v61, s[62:63]')
        if k < 3: e('s_lshl_b64 s[62:63], s[62:63], 2')
    e('v_and_b32 v3, 7, v0')
    e(f'v_mov_b32 v59, {L_FLAG}'); e('v_mov_b32 v60, 0xff'); e('v_mov_b32 v61, 1.0')
    srd(SWS, 28, WSBYTES)
    e(f's_mul_i32 s68, s2, {STRIDE}'); e(f's_add_u32 s68, s68, {BASE}')
    e('s_cmp_eq_u32 s98, 1'); e('s_cbranch_scc1 L_finisher')
    for r in range(4): e(f'v_mov_b32 v{DD+r}, 0')
    e(f's_cmp_eq_u32 s3, {WQA}'); e(f's_cselect_b32 s76, 1024, 0'); e('s_add_u32 s76, s76, s68'); e(f's_add_u32 s76, s76, {QBO}')
    c('q gather lane offsets: two producers per load')
    e('v_lshrrev_b32 v8, 5, v0'); e('v_bfe_u32 v9, v0, 3, 2')
    e('v_lshlrev_b32 v12, 8, v9'); e('v_lshl_add_u32 v12, v3, 4, v12')
    e('v_lshlrev_b32 v11, 6, v9'); e('v_lshl_add_u32 v11, v3, 1, v11')
    e(f's_mov_b32 s60, {8*STRIDE}'); e('v_mul_lo_u32 v10, v8, s60'); e('v_add_u32 v10, v10, v12'); e('v_mul_lo_u32 v13, v3, s60')
    e('s_and_b32 s60, s2, 0xc7'); e(f's_mul_i32 s75, s60, {STRIDE}')
    e('s_lshl_b32 s61, s53, 7'); e('s_add_u32 s74, s75, s61'); e(f's_add_u32 s74, s74, {QAO+BASE}'); e(f's_add_u32 s75, s75, {IDO+BASE}')
    for k in range(1, 4): e(f's_add_u32 s{84+k}, s74, {16*k*STRIDE}')
    e('s_getreg_b32 s67, hwreg(HW_REG_XCC_ID, 0, 4)')
    e(f's_add_u32 s77, s68, {IDO}')
    e('s_waitcnt lgkmcnt(0)')
    tags()
    e('v_mov_b32 v48, s67'); e('v_mov_b32 v49, s67'); e('v_mov_b32 v50, s94'); e('v_mov_b32 v51, s95')
    e('s_waitcnt vmcnt(%d)' % (16 if mmw else 0))
    lab('L_projmm')
    c('D[chunk][(b,i)] = v61 * sum_t W_t x delta(XP_t): 64 rows of a weight matrix times two input vectors')
    for t in range(16):
        r = RR + 4 * (t & 1)
        for k in range(4):
            e(f'v_perm_b32 v{r+k}, v{XP+(t>>1)}, v{XP+(t>>1)}, v{SEL+2*k+(t&1)}')
        if t > 0:
            tp = t - 1; rp = RR + 4 * (tp & 1)
            if mmw and tp % mmw == 0: e(f's_waitcnt vmcnt({max(0, 16-tp-mmw)})')
            e(f'v_mfma_f32_16x16x32_bf16 v[{DD}:{DD+3}], v[{WT+4*tp}:{WT+4*tp+3}], v[{rp}:{rp+3}], v[{DD}:{DD+3}]')
    e('s_waitcnt vmcnt(0)')
    e(f'v_mfma_f32_16x16x32_bf16 v[{DD}:{DD+3}], v[{WT+60}:{WT+63}], v[{RR+4}:{RR+7}], v[{DD}:{DD+3}]')
    e(f's_mov_b32 s60, {SPIN}')
    e('s_cmp_eq_u32 s98, 1')
    e('s_nop 5')
    for r in range(4): e(f'v_mul_f32 v{DD+r}, v{DD+r}, v61')
    puttag(DD, 4, 60)
    e('s_cbranch_scc0 L_q0')
    e(f'buffer_store_dwordx4 v[{DD}:{DD+3}], v14, s[{SWS}:{SWS+3}], s76 offen sc1')
    e('s_branch L_ret_fin')
    lab('L_q0')
    e(f's_cmp_eq_u32 s3, {WQA}'); e('s_cbranch_scc0 L_ret_qb')
    c('q of branch A: publish the slice and the die id in the cache of this die first, gather the eight slices')
    def pubq(p, withid=True):
        e(f'buffer_store_dwordx4 v[{DD}:{DD+3}], v14, s[{SWS}:{SWS+3}], s76 offen {p}')
        if withid:
            e('s_mov_b64 exec, 0xff')
            e(f'buffer_store_dwordx4 v[48:51], v14, s[{SWS}:{SWS+3}], s77 offen {p}')
            e('s_mov_b64 exec, -1')
    pubq('')
    lab('L_qa')
    e(f's_sleep {qslp}')
    for k in range(4):
        e(f'buffer_load_dwordx4 v[{64+4*k}:{64+4*k+3}], v10, s[{SWS}:{SWS+3}], s{74 if k == 0 else 84+k} offen sc1')
    for k in range(4):
        e(f's_waitcnt vmcnt({3-k})')
        untag(64 + 4 * k, 4, 8, first=(k == 0))
        if k > 0:
            for r in range(4): e(f'v_add_f32 v{64+r}, v{64+r}, v{64+4*k+r}')
    e('v_and_b32 v8, 0xff, v8'); e('v_cmp_ne_u32 vcc, 0, v8'); e('s_cbranch_vccz L_qaok')
    e('s_sub_u32 s60, s60, 1'); e('s_cbranch_scc1 L_end')
    e(f's_cmp_eq_u32 s60, {SPIN-KF}'); e('s_cbranch_scc0 L_qa')
    c('still incomplete: the group may span dies, write through to memory')
    pubq('sc1')
    e('s_branch L_qa')
    lab('L_qaok')
    e('v_permlane32_swap_b32 v64, v66'); e('v_permlane32_swap_b32 v65, v67')
    e('v_add_f32 v64, v64, v66'); e('v_add_f32 v65, v65, v67')
    e('v_and_b32 v8, 32, v0'); e('v_add_u32 v11, v11, v8')
    e('v_cvt_pk_bf16_f32 v64, v64, v65')
    e('v_mov_b32 v8, 1'); e('v_mov_b32 v9, s93')
    e(f'ds_write_b16 v11, v64 offset:{L_QA}'); e(f'ds_write_b16_d16_hi v11, v64 offset:{L_QA+16}')
    e('ds_write_b32 v59, v9 offset:16'); e('ds_write_b32 v59, v8 offset:12')
    c('unless all eight readers report this die, write the slice through to memory')
    e(f'buffer_load_dwordx4 v[44:47], v13, s[{SWS}:{SWS+3}], s75 offen sc1')
    e('s_waitcnt vmcnt(0)')
    e('v_xor_b32 v46, s94, v46'); e('v_xor_b32 v47, s95, v47'); e('v_xor_b32 v44, s67, v44'); e('v_or3_b32 v46, v46, v47, v44')
    e('v_cmp_ne_u32 vcc, 0, v46')
    if local: e('s_cbranch_vccz L_end')
    pubq('sc1')
    e('s_endpgm')
    L.append('.p2align 12')
    lab('L_stream')
    e('v_mov_b32 v13, v42')
    e('v_lshl_add_u32 v15, v9, 9, v10')
    e(f'v_add_u32 v38, {L_QA}, v10')
    e(f'v_lshl_add_u32 v39, v9, 8, v38'); e(f'v_add_u32 v39, {L_QB-L_QA}, v39')
    e('s_lshl_b32 s60, s64, 13'); e(f's_add_u32 s60, s60, {L_SA}')
    e(f'v_lshl_add_u32 v{SAVE}, v2, 4, s60')
    e(f'v_lshl_add_u32 v8, v2, 2, v9'); e(f's_add_u32 s60, s60, {L_SB-L_SA}')
    e(f'v_lshl_add_u32 v{SAVE+1}, v8, 4, s60')
    e(f'v_mov_b32 v{SAVE+3}, 0xff'); e(f'v_lshlrev_b32 v{SAVE+4}, 3, v0')
    basesel()
    e('s_mov_b32 s62, 0x33333333'); e('s_mov_b32 s63, 0x33333333')
    e('v_cndmask_b32 v34, v62, v60, s[62:63]'); e('v_cndmask_b32 v35, v62, v61, s[62:63]')
    e('v_cndmask_b32 v36, v60, v62, s[62:63]'); e('v_cndmask_b32 v37, v61, v62, s[62:63]')
    e('v_mov_b32 v41, 1')
    e(f's_mov_b32 s59, 0x{f32(128**-0.5*1.4426950408889634):08x}')
    srd(SWS, 28, WSBYTES)
    e(f's_mul_i32 s68, s2, {STRIDE}'); e(f's_mul_i32 s60, s64, {RA}'); e('s_add_u32 s68, s68, s60')
    c('pass 0: K of A')
    e(f's_mov_b32 s56, {NPK}'); e('s_mov_b32 s57, 0'); e('s_mov_b32 s78, 0')
    c('tiles that keep one more load in flight: the even dies see a slightly longer memory latency')
    e('s_getreg_b32 s60, hwreg(HW_REG_XCC_ID, 0, 1)'); e('s_cmp_eq_u32 s60, 0'); e(f's_cselect_b32 s75, {mE}, 0')
    e('s_lshl_b32 s60, s64, 2'); e('s_lshr_b32 s75, s75, s60'); e('s_and_b32 s75, s75, 15')
    e(f's_add_u32 s60, s60, {L_FLAG+24}'); e(f'v_mov_b32 v{SAVE+6}, s60'); e(f'v_mov_b32 v{SAVE+5}, 0')
    e(f's_mul_i32 s60, s80, {NPK*256}'); e(f'v_add_u32 v11, s60, v{SAVE}')
    layout(LB, 77, 79)
    e('s_mov_b32 s66, 64'); e('s_mov_b32 s62, 0x00010001'); e('s_mov_b32 s63, 0x00010001')
    e(f'v_mov_b32 v10, 0x{f32(-3.0e38):08x}')
    ringload(Dr + 1, 16)
    e(f's_mov_b32 s60, {SPIN*4}')
    lab('L_waitqa')
    e('ds_read_b32 v4, v40 offset:12'); e('ds_read_b32 v5, v40 offset:16'); e(f'ds_read_b128 v[{QQ}:{QQ+3}], v38')
    e('s_waitcnt lgkmcnt(0)'); e('v_readfirstlane_b32 s61, v4'); e('v_readfirstlane_b32 s93, v5')
    e('s_sub_u32 s60, s60, 1'); e('s_cbranch_scc1 L_end')
    e('s_cmp_eq_u32 s61, 0'); e('s_cbranch_scc1 L_waitqa')
    tags()
    e('s_cmp_eq_u32 s80, 0'); e('s_cbranch_scc1 L_loopK')
    c('helper: one iteration, nothing to reload (zero-size descriptor)')
    e(f's_mov_b32 s{SL+2}, 0'); e('s_mov_b32 s56, 1'); e('s_mov_b32 s57, 4'); e('s_mov_b32 s69, 0'); e('s_mov_b32 s78, 1'); e('s_mov_b64 vcc, -1')
    e(f'v_mov_b32 v{SAVE+6}, {L_FLAG+40}')
    e('s_branch L_bodyK')
    nthr = [0]
    def thr():
        nthr[0] += 1; n = nthr[0]
        e(f's_cbranch_vccnz L_thf{n}'); e(f's_cbranch_scc1 L_thd{n}'); e(f's_waitcnt vmcnt({D})')
        lab(f'L_thd{n}'); e(f's_waitcnt vmcnt({D2})'); lab(f'L_thf{n}'); e('s_waitcnt vmcnt(15)')
    def looptop(x):
        lab(f'L_loop{x}')
        c('depth level chosen by wave 3')
        e('s_waitcnt lgkmcnt(0)'); e(f'v_readfirstlane_b32 s60, v{SAVE+5}')
        e(f'ds_read_b32 v{SAVE+5}, v{SAVE+6} offset:8')
        e('s_or_b32 s69, s75, s60')
        e('s_cmp_le_u32 s56, s78'); e('s_cselect_b64 vcc, -1, 0')
        e('s_bitcmp1_b32 s60, 4'); e('s_cselect_b64 vcc, -1, vcc')
        e('s_cmp_eq_u32 s56, 1'); e(f's_cbranch_scc1 L_switch{x}')
        lab(f'L_body{x}')
    def count():
        e('s_mov_b64 exec, 1'); e(f'ds_add_u32 v{SAVE+6}, v41'); e('s_mov_b64 exec, -1')
    def redmax(r):
        e(f'v_mov_b32 v9, v{r}'); e('s_nop 1'); e(f'v_permlane32_swap_b32 v{r}, v9'); e(f'v_max_f32 v{r}, v{r}, v9')
        e(f'v_mov_b32 v9, v{r}'); e('s_nop 1'); e(f'v_permlane16_swap_b32 v{r}, v9'); e(f'v_max_f32 v{r}, v{r}, v9')
    c('K loop: scores to LDS (address v11, stride s66, lanes s[62:63]), running maximum v10')
    looptop('K')
    for t in range(4):
        K = RING + 16 * t
        count()
        if halfF and t == halfF:
            e('s_cmp_le_u32 s56, s78'); e('s_cselect_b64 vcc, -1, 0')
        e(f's_bitcmp1_b32 s69, {t}')
        for j in range(4):
            thr()
            e(f'v_mfma_f32_16x16x32_bf16 v[{QD+4*j}:{QD+4*j+3}], v[{K+4*j}:{K+4*j+3}], v[{QQ}:{QQ+3}], 0')
            load(t, j)
        adv(t)
        if t < 3: e('s_nop 2')
        S = 4 if t % 2 == 0 else 16
        for k in range(4):
            for j in range(4):
                if k == 0: e(f'v_mov_b32_dpp v{S+j}, v{QD+4*j} quad_perm:[0,0,0,0] row_mask:0xf bank_mask:0xf')
                else: e(f'v_add_f32_dpp v{S+j}, v{QD+4*j+k}, v{S+j} quad_perm:[{k},{k},{k},{k}] row_mask:0xf bank_mask:0xf')
        e(f'v_max3_f32 v10, v10, v{S}, v{S+1}'); e(f'v_max3_f32 v10, v10, v{S+2}, v{S+3}')
        e('s_mov_b64 exec, s[62:63]'); e(f'ds_write_b128 v11, v[{S}:{S+3}]'); e('s_mov_b64 exec, -1')
        e('v_add_u32 v11, s66, v11')
    e('s_sub_u32 s56, s56, 1'); e('s_cmp_lg_u32 s56, 0'); e('s_cbranch_scc1 L_loopK')
    e(f's_mov_b32 s56, {NP_B}')
    e('s_cmp_eq_u32 s57, 1'); e('s_cbranch_scc0 L_endKA')
    c('end of K of B: exact maximum of the scores of this wave')
    redmax(10)
    e('s_mov_b32 s57, 2'); e(f'v_add_u32 v38, s66, v{SAVE+1}')
    lab('L_startV')
    c('V pass: scores of the first tile in v[144:147], further scores at v38 (stride s66), maximum v10')
    e('v_mul_f32 v11, s59, v10'); e('v_sub_f32 v11, 0, v11')
    RS = (26, SAVE + 8)
    def soft(k, R, lg, src=QD):
        if k == 0:
            if lg is not None: e(f's_waitcnt lgkmcnt({lg})')
            for r in range(4): e(f'v_fma_f32 v{4+r}, v{src+r}, s59, v11')
            e(f'ds_read_b128 v[{QD}:{QD+3}], v38'); e('v_add_u32 v38, s66, v38')
        elif k == 1:
            for r in range(4): e(f'v_exp_f32 v{4+r}, v{4+r}')
        elif k == 2:
            e('v_cvt_pk_bf16_f32 v24, v4, v5'); e('v_cvt_pk_bf16_f32 v25, v6, v7')
            e('v_add_f32 v8, v4, v5'); e('v_add_f32 v9, v6, v7')
        if k >= 2:
            for r in (2 * k - 4, 2 * k - 3):
                e(f'v_perm_b32 v{R+2*r}, v{24+(r>>1)}, v{24+(r>>1)}, v{34+(r&1)}')
                e(f'v_perm_b32 v{R+2*r+1}, v{24+(r>>1)}, v{24+(r>>1)}, v{36+(r&1)}')
        if k == 3: e('v_add_f32 v8, v8, v9')
    soft(0, RS[0], None, src=PF); soft(1, RS[0], 0); e('v_mov_b32 v12, 0'); soft(2, RS[0], 0); soft(3, RS[0], 0)
    e('s_waitcnt lgkmcnt(1)')
    for r in range(8): e(f'v_mov_b32 v{16+r}, 0')
    looptop('V')
    for t in range(4):
        V = RING + 16 * t
        R = RS[t & 1]
        if halfF and t == halfF:
            e('s_cmp_le_u32 s56, s78'); e('s_cselect_b64 vcc, -1, 0')
        e(f's_bitcmp1_b32 s69, {t}')
        e('v_add_f32 v12, v12, v8')
        for r in range(4):
            thr()
            e(f'v_mfma_f32_16x16x16_bf16 v[16:19], v[{V+4*r}:{V+4*r+1}], v[{R+2*r}:{R+2*r+1}], v[16:19]')
            e(f'v_mfma_f32_16x16x16_bf16 v[20:23], v[{V+4*r+2}:{V+4*r+3}], v[{R+2*r}:{R+2*r+1}], v[20:23]')
            load(t, r)
            soft(r, RS[(t + 1) & 1], None if t == 0 else 0)
            if r == 0: count()
        adv(t)
    e('s_sub_u32 s56, s56, 1'); e('s_cmp_lg_u32 s56, 0'); e('s_cbranch_scc1 L_loopV')
    e('v_mov_b32 v9, v12'); e('v_mul_f32 v4, s59, v10')
    e('s_cmp_eq_u32 s57, 2'); e('s_cbranch_scc1 L_endVB')
    c('end of V of A: reduce the sum, publish the record')
    e('v_permlane32_swap_b32 v12, v9'); e('v_add_f32 v12, v12, v9')
    e('v_mov_b32 v9, v12')
    puttag(24, 8, SAVE + 3, src=16)
    e('v_permlane16_swap_b32 v12, v9'); e('v_add_f32 v5, v12, v9'); e('v_mov_b32 v6, s94'); e('v_mov_b32 v7, s95')
    if DIAG == 4:
        e('s_memrealtime s[70:71]'); e('s_waitcnt lgkmcnt(0)'); e('v_mov_b32 v8, s70'); e(f'ds_write_b32 v{SAVE+6}, v8 offset:32')
    e('s_cmp_eq_u32 s67, 2'); e('s_cbranch_scc0 L_pubslow')
    def pubA(p):
        e('s_mov_b32 exec_lo, 0x000f000f'); e('s_mov_b32 exec_hi, 0x000f000f')
        e(f'buffer_store_dwordx4 v[24:27], v15, s[{SWS}:{SWS+3}], s68 offen offset:{BASE+128} {p}')
        e(f'buffer_store_dwordx4 v[28:31], v15, s[{SWS}:{SWS+3}], s68 offen offset:{BASE+384} {p}')
        e('s_mov_b64 exec, 0x5555')
        e(f'buffer_store_dwordx4 v[4:7], v{SAVE+4}, s[{SWS}:{SWS+3}], s68 offen offset:{BASE} {p}')
        e('s_mov_b64 exec, 1'); e(f'ds_add_u32 v{SAVE+6}, v41')
        e('s_endpgm')
    pubA('')
    lab('L_pubslow')
    pubA('sc1')
    lab('L_endVB')
    c('end of V of B: hand the state to wave 4 through LDS')
    e(f'v_mov_b32 v{PF+4}, v4'); e(f'v_mov_b32 v{PF+5}, v12')
    e('s_mul_i32 s60, s64, 2560'); e('v_add_u32 v8, s60, v14'); e(f'v_add_u32 v9, s60, v{SAVE+4}')
    e('ds_write_b128 v8, v[16:19]'); e('ds_write_b128 v8, v[20:23] offset:1024'); e(f'ds_write_b64 v9, v[{PF+4}:{PF+5}] offset:2048')
    e('s_mov_b64 exec, 1'); e('ds_add_u32 v40, v41 offset:8'); e('s_mov_b64 exec, -1')
    e(f's_mov_b32 s56, {NP_A}'); e('s_mov_b32 s57, 3'); e('s_mov_b32 s66, 64'); e(f's_mov_b32 s78, {nfree}')
    e(f'v_add_u32 v38, 64, v{SAVE}'); e(f'v_mov_b32 v10, v{SAVE+2}')
    e('s_branch L_startV')
    lab('L_endKA')
    e('s_cmp_eq_u32 s57, 4'); e('s_cbranch_scc1 L_endhelp')
    e(f's_mov_b32 s60, {SPIN*4}')
    c('q of B, its flag and the maximum of the helper were fetched one iteration ago; fetch again if they were not ready')
    e('s_branch L_chkqb')
    def fetchqb():
        e(f'ds_read_b64 v[{PF+4}:{PF+5}], v40'); e(f'ds_read_b32 v{PF+6}, v{SAVE+6} offset:24'); e(f'ds_read_b128 v[{PF}:{PF+3}], v39')
    lab('L_waitqb')
    fetchqb()
    e('s_sub_u32 s60, s60, 1'); e('s_cbranch_scc1 L_end')
    lab('L_chkqb')
    e('s_waitcnt lgkmcnt(0)'); e(f'v_readfirstlane_b32 s67, v{PF+4}'); e(f'v_readfirstlane_b32 s61, v{PF+5}')
    for r in range(4): e(f'v_mov_b32 v{QQ+r}, v{PF+r}')
    e('s_cmp_eq_u32 s67, 0'); e('s_cbranch_scc1 L_waitqb')
    e('s_cmp_lt_u32 s61, 2'); e('s_cbranch_scc1 L_waitqb')
    e(f'v_max_f32 v{SAVE+2}, v10, v{PF+6}')
    e('s_mov_b32 s57, 1')
    e(f'v_mov_b32 v11, v{SAVE+1}'); e('s_movk_i32 s66, 0x100'); e('s_mov_b32 s62, 0x11111111'); e('s_mov_b32 s63, 0x11111111')
    e(f'v_mov_b32 v10, 0x{f32(-3.0e38):08x}')
    e('s_branch L_loopK')
    def switch(ptr, lg, vreg):
        e(f's_lshr_b32 s60, s65, {22-lg}'); e('s_lshl_b32 s60, s60, 22')
        srd(SL, ptr, 1 << 22, 's60')
        if lg == 18: usepass(LB, 77, 79)
        else: usepass(LA, 58, 76)
        e('s_add_u32 s88, s54, s84')
        e(f'v_mov_b32 v42, v{vreg}')
    c('last iteration of a pass: the loads move on to the next pass')
    lab('L_switchK')
    e('s_cmp_eq_u32 s57, 0'); e('s_cbranch_scc0 L_sw1')
    fetchqb()
    switch(16, 18, 13)
    e('s_branch L_bodyK')
    lab('L_sw1')
    e(f'ds_read_b128 v[{PF}:{PF+3}], v{SAVE+1}')
    switch(18, 18, 14)
    redmax(SAVE + 2)
    e('s_waitcnt lgkmcnt(0)')
    e('s_branch L_bodyK')
    lab('L_switchV')
    e(f's_mov_b32 s{SL+2}, 0')
    e('s_cmp_eq_u32 s57, 2'); e('s_cbranch_scc0 L_bodyV')
    e(f'ds_read_b128 v[{PF}:{PF+3}], v{SAVE}')
    switch(8, 20, 14)
    e('s_branch L_bodyV')
    lab('L_endhelp')
    c('helper: leave the maximum for the streaming wave, then become a finisher')
    redmax(10)
    e('s_lshl_b32 s60, s64, 2'); e(f'v_add_u32 v8, s60, v40')
    e('s_mov_b64 exec, 1'); e('ds_write_b32 v8, v10 offset:48'); e('ds_add_u32 v40, v41 offset:4'); e('s_mov_b64 exec, -1')
    e('s_mov_b32 s98, 1')
    e('s_branch L_svc')
    lab('L_ret_qb')
    pubq('', withid=False)
    e(f'v_and_b32 v8, 31, v0'); e(f's_mov_b32 s60, {8*STRIDE}'); e('v_mul_lo_u32 v13, v8, s60')
    e(f's_mul_i32 s75, s30, {STRIDE}'); e(f's_add_u32 s75, s75, {IDO+BASE}')
    e('v_lshrrev_b32 v15, 5, v0'); e('v_lshl_add_u32 v11, v15, 8, v11')
    e(f's_mov_b32 s60, {64*STRIDE}'); e('v_mul_lo_u32 v10, v15, s60'); e('v_add_u32 v10, v10, v12')
    waittiles('L_waitq', 8 * (NPK - tQ) - 6)
    e(f's_mov_b32 s62, {SPIN}')
    e('s_branch L_qg1')
    lab('L_qg')
    e(f's_cmp_eq_u32 s62, {SPIN-3}'); e('s_cbranch_scc0 L_qg2')
    pubq('sc1')
    lab('L_qg2')
    e('s_sleep 32')
    lab('L_qg1')
    e(f's_mul_i32 s60, s30, {STRIDE}'); e('s_lshl_b32 s61, s53, 7'); e('s_add_u32 s60, s60, s61'); e(f's_add_u32 s60, s60, {QBO+BASE}')
    for a in range(2):
        for p in range(8):
            n = a * 8 + p
            e(f'buffer_load_dwordx4 v[{64+4*n}:{64+4*n+3}], v10, s[{SWS}:{SWS+3}], s60 offen sc1')
            if p < 7: e(f's_add_u32 s60, s60, {8*STRIDE}')
        if a == 0: e(f's_add_u32 s60, s60, {(128-56)*STRIDE}')
    e(f'buffer_load_dwordx4 v[44:47], v13, s[{SWS}:{SWS+3}], s75 offen sc1')
    e('s_sub_u32 s62, s62, 1'); e('s_cbranch_scc1 L_end')
    e('s_waitcnt vmcnt(0)')
    untag(64, 64, 8)
    e('v_xor_b32 v46, s94, v46'); e('v_xor_b32 v47, s95, v47'); e('v_or_b32 v46, v46, v47')
    e('v_and_or_b32 v8, v8, v60, v46'); e('v_cmp_ne_u32 vcc, 0, v8'); e('s_cbranch_vccnz L_qg')
    c('flag value 2: all 32 workgroups of the group report this die; 1: they do not, write through to memory')
    e('v_cmp_ne_u32 vcc, s67, v44'); e('s_mov_b32 s67, 2')
    if local: e('s_cbranch_vccz L_qgdone')
    e('s_mov_b32 s67, 1')
    pubq('sc1')
    lab('L_qgdone')
    for a in range(2):
        for p in range(1, 8):
            for r in range(4): e(f'v_add_f32 v{64+32*a+r}, v{64+32*a+r}, v{64+32*a+4*p+r}')
        for r in range(4):
            e(f'v_cvt_pk_bf16_f32 v{64+32*a+r}, v{64+32*a+r}, v{64+32*a+r}')
        for r in range(4):
            e(f'ds_write_b16 v11, v{64+32*a+r} offset:{L_QB + 512*a + 16*r}')
    e('v_mov_b32 v8, s67')
    e('ds_write_b32 v59, v8')
    e('s_endpgm')
    lab('L_finisher')
    O1 = 128; O2 = 144; M1 = 44; M2 = 160; AC = 48
    c('wo slice: rows 128h + 4b + g + 8t, columns 128*(j&3)..')
    e('v_and_b32 v4, 0xf0, v14'); e('v_bfe_u32 v7, v0, 3, 1'); e('v_lshl_add_u32 v5, v2, 10, v4')
    e('s_lshl_b32 s69, s52, 17'); e('s_lshl_b32 s62, s53, 12'); e('s_add_u32 s69, s69, s62')
    e('s_and_b32 s62, s31, 3'); e('s_lshl_b32 s62, s62, 8'); e('s_add_u32 s69, s69, s62')
    e('s_cmp_eq_u32 s64, 0'); e(f's_cselect_b32 s{SW}, s12, s22'); e(f's_cselect_b32 s{SW+1}, s13, s23')
    e(f's_mov_b32 s{SW+2}, {1<<22}'); e(f's_mov_b32 s{SW+3}, 0x20000')
    c('s74 record base, s84..87 o offsets, s76 own y, s80 y gather, s77 output offset, s78 record stride')
    e(f's_lshl_b32 s76, s64, 10'); e('s_mov_b32 s77, s76'); e(f's_add_u32 s76, s76, {YA}')
    e('s_cmp_eq_u32 s64, 0'); e('s_cbranch_scc0 L_parB')
    e('s_and_b32 s60, s2, 0xc7'); e(f's_mul_i32 s74, s60, {STRIDE}'); e(f's_add_u32 s74, s74, {BASE}'); e('s_add_u32 s75, s74, 128'); e(f's_mov_b32 s78, {RA}')
    e('s_branch L_par')
    lab('L_parB')
    e(f's_mul_i32 s74, s30, {STRIDE}'); e(f's_add_u32 s74, s74, {OB+BASE}'); e('s_lshr_b32 s60, s31, 3')
    e('s_lshl_b32 s61, s60, 9'); e('s_add_u32 s75, s74, s61'); e('s_add_u32 s75, s75, 128')
    e('s_lshl_b32 s61, s60, 5'); e('s_add_u32 s74, s74, s61'); e(f's_mov_b32 s78, {64*STRIDE}')
    lab('L_par')
    e('s_lshl_b32 s60, s53, 8'); e('s_add_u32 s84, s75, s60')
    e('s_add_u32 s85, s84, s78'); e(f's_add_u32 s86, s84, {32*STRIDE}'); e('s_add_u32 s87, s86, s78')
    for k in range(4): e(f's_add_u32 s{88+k}, s{84+k}, {128*STRIDE}')
    e(f's_add_u32 s92, s74, {128*STRIDE}')
    e(f's_mov_b32 s60, {8*STRIDE}')
    e('v_mul_lo_u32 v15, v2, s60'); e('v_add_u32 v15, v15, v4')
    e('v_and_b32 v8, 3, v0'); e('v_xor_b32 v8, v8, v2'); e('v_lshl_add_u32 v8, v7, 2, v8'); e('v_mul_lo_u32 v13, v8, s60')
    e('v_bfe_u32 v8, v0, 2, 1'); e('v_mul_lo_u32 v8, v8, s78'); e('v_add_u32 v13, v13, v8')
    lgy = NY.bit_length() - 1
    NC = 256 // NY
    e(f'v_lshrrev_b32 v8, {lgy}, v0'); e('v_and_b32 v9, 7, v8'); e('v_lshrrev_b32 v8, 3, v8'); e('v_lshl_add_u32 v8, v8, 5, v9')
    e(f's_mov_b32 s60, {STRIDE}'); e('v_mul_lo_u32 v12, v8, s60')
    e(f'v_and_b32 v10, {NY-1}, v0'); e('v_lshl_add_u32 v12, v10, 4, v12')
    c('LDS scratch addresses: v57 write, v58 read')
    e('s_lshl_b32 s60, s64, 8'); e(f's_add_u32 s60, s60, {L_X}')
    e('v_lshrrev_b32 v8, 1, v2'); e('v_lshlrev_b32 v8, 7, v8'); e('v_and_b32 v9, 1, v2'); e('v_lshl_add_u32 v8, v9, 2, v8')
    e('v_and_b32 v9, 3, v0'); e('v_lshl_add_u32 v8, v9, 5, v8'); e('v_bfe_u32 v9, v0, 2, 2'); e('v_lshlrev_b32 v9, 3, v9')
    e('v_add3_u32 v57, v8, v9, s60')
    e('v_lshlrev_b32 v8, 7, v7'); e('v_lshl_add_u32 v8, v2, 5, v8'); e('v_add_u32 v58, s60, v8')
    c('s81 = 0 when this workgroup reduces outputs of its branch')
    e(f's_lshr_b32 s81, s2, {8-lgy}')
    e(f's_mul_i32 s60, s64, {NY//2}'); e('s_xor_b32 s81, s81, s60')
    e('s_and_b32 s61, s2, 3'); e(f's_mul_i32 s80, s61, {8*STRIDE}'); e('s_add_u32 s80, s80, s76'); e(f's_add_u32 s80, s80, {BASE}')
    e(f's_and_b32 s63, s2, {NC-1}'); e('s_lshr_b32 s63, s63, 2'); e(f's_lshl_b32 s63, s63, {lgy}')
    e('s_lshl_b32 s60, s63, 4'); e('s_add_u32 s80, s80, s60')
    e('s_lshl_b32 s61, s61, 8'); e('s_add_u32 s77, s77, s61')
    e('s_lshr_b32 s61, s63, 4'); e('s_lshl_b32 s61, s61, 6'); e('s_add_u32 s77, s77, s61')
    e('s_bfe_u32 s61, s63, 0x10003'); e('s_lshl_b32 s61, s61, 11'); e('s_add_u32 s77, s77, s61')
    e('s_and_b32 s61, s63, 7'); e('s_lshl_b32 s61, s61, 1'); e('s_add_u32 s77, s77, s61')
    e('v_and_b32 v8, 1, v2'); e('v_lshrrev_b32 v9, 1, v2'); e('v_lshl_add_u32 v8, v8, 1, v9'); e('v_lshlrev_b32 v11, 4, v8')
    e('v_lshl_add_u32 v11, v10, 1, v11')
    e('s_add_u32 s76, s76, s68')
    e(f'v_mov_b32 v{M2}, 0x{f32(-3.0e38):08x}')
    for r in range(4): e(f'v_mov_b32 v{DD+r}, 0')
    srd(SX, 24, 4096)
    e('s_cmp_eq_u32 s64, 0'); e('s_cbranch_scc1 L_waitA')
    c('branch B: merge the states of the two streaming waves and publish the record')
    waitlds('L_waitB', 8, 2)
    BO = 128
    e('v_lshlrev_b32 v10, 3, v0')
    e('ds_read_b32 v53, v59')
    e(f'ds_read_b128 v[{BO}:{BO+3}], v14'); e(f'ds_read_b128 v[{BO+4}:{BO+7}], v14 offset:1024'); e('ds_read_b64 v[44:45], v10 offset:2048')
    e(f'ds_read_b128 v[{BO+8}:{BO+11}], v14 offset:2560'); e(f'ds_read_b128 v[{BO+12}:{BO+15}], v14 offset:3584'); e('ds_read_b64 v[46:47], v10 offset:4608')
    e('s_waitcnt lgkmcnt(0)')
    e('v_readfirstlane_b32 s67, v53')
    e('v_max_f32 v48, v44, v46'); e('v_sub_f32 v8, v44, v48'); e('v_sub_f32 v9, v46, v48'); e('v_exp_f32 v8, v8'); e('v_exp_f32 v9, v9'); e('s_nop 0')
    e('v_mul_f32 v49, v45, v8'); e('v_fmac_f32 v49, v47, v9')
    e('v_mov_b32 v50, v49'); e('s_nop 1'); e('v_permlane32_swap_b32 v49, v50'); e('v_add_f32 v49, v49, v50')
    e('v_mov_b32 v50, v49'); e('s_nop 1'); e('v_permlane16_swap_b32 v49, v50'); e('v_add_f32 v49, v49, v50')
    e('v_mov_b32 v50, s94'); e('v_mov_b32 v51, s95')
    for r in range(8):
        e(f'v_mul_f32 v{BO+r}, v{BO+r}, v8'); e(f'v_fmac_f32 v{BO+r}, v{BO+8+r}, v9')
    puttag(BO, 8, 60)
    e('v_and_b32 v8, 3, v0'); e('v_lshl_add_u32 v8, v2, 2, v8'); e('v_lshlrev_b32 v8, 4, v8'); e('v_bfe_u32 v9, v0, 2, 2'); e('v_lshl_add_u32 v52, v9, 9, v8')
    if tPub < 31: waittiles('L_waitpub', 8 * (NIT - tPub) - 6)
    e(f's_add_u32 s60, s68, {OB}')
    def pubB(p):
        e(f'buffer_store_dwordx4 v[{BO}:{BO+3}], v52, s[{SWS}:{SWS+3}], s60 offen offset:128 {p}')
        e(f'buffer_store_dwordx4 v[{BO+4}:{BO+7}], v52, s[{SWS}:{SWS+3}], s60 offen offset:384 {p}')
        e('s_mov_b64 exec, 0x5555')
        e(f'buffer_store_dwordx4 v[48:51], v10, s[{SWS}:{SWS+3}], s60 offen {p}')
        e('s_mov_b64 exec, -1')
    e('s_cmp_eq_u32 s67, 2'); e('s_cbranch_scc1 L_pubBfast')
    pubB('sc1')
    e('s_branch L_pubBdone')
    lab('L_pubBfast')
    pubB('')
    lab('L_pubBdone')
    e('s_waitcnt vmcnt(0)')
    waittiles('L_waitg', 8 * (NIT - tG) - 6)
    DP = ['quad_perm:[1,0,3,2]', 'quad_perm:[2,3,0,1]', 'row_half_mirror']
    def gather(label, A, M, so, sm, weights):
        e(f's_mov_b32 s60, {SPIN}')
        lab(label)
        e(f'buffer_load_dwordx4 v[{M}:{M+3}], v13, s[{SWS}:{SWS+3}], s{sm} offen sc1')
        for k in range(4): e(f'buffer_load_dwordx4 v[{A+4*k}:{A+4*k+3}], v15, s[{SWS}:{SWS+3}], s{so+k} offen sc1')
        e('s_sub_u32 s60, s60, 1'); e('s_cbranch_scc1 L_end')
        e('s_waitcnt vmcnt(4)')
        if weights: e(f'v_max_f32 v62, v{M1}, v{M2}')
        e(f'v_xor_b32 v9, s94, v{M+2}'); e(f'v_xor_b32 v10, s95, v{M+3}')
        if weights: e(f'v_max_f32_dpp v62, v62, v62 {DP[0]} row_mask:0xf bank_mask:0xf')
        e('v_or_b32 v9, v9, v10')
        extra = [f'v_max_f32_dpp v62, v62, v62 {DP[1]} row_mask:0xf bank_mask:0xf', f'v_max_f32_dpp v62, v62, v62 {DP[2]} row_mask:0xf bank_mask:0xf',
                 f'v_sub_f32 v63, v{M1}, v62', 'v_exp_f32 v63, v63'] if weights else []
        for k in range(4):
            e(f's_waitcnt vmcnt({3-k})')
            ops = untag_ops(A + 4 * k, 4, 8, first=(k == 0))
            if extra and k < 2:
                ops.insert(1, extra[2 * k]); ops.insert(4, extra[2 * k + 1])
            for o in ops: e(o)
        e('v_and_or_b32 v8, v8, v60, v9')
        e('v_cmp_ne_u32 vcc, 0, v8')
        e(f's_cbranch_vccnz {label}')
    gather('L_g1', O2, M2, 88, 92, False)
    e('s_branch L_fin')
    lab('L_waitA')
    c('pace keeper: a wave that lags behind the mean progress of its group keeps more loads in flight')
    e(f's_lshl_b32 s61, s30, 7'); e(f's_add_u32 s96, s61, {PGO}')
    e('s_lshl_b32 s61, s31, 2'); e('v_mov_b32 v44, s61')
    e('v_and_b32 v45, 31, v0'); e('v_lshlrev_b32 v45, 2, v45')
    e('s_and_b32 s97, s94, 0xffff0000')
    e('v_mov_b32 v50, 0'); e('v_mov_b32 v51, 0')
    e(f's_mov_b32 s60, {SPIN*4}')
    lab('L_ctl')
    e('ds_read_b64 v[8:9], v59 offset:24'); e('s_waitcnt lgkmcnt(0)')
    e('v_add_u32 v46, v8, v9'); e('v_or_b32 v47, s97, v46')
    e('v_readfirstlane_b32 s61, v46')
    e('s_mov_b64 exec, 1'); e(f'buffer_store_dword v47, v44, s[{SWS}:{SWS+3}], s96 offen'); e('s_mov_b64 exec, -1')
    e('s_sub_u32 s60, s60, 1'); e('s_cbranch_scc1 L_end')
    e(f's_cmp_ge_u32 s61, {8*(NIT-ctlend)}'); e('s_cbranch_scc1 L_ctlend')
    e(f'buffer_load_dword v48, v45, s[{SWS}:{SWS+3}], s96 offen sc1')
    e('v_add_u32 v50, v50, v8'); e('v_add_u32 v51, v51, v9')
    e('s_waitcnt vmcnt(0)')
    e('v_xor_b32 v48, s97, v48'); e('v_cmp_lt_u32 vcc, 0xffff, v48')
    for d in (8, 4, 2, 1):
        e('s_nop 1'); e(f'v_add_u32_dpp v48, v48, v48 row_ror:{d} row_mask:0xf bank_mask:0xf')
    e('v_mov_b32 v49, v48'); e('s_nop 1'); e('v_permlane16_swap_b32 v48, v49'); e('v_add_u32 v48, v48, v49')
    e('v_lshlrev_b32 v50, 5, v50'); e('v_lshlrev_b32 v51, 5, v51')
    e('v_sub_u32 v50, v48, v50'); e('v_sub_u32 v51, v48, v51')
    e('s_cmp_eq_u64 vcc, 0'); e(f's_cselect_b32 s62, {thU}, 0x7fffffff'); e(f's_max_i32 s63, s62, {thF}')
    for r in (50, 51):
        e(f'v_cmp_lt_i32 vcc, s62, v{r}'); e('s_nop 1'); e(f'v_cndmask_b32 v{r+2}, 0, 15, vcc')
        e(f'v_cmp_lt_i32 vcc, s63, v{r}'); e('s_nop 1'); e(f'v_cndmask_b32 v{r+2}, v{r+2}, 31, vcc')
    e('ds_write_b64 v59, v[52:53] offset:32')
    e('v_mov_b32 v50, v8'); e('v_mov_b32 v51, v9')
    e('s_branch L_ctl')
    lab('L_ctlend')
    c('the wo slice follows the last V loads')
    waittiles('L_waitwl', 8 * NIT - tWL, sl=1)
    e('s_mov_b32 s60, s69')
    wload(DwA)
    waittiles('L_waitown', 8 * NIT + 2, sl=0)
    lab('L_fin')
    stamp(5)
    gather('L_g0', O1, M1, 84, 74, True)
    stamp(6)
    if DIAG == 4: e('v_writelane_b32 v1, s60, 14')
    c('v62 = maximum of the head, v63 = weight of the own record')
    for b in range(2):
        for k in range(4): e(f'v_mul_f32_dpp v{AC+4*b+k}, v63, v{O1+8*b+k} row_newbcast:{8*b} row_mask:0xf bank_mask:0xf')
    for b in range(2):
        for k in range(4): e(f'v_fmac_f32_dpp v{AC+4*b+k}, v63, v{O1+8*b+4+k} row_newbcast:{8*b+4} row_mask:0xf bank_mask:0xf')
    e(f'v_mul_f32 v61, v{M1+1}, v63')
    e('s_cmp_eq_u32 s64, 0'); e('s_cbranch_scc1 L_m3')
    e(f'v_sub_f32 v56, v{M2}, v62'); e('v_exp_f32 v56, v56'); e('s_nop 0'); e(f'v_fmac_f32 v61, v{M2+1}, v56'); e('s_nop 0')
    for n0 in range(2):
        for b in range(2):
            for k in range(4): e(f'v_fmac_f32_dpp v{AC+4*b+k}, v56, v{O2+8*b+4*n0+k} row_newbcast:{8*b+4*n0} row_mask:0xf bank_mask:0xf')
    lab('L_m3')
    for k in range(4): e(f'v_permlane32_swap_b32 v{AC+k}, v{AC+4+k}')
    for k in range(4): e(f'v_add_f32 v{AC+k}, v{AC+k}, v{AC+4+k}')
    e(f'v_add_f32_dpp v61, v61, v61 {DP[0]} row_mask:0xf bank_mask:0xf')
    e(f'v_permlane16_swap_b32 v{AC}, v{AC+2}'); e(f'v_permlane16_swap_b32 v{AC+1}, v{AC+3}')
    e(f'v_add_f32 v{AC}, v{AC}, v{AC+2}'); e(f'v_add_f32 v{AC+1}, v{AC+1}, v{AC+3}')
    e(f'v_cvt_pk_bf16_f32 v8, v{AC}, v{AC+1}')
    e('ds_write_b32 v57, v8')
    e(f'ds_read_b128 v[{XP}:{XP+3}], v58'); e(f'ds_read_b128 v[{XP+4}:{XP+7}], v58 offset:16')
    e(f'v_add_f32_dpp v61, v61, v61 {DP[1]} row_mask:0xf bank_mask:0xf'); e('s_nop 1')
    e(f'v_add_f32_dpp v61, v61, v61 {DP[2]} row_mask:0xf bank_mask:0xf')
    e('v_rcp_f32 v61, v61')
    e('s_waitcnt lgkmcnt(0)')
    e('s_cbranch_scc1 L_projmm')
    waittiles('L_waityb', 8 * NIT - tYB, sl=1)
    e('s_mov_b32 s60, s69')
    wload(DwB)
    if not mmw: e('s_waitcnt vmcnt(0)')
    e('s_branch L_projmm')
    lab('L_ret_fin')
    stamp(7)
    e('s_cmp_eq_u32 s64, 0'); e('s_cbranch_scc0 L_yw1')
    e('v_mov_b32 v8, 1'); e('ds_write_b32 v59, v8 offset:20')
    e('s_cmp_lg_u32 s81, 0'); e('s_cbranch_scc1 L_done')
    e('s_branch L_yw2')
    lab('L_yw1')
    e('s_cmp_lg_u32 s81, 0'); e('s_cbranch_scc1 L_done')
    c('branch B polls only after branch A of this workgroup has published')
    waitlds('L_yw', 20, 1, sl=1)
    lab('L_yw2')
    assert NS * NY * 4 <= 32 and NY >= 2
    def yissue(s):
        for n in range(NY):
            if n == 0: so = 's80'
            else:
                e(f's_add_u32 s61, s80, {n*(256//NY)*STRIDE}'); so = 's61'
            r = O1 + 4 * (s * NY + n)
            e(f'buffer_load_dwordx4 v[{r}:{r+3}], v12, s[{SWS}:{SWS+3}], {so} offen sc1')
    c('two staggered polls of the y records in flight')
    for s in range(NS):
        if s: e(f's_sleep {ysp}')
        yissue(s)
    lab('L_y')
    for s in range(NS):
        for n in range(NY):
            r = O1 + 4 * (s * NY + n)
            e(f's_waitcnt vmcnt({(NS-1)*NY + NY-1-n})')
            untag(r, 4, 8, first=(n == 0))
            if n == 1:
                for k in range(4): e(f'v_add_f32 v{AC+k}, v{r-4+k}, v{r+k}')
            elif n > 1:
                for k in range(4): e(f'v_add_f32 v{AC+k}, v{AC+k}, v{r+k}')
        e('v_and_b32 v8, 0xff, v8'); e('v_cmp_ne_u32 vcc, 0, v8'); e('s_cbranch_vccz L_yok')
        yissue(s)
    e('s_sub_u32 s60, s60, 1'); e('s_cbranch_scc0 L_y')
    e('s_endpgm')
    lab('L_yok')
    stamp(8)
    e(f'v_permlane32_swap_b32 v{AC}, v{AC+1}'); e(f'v_permlane32_swap_b32 v{AC+2}, v{AC+3}')
    e(f'v_add_f32 v{AC}, v{AC}, v{AC+1}'); e(f'v_add_f32 v{AC+2}, v{AC+2}, v{AC+3}'); e('s_nop 1')
    e(f'v_permlane16_swap_b32 v{AC}, v{AC+2}'); e(f'v_add_f32 v8, v{AC}, v{AC+2}')
    for d in (8, 4, 2, 1):
        if d >= NY:
            e('s_nop 1'); e(f'v_add_f32_dpp v8, v8, v8 row_ror:{d} row_mask:0xf bank_mask:0xf')
    e('v_cvt_pk_bf16_f32 v8, v8, v8')
    m = ((1 << NY) - 1) * 0x00010001
    e(f's_mov_b32 exec_lo, 0x{m:08x}'); e(f's_mov_b32 exec_hi, 0x{m:08x}')
    e(f'buffer_store_short v8, v11, s[{SX}:{SX+3}], s77 offen')
    c('every workgroup has read the tag word by now: leave the tag of this launch behind')
    e('s_or_b32 s60, s2, s64'); e('s_cbranch_scc1 L_done')
    e('s_mov_b64 exec, 1'); e('v_mov_b32 v9, s94'); e('v_mov_b32 v10, 0')
    e(f'buffer_store_dword v9, v10, s[{SWS}:{SWS+3}], 0 offen')
    lab('L_done')
    if DIAG:
        e('s_mov_b64 exec, -1')
        e('ds_read_b64 v[8:9], v59 offset:56'); e('s_waitcnt lgkmcnt(0)'); e('v_readfirstlane_b32 s60, v8'); e('v_readfirstlane_b32 s61, v9'); e('s_nop 3')
        e('v_writelane_b32 v1, s60, 12'); e('v_writelane_b32 v1, s61, 13'); e('s_getreg_b32 s60, hwreg(HW_REG_XCC_ID, 0, 3)'); e('v_writelane_b32 v1, s60, 15')
        e('s_memrealtime s[70:71]'); e('s_waitcnt lgkmcnt(0)'); e('v_writelane_b32 v1, s70, 9'); e('v_writelane_b32 v1, s72, 0')
        e('s_add_u32 s48, s28, 0x4000000'); e('s_addc_u32 s49, s29, 0'); e('s_mov_b32 s50, 0x100000'); e('s_mov_b32 s51, 0x20000')
        e('s_lshl_b32 s60, s2, 4'); e('s_add_u32 s60, s60, s3'); e('s_lshl_b32 s60, s60, 7')
        e('v_lshlrev_b32 v2, 2, v0')
        e('s_mov_b64 exec, 0xffffffff')
        e(f'buffer_store_dword v1, v2, s[{SWS}:{SWS+3}], s60 offen')
    lab('L_end')
    e('s_endpgm')
    L.append('.section .rodata,"a"'); L.append('.p2align 6'); L.append(f'.amdhsa_kernel {NAME}')
    L.append('  .amdhsa_next_free_vgpr 168'); L.append('  .amdhsa_next_free_sgpr 99'); L.append('  .amdhsa_accum_offset 168')
    L.append('  .amdhsa_group_segment_fixed_size 0'); L.append('  .amdhsa_kernarg_size 104'); L.append('  .amdhsa_user_sgpr_count 2')
    L.append('  .amdhsa_user_sgpr_kernarg_segment_ptr 1'); L.append('  .amdhsa_system_sgpr_workgroup_id_x 1'); L.append('.end_amdhsa_kernel')
    return '\n'.join(L) + '\n'

if __name__ == '__main__':
    kw = {}
    for a in sys.argv[2:]:
        k, v = a.split('=')
        kw[k] = int(v, 0)
    open(sys.argv[1], 'w').write(gen(**kw))
```

```python
import sys
def padpt(src, point, base, wg=9):
    s = src.replace("    s_load_dwordx2 s[28:29], s[0:1], 96\n", "    s_load_dwordx2 s[28:29], s[0:1], 96\n    s_memrealtime s[72:73]\n", 1)
    st = "    s_memrealtime s[90:91]\n    s_waitcnt lgkmcnt(0)\n"
    if point == 'q':
        s = s.replace("    s_cmp_eq_u32 s80, 0\n    s_cbranch_scc1 L_loopK\n", st + "    s_cmp_eq_u32 s80, 0\n    s_cbranch_scc1 L_loopK\n", 1)
    elif point == 'kb':
        s = s.replace("L_endKA:\n", "L_endKA:\n" + st, 1)
    elif point == 'va':
        s = s.replace("L_endVB:\n", "L_endVB:\n" + st, 1)
    elif point == 'pub':
        s = s.replace("    s_cmp_eq_u32 s67, 2\n    s_cbranch_scc0 L_pubslow\n", st + "    s_cmp_eq_u32 s67, 2\n    s_cbranch_scc0 L_pubslow\n", 1)
    elif point.startswith('it'):
        n = 31 - int(point[2:])
        s = s.replace("L_loopK:\n", f"L_loopK:\n    s_cmp_eq_u32 s56, {n}\n    s_cbranch_scc0 L_nost\n" + st + "L_nost:\n", 1)
    guard = "" if wg < 0 else f"    s_cmp_lg_u32 s2, {wg}\n    s_cbranch_scc1 L_end\n    s_cmp_lg_u32 s3, 0\n    s_cbranch_scc1 L_end\n"
    code = guard + f"""    s_sub_u32 s60, s90, s72
    s_max_u32 s60, s60, {base*100}
    s_min_u32 s60, s60, {base*100+2000}
    s_sub_u32 s60, s60, {base*100}
    s_mul_i32 s60, s60, 10
    s_add_u32 s60, s60, 15000
L_padx:
    s_sleep 1
    s_memrealtime s[70:71]
    s_waitcnt lgkmcnt(0)
    s_sub_u32 s61, s70, s72
    s_cmp_lt_u32 s61, s60
    s_cbranch_scc1 L_padx
    s_endpgm
L_pubslow:
"""
    old = "    s_endpgm\nL_pubslow:\n"
    assert old in s
    return s.replace(old, code, 1)
if __name__ == '__main__':
    open(sys.argv[2], 'w').write(padpt(open(sys.argv[1]).read(), sys.argv[3], int(sys.argv[4]), int(sys.argv[5]) if len(sys.argv) > 5 else 9))
```

```python
import sys, struct, os
NAME = 'concat_heads__mha_block_cached__gqa_block_cached__decode_kernel'
def f32(x): return struct.unpack('<I', struct.pack('<f', x))[0]
_ref = 'concat_heads__mha_block_cached__gqa_block_cached__decode.s.ref'
HEADER = open(_ref).read().split('; Override launch')[0] if os.path.exists(_ref) else ''

LAY_A = ((13, 15), 12, (16, 21), [0, 0, 48, 40, 32, 38, 34, 18])
LAY_B = ((13, 16), 12, (15, 21, 19, 20), [0, 0, 8, 8, 14, 2, 2, 14])

DOC = r'''
; ---------------------------------------------------------------------------------------------
; Design
; ---------------------------------------------------------------------------------------------'''

def gen(DIAG=0, D=9, mE=0x33, thU=36, thF=144, halfF=0, freeT=0, hold=0, bar2=0, prelate=0, ctlend=2, nfree=1, Dr=3, Dp=5, q0=3, qslp=3, KF=6, tQ=14, tPub=31, tG=28,
        tWL=6, tYB=4, DwA=9, DwB=9, slp=4, NY=8, NS=2, ysp=7, fulln=1, outpre=0, reA=0, local=1, mmw=0, pre0=10, fastT=1, layA=None, layB=None):
    LA = layA or LAY_A; LB = layB or LAY_B
    D2 = D + 1
    NW = 6
    BASE = 128
    RA = 640; OB = 2 * RA; YA = OB + 128 + 2048; YB = YA + 1024; QBO = YB + 1024; QAO = QBO + 1024; IDO = QAO + 1024; STRIDE = IDO + 128
    PGO = BASE + 256 * STRIDE; WSBYTES = PGO + 8 * 128
    L_QA = 8192; L_QB = L_QA + 256; L_FLAG = L_QB + 1024; L_X = L_FLAG + 64
    L_SA = 10240; L_SB = L_SA + 16384; LDS = L_SB + 16384 + 1024
    NP_A = 32; NP_B = 8; NPK = NP_A - 1; NIT = NPK + NP_A + 2 * NP_B
    SPIN = 1 << 18
    WQA, WFA, WFB, WQB = 2, 3, 4, 5
    L = []
    def e(s): L.append('    ' + s)
    def lab(s): L.append(s + ':')
    def c(s): L.append('    ; ' + s)
    L.append(HEADER.rstrip('\n'))
    L.append(f'; @launch grid=(256,1,1) block=({NW*64},1,1) lds={LDS}')
    L.append(DOC.strip('\n'))
    L.append('.amdgcn_target "amdgcn-amd-amdhsa--gfx950"')
    L.append('.text'); L.append(f'.globl {NAME}')
    L.append('.p2align 12'); L.append(f'.fill {(4096 - 0x300) // 4}, 4, 0xbf810000')
    L.append('.p2align 8'); L.append(f'.type {NAME},@function')
    lab(NAME)
    def stamp(idx):
        if DIAG != 4: return
        e('s_memrealtime s[70:71]'); e('s_waitcnt lgkmcnt(0)'); e(f'v_writelane_b32 v1, s70, {idx}')
    def srd(d, lo, size, off=None):
        if off is None:
            e(f's_mov_b32 s{d}, s{lo}'); e(f's_mov_b32 s{d+1}, s{lo+1}')
        else:
            e(f's_add_u32 s{d}, s{lo}, {off}'); e(f's_addc_u32 s{d+1}, s{lo+1}, 0')
        e(f's_mov_b32 s{d+2}, {size}'); e(f's_mov_b32 s{d+3}, 0x20000')
    def basesel():
        e('s_mov_b32 s62, 0xaaaaaaaa'); e('s_mov_b32 s63, 0xaaaaaaaa')
        e('v_mov_b32 v8, 0x0c0c0100'); e('v_mov_b32 v9, 0x01000c0c')
        e('v_cndmask_b32 v60, v8, v9, s[62:63]')
        e('v_mov_b32 v8, 0x0c0c0302'); e('v_mov_b32 v9, 0x03020c0c')
        e('v_cndmask_b32 v61, v8, v9, s[62:63]')
        e('v_mov_b32 v62, 0x0c0c0c0c')
    TG = 36
    def tags():
        e('s_add_u32 s94, s93, 0x01010101'); e('s_not_b32 s95, s94')
        e(f's_and_b32 s{TG}, s94, 0xff'); e(f's_bfe_u32 s{TG+1}, s94, 0x80008'); e(f's_bfe_u32 s{TG+2}, s94, 0x80010'); e(f's_lshr_b32 s{TG+3}, s94, 24')
    def puttag(r, n, vm, src=None):
        for k in range(n): e(f'v_bfi_b32 v{r+k}, v{vm}, s{TG+(k&3)}, v{(r if src is None else src)+k}')
    def untag_ops(r, n, acc, first=True):
        ops = [f'v_xor_b32 v{r+k}, s{TG+(k&3)}, v{r+k}' for k in range(n)]
        k = 0
        if first:
            ops.append(f'v_or3_b32 v{acc}, v{r}, v{r+1}, v{r+2}'); k = 3
        while k + 1 < n:
            ops.append(f'v_or3_b32 v{acc}, v{acc}, v{r+k}, v{r+k+1}'); k += 2
        if k < n: ops.append(f'v_or_b32 v{acc}, v{acc}, v{r+k}')
        return ops
    def untag(*a, **k):
        for o in untag_ops(*a, **k): e(o)
    def waitlds(label, off, target, sl=None):
        e(f's_mov_b32 s60, {SPIN*4}')
        lab(label)
        e(f's_sleep {slp if sl is None else sl}')
        e(f'ds_read_b32 v8, v59 offset:{off}'); e('s_waitcnt lgkmcnt(0)'); e('v_readfirstlane_b32 s61, v8')
        e('s_sub_u32 s60, s60, 1'); e('s_cbranch_scc1 L_end')
        e(f's_cmp_lt_u32 s61, {target}'); e(f's_cbranch_scc1 {label}')
    def waittiles(label, tiles, sl=None):
        e(f's_mov_b32 s60, {SPIN*4}')
        lab(label)
        e(f's_sleep {slp if sl is None else sl}')
        e(f'ds_read_b64 v[8:9], v59 offset:24'); e('s_waitcnt lgkmcnt(0)'); e('v_add_u32 v8, v8, v9')
        e('s_sub_u32 s60, s60, 1'); e('v_readfirstlane_b32 s61, v8'); e('s_cbranch_scc1 L_end')
        e(f's_cmp_lt_u32 s61, {tiles}'); e(f's_cbranch_scc1 {label}')
    SL, SW, SX, SWS = 32, 40, 44, 48
    RING = 64; WT = 64; XP = 16; SEL = 24; RR = 32; DD = 40; QQ = 44; QD = 48; SAVE = 128; PF = 144
    def wload(dw):
        for t in range(16):
            if t > dw: e(f's_waitcnt vmcnt({dw})')
            e(f'buffer_load_dwordx4 v[{WT+4*t}:{WT+4*t+3}], v5, s[{SW}:{SW+3}], s60 offen nt')
            if t < 15: e('s_addk_i32 s60, 0x2000')
    def xload():
        e(f'buffer_load_dwordx4 v[{XP}:{XP+3}], v6, s[{SX}:{SX+3}], s61 offen')
        e(f'buffer_load_dwordx4 v[{XP+4}:{XP+7}], v6, s[{SX}:{SX+3}], s61 offen offset:16')
    e('s_cmp_ge_u32 s2, 256'); e('s_cbranch_scc1 L_end')
    e('s_load_dwordx16 s[4:19], s[0:1], 0')
    e('s_load_dwordx8 s[20:27], s[0:1], 64')
    e('s_load_dwordx2 s[28:29], s[0:1], 96')
    if DIAG: e('s_memrealtime s[72:73]')
    e('v_lshrrev_b32 v1, 6, v0')
    e('v_and_b32 v0, 63, v0')
    e('v_readfirstlane_b32 s3, v1')
    e('s_and_b32 s30, s2, 7')
    e('s_lshr_b32 s31, s2, 3')
    e('s_lshr_b32 s60, s31, 3')
    e('s_lshl2_add_u32 s52, s30, s60')
    e('v_lshrrev_b32 v2, 4, v0')
    e('v_lshlrev_b32 v14, 4, v0')
    e('s_bfe_u32 s53, s31, 0x10002')
    if DIAG: e('v_mov_b32 v1, 0')
    e(f's_bitcmp1_b32 {(1 << WQA) | (1 << WQB)}, s3')
    e('s_cbranch_scc0 L_str_pro')
    c('q waves: rows 64*(j&7).. of wq, columns of head h')
    e('s_and_b32 s66, s31, 7')
    e('s_lshl_b32 s60, s66, 19'); e('s_lshl_b32 s62, s52, 8'); e('s_add_u32 s60, s60, s62')
    e('s_lshl_b32 s61, s66, 7')
    e('v_and_b32 v4, 0xf0, v14')
    e('v_bfe_u32 v7, v0, 3, 1')
    e('v_lshlrev_b32 v6, 5, v2')
    e('v_lshl_add_u32 v6, v7, 10, v6')
    e('v_lshl_add_u32 v5, v2, 17, v4')
    e(f's_mov_b32 s{SW+2}, {1<<22}'); e(f's_mov_b32 s{SW+3}, 0x20000'); e(f's_movk_i32 s{SX+2}, 0x800'); e(f's_mov_b32 s{SX+3}, 0x20000')
    e(f's_cmp_eq_u32 s3, {WQA}')
    e('s_waitcnt lgkmcnt(0)')
    e(f's_cselect_b32 s{SW}, s10, s20'); e(f's_cselect_b32 s{SW+1}, s11, s21')
    e(f's_cselect_b32 s{SX}, s4, s14'); e(f's_cselect_b32 s{SX+1}, s5, s15')
    e('s_load_dword s93, s[28:29], 0')
    e('s_cbranch_scc0 L_qb_pro')
    xload(); wload(16)
    c('the loads of this wave go first: everyone else starts behind this barrier')
    e('s_barrier')
    if bar2: e('s_barrier')
    e('s_branch L_qsetup')
    lab('L_str_pro')
    e('s_lshl_b32 s60, s53, 5'); e('s_add_u32 s60, s60, s52')
    e('s_and_b32 s62, s31, 3'); e('s_lshl2_add_u32 s65, s60, s62')
    e('v_and_b32 v10, 3, v0'); e('v_bfe_u32 v9, v0, 2, 2')
    e('v_lshl_add_u32 v10, v2, 2, v10')
    e('v_lshlrev_b32 v10, 4, v10')
    e('v_lshl_add_u32 v42, v9, 8, v10')
    e(f's_cmp_ge_u32 s3, {WFA}'); e('s_cselect_b32 s80, 1, 0')
    e('s_xor_b32 s64, s3, s80'); e('s_and_b32 s64, s64, 1')
    def itbits(lay):
        ld, wv, wg, cc = lay
        used = list(ld) + [wv] + list(wg)
        return [b for b in range(12, 22) if b not in used]
    def layout(lay, sSt, sB0):
        ld, wv, wg, cc = lay
        first = True
        for k in range(8):
            if cc[k] == 0: continue
            e(f's_bitcmp1_b32 s65, {k}')
            if first: e(f's_cselect_b32 s60, {cc[k]}, 0'); first = False
            else: e(f's_cselect_b32 s61, {cc[k]}, 0'); e('s_add_u32 s60, s60, s61')
        e(f's_lshl_b32 s{sB0}, s64, {wv}')
        def deposit(dst, src, srcbit, bits, init):
            k = 0
            while k < len(bits):
                n = 1
                while k + n < len(bits) and bits[k + n] == bits[k] + n: n += 1
                e(f's_bfe_u32 s61, s{src}, 0x{(n << 16) | (srcbit + k):x}')
                if init: e(f's_lshl_b32 s{dst}, s61, {bits[k]}'); init = False
                else: e(f's_lshl_b32 s61, s61, {bits[k]}'); e(f's_or_b32 s{dst}, s{dst}, s61')
                k += n
        deposit(sB0, 65, 0, wg, False)
        if any(v & 1 for v in cc): deposit(sB0, 60, 0, [ld[1]], False)
        deposit(sSt, 60, 1, itbits(lay), True)
    def usepass(lay, sSt, sB0):
        ld = lay[0]
        e(f's_mov_b32 s54, s{sSt}'); e(f's_mov_b32 s55, {sum(1 << b for b in itbits(lay))}')
        e(f's_mov_b32 s84, s{sB0}'); e(f's_xor_b32 s85, s84, {1 << ld[0]}'); e(f's_xor_b32 s86, s84, {1 << ld[1]}'); e(f's_xor_b32 s87, s85, {1 << ld[1]}')
    layout(LA, 58, 76)
    usepass(LA, 58, 76)
    e('s_sub_u32 s54, s54, s80'); e('s_and_b32 s54, s54, s55')
    e('s_lshr_b32 s60, s65, 2'); e('s_lshl_b32 s60, s60, 22')
    e(f'v_mov_b32 v40, {L_FLAG}'); e('v_mov_b32 v4, 0'); e('v_mov_b32 v5, 0')
    for o in (0, 8, 16, 24, 32): e(f'ds_write_b64 v40, v[4:5] offset:{o}')
    e('s_waitcnt lgkmcnt(0)')
    srd(SL, 6, 1 << 22, 's60')
    e('s_add_u32 s88, s54, s84')
    e('s_barrier')
    if bar2: e('s_barrier')
    def load(t, j): e(f'buffer_load_dwordx4 v[{RING+16*t+4*j}:{RING+16*t+4*j+3}], v42, s[{SL}:{SL+3}], s88 offen offset:{1024*j} nt')
    def adv(t):
        if t == 3:
            e('s_orn2_b32 s54, s54, s55'); e('s_add_u32 s54, s54, 1'); e('s_and_b32 s54, s54, s55')
        e(f's_add_u32 s88, s54, s{84 + ((t + 1) & 3)}')
    def ringload(n0, n1):
        for n in range(n0, n1):
            if n > Dr: e(f's_waitcnt vmcnt({Dr})')
            load(n >> 2, n & 3)
            if n & 3 == 3: adv(n >> 2)
    ringload(0, Dr + 1)
    e('s_branch L_stream')
    lab('L_qb_pro')
    srd(SWS, 28, WSBYTES)
    e(f'v_min_u32 v8, {STRIDE//128-pre0-1}, v0'); e('v_lshlrev_b32 v8, 7, v8')
    e(f's_mul_i32 s62, s2, {STRIDE}'); e(f's_add_u32 s62, s62, {BASE+pre0*128}')
    e('s_barrier')
    c('touch the hand-off lines of this workgroup so that later write-backs meet them in the memory-side cache')
    e(f'buffer_load_dword v63, v8, s[{SWS}:{SWS+3}], s62 offen')
    xload(); wload(Dp)
    if bar2: e('s_barrier')
    lab('L_qsetup')
    e('s_mov_b32 s98, 0')
    lab('L_svc')
    c('byte selectors that place one bf16 value at position lane&7 of an MFMA operand')
    e('s_setprio 3')
    basesel()
    e('s_mov_b32 s62, 0x03030303'); e('s_mov_b32 s63, 0x03030303')
    for k in range(4):
        e(f'v_cndmask_b32 v{SEL+2*k}, v62, v60, s[62:63]')
        e(f'v_cndmask_b32 v{SEL+2*k+1}, v62, v61, s[62:63]')
        if k < 3: e('s_lshl_b64 s[62:63], s[62:63], 2')
    e('v_and_b32 v3, 7, v0')
    e(f'v_mov_b32 v59, {L_FLAG}'); e('v_mov_b32 v60, 0xff'); e('v_mov_b32 v61, 1.0')
    srd(SWS, 28, WSBYTES)
    e(f's_mul_i32 s68, s2, {STRIDE}'); e(f's_add_u32 s68, s68, {BASE}')
    e('s_cmp_eq_u32 s98, 1'); e('s_cbranch_scc1 L_finisher')
    for r in range(4): e(f'v_mov_b32 v{DD+r}, 0')
    e(f's_cmp_eq_u32 s3, {WQA}'); e(f's_cselect_b32 s76, 1024, 0'); e('s_add_u32 s76, s76, s68'); e(f's_add_u32 s76, s76, {QBO}')
    c('q gather lane offsets: two producers per load')
    e('v_lshrrev_b32 v8, 5, v0'); e('v_bfe_u32 v9, v0, 3, 2')
    e('v_lshlrev_b32 v12, 8, v9'); e('v_lshl_add_u32 v12, v3, 4, v12')
    e('v_lshlrev_b32 v11, 6, v9'); e('v_lshl_add_u32 v11, v3, 1, v11')
    e(f's_mov_b32 s60, {8*STRIDE}'); e('v_mul_lo_u32 v10, v8, s60'); e('v_add_u32 v10, v10, v12'); e('v_mul_lo_u32 v13, v3, s60')
    e('s_and_b32 s60, s2, 0xc7'); e(f's_mul_i32 s75, s60, {STRIDE}')
    e('s_lshl_b32 s61, s53, 7'); e('s_add_u32 s74, s75, s61'); e(f's_add_u32 s74, s74, {QAO+BASE}'); e(f's_add_u32 s75, s75, {IDO+BASE}')
    for k in range(1, 4): e(f's_add_u32 s{84+k}, s74, {16*k*STRIDE}')
    e('s_getreg_b32 s67, hwreg(HW_REG_XCC_ID, 0, 4)')
    e(f's_add_u32 s77, s68, {IDO}')
    e('s_waitcnt lgkmcnt(0)')
    tags()
    e('v_mov_b32 v48, s67'); e('v_mov_b32 v49, s67'); e('v_mov_b32 v50, s94'); e('v_mov_b32 v51, s95')
    e('s_waitcnt vmcnt(%d)' % (16 if mmw else 0))
    lab('L_projmm')
    c('D[chunk][(b,i)] = v61 * sum_t W_t x delta(XP_t): 64 rows of a weight matrix times two input vectors')
    for t in range(16):
        r = RR + 4 * (t & 1)
        for k in range(4):
            e(f'v_perm_b32 v{r+k}, v{XP+(t>>1)}, v{XP+(t>>1)}, v{SEL+2*k+(t&1)}')
        if t > 0:
            tp = t - 1; rp = RR + 4 * (tp & 1)
            if mmw and tp % mmw == 0: e(f's_waitcnt vmcnt({max(0, 16-tp-mmw)})')
            e(f'v_mfma_f32_16x16x32_bf16 v[{DD}:{DD+3}], v[{WT+4*tp}:{WT+4*tp+3}], v[{rp}:{rp+3}], v[{DD}:{DD+3}]')
    e('s_waitcnt vmcnt(0)')
    e(f'v_mfma_f32_16x16x32_bf16 v[{DD}:{DD+3}], v[{WT+60}:{WT+63}], v[{RR+4}:{RR+7}], v[{DD}:{DD+3}]')
    e(f's_mov_b32 s60, {SPIN}')
    e('s_cmp_eq_u32 s98, 1')
    e('s_nop 5')
    for r in range(4): e(f'v_mul_f32 v{DD+r}, v{DD+r}, v61')
    puttag(DD, 4, 60)
    e('s_cbranch_scc0 L_q0')
    e(f'buffer_store_dwordx4 v[{DD}:{DD+3}], v14, s[{SWS}:{SWS+3}], s76 offen sc1')
    e('s_branch L_ret_fin')
    lab('L_q0')
    e(f's_cmp_eq_u32 s3, {WQA}'); e('s_cbranch_scc0 L_ret_qb')
    c('q of branch A: publish the slice and the die id in the cache of this die first, gather the eight slices')
    def pubq(p, withid=True):
        e(f'buffer_store_dwordx4 v[{DD}:{DD+3}], v14, s[{SWS}:{SWS+3}], s76 offen {p}')
        if withid:
            e('s_mov_b64 exec, 0xff')
            e(f'buffer_store_dwordx4 v[48:51], v14, s[{SWS}:{SWS+3}], s77 offen {p}')
            e('s_mov_b64 exec, -1')
    pubq('')
    lab('L_qa')
    e(f's_sleep {qslp}')
    for k in range(4):
        e(f'buffer_load_dwordx4 v[{64+4*k}:{64+4*k+3}], v10, s[{SWS}:{SWS+3}], s{74 if k == 0 else 84+k} offen sc1')
    for k in range(4):
        e(f's_waitcnt vmcnt({3-k})')
        untag(64 + 4 * k, 4, 8, first=(k == 0))
        if k > 0:
            for r in range(4): e(f'v_add_f32 v{64+r}, v{64+r}, v{64+4*k+r}')
    e('v_and_b32 v8, 0xff, v8'); e('v_cmp_ne_u32 vcc, 0, v8'); e('s_cbranch_vccz L_qaok')
    e('s_sub_u32 s60, s60, 1'); e('s_cbranch_scc1 L_end')
    e(f's_cmp_eq_u32 s60, {SPIN-KF}'); e('s_cbranch_scc0 L_qa')
    c('still incomplete: the group may span dies, write through to memory')
    pubq('sc1')
    e('s_branch L_qa')
    lab('L_qaok')
    e('v_permlane32_swap_b32 v64, v66'); e('v_permlane32_swap_b32 v65, v67')
    e('v_add_f32 v64, v64, v66'); e('v_add_f32 v65, v65, v67')
    e('v_and_b32 v8, 32, v0'); e('v_add_u32 v11, v11, v8')
    e('v_cvt_pk_bf16_f32 v64, v64, v65')
    e('v_mov_b32 v8, 1'); e('v_mov_b32 v9, s93')
    e(f'ds_write_b16 v11, v64 offset:{L_QA}'); e(f'ds_write_b16_d16_hi v11, v64 offset:{L_QA+16}')
    e('ds_write_b32 v59, v9 offset:16'); e('ds_write_b32 v59, v8 offset:12')
    c('unless all eight readers report this die, write the slice through to memory')
    e(f'buffer_load_dwordx4 v[44:47], v13, s[{SWS}:{SWS+3}], s75 offen sc1')
    e('s_waitcnt vmcnt(0)')
    e('v_xor_b32 v46, s94, v46'); e('v_xor_b32 v47, s95, v47'); e('v_xor_b32 v44, s67, v44'); e('v_or3_b32 v46, v46, v47, v44')
    e('v_cmp_ne_u32 vcc, 0, v46')
    if local: e('s_cbranch_vccz L_end')
    pubq('sc1')
    e('s_endpgm')
    L.append('.p2align 12')
    lab('L_stream')
    e('v_mov_b32 v13, v42')
    e('v_lshl_add_u32 v15, v9, 9, v10')
    e(f'v_add_u32 v38, {L_QA}, v10')
    e(f'v_lshl_add_u32 v39, v9, 8, v38'); e(f'v_add_u32 v39, {L_QB-L_QA}, v39')
    e('s_lshl_b32 s60, s64, 13'); e(f's_add_u32 s60, s60, {L_SA}')
    e(f'v_lshl_add_u32 v{SAVE}, v2, 4, s60')
    e(f'v_lshl_add_u32 v8, v2, 2, v9'); e(f's_add_u32 s60, s60, {L_SB-L_SA}')
    e(f'v_lshl_add_u32 v{SAVE+1}, v8, 4, s60')
    e(f'v_mov_b32 v{SAVE+3}, 0xff'); e(f'v_lshlrev_b32 v{SAVE+4}, 3, v0')
    basesel()
    e('s_mov_b32 s62, 0x33333333'); e('s_mov_b32 s63, 0x33333333')
    e('v_cndmask_b32 v34, v62, v60, s[62:63]'); e('v_cndmask_b32 v35, v62, v61, s[62:63]')
    e('v_cndmask_b32 v36, v60, v62, s[62:63]'); e('v_cndmask_b32 v37, v61, v62, s[62:63]')
    e('v_mov_b32 v41, 1')
    e(f's_mov_b32 s59, 0x{f32(128**-0.5*1.4426950408889634):08x}')
    srd(SWS, 28, WSBYTES)
    e(f's_mul_i32 s68, s2, {STRIDE}'); e(f's_mul_i32 s60, s64, {RA}'); e('s_add_u32 s68, s68, s60')
    c('pass 0: K of A')
    e(f's_mov_b32 s56, {NPK}'); e('s_mov_b32 s57, 0'); e('s_mov_b32 s78, 0')
    c('tiles that keep one more load in flight: the even dies see a slightly longer memory latency')
    e('s_getreg_b32 s60, hwreg(HW_REG_XCC_ID, 0, 1)'); e('s_cmp_eq_u32 s60, 0'); e(f's_cselect_b32 s75, {mE}, 0')
    e('s_lshl_b32 s60, s64, 2'); e('s_lshr_b32 s75, s75, s60'); e('s_and_b32 s75, s75, 15')
    e(f's_add_u32 s60, s60, {L_FLAG+24}'); e(f'v_mov_b32 v{SAVE+6}, s60'); e(f'v_mov_b32 v{SAVE+5}, 0')
    e(f's_mul_i32 s60, s80, {NPK*256}'); e(f'v_add_u32 v11, s60, v{SAVE}')
    layout(LB, 77, 79)
    e('s_mov_b32 s66, 64'); e('s_mov_b32 s62, 0x00010001'); e('s_mov_b32 s63, 0x00010001')
    e(f'v_mov_b32 v10, 0x{f32(-3.0e38):08x}')
    ringload(Dr + 1, 16)
    e(f's_mov_b32 s60, {SPIN*4}')
    lab('L_waitqa')
    e('ds_read_b32 v4, v40 offset:12'); e('ds_read_b32 v5, v40 offset:16'); e(f'ds_read_b128 v[{QQ}:{QQ+3}], v38')
    e('s_waitcnt lgkmcnt(0)'); e('v_readfirstlane_b32 s61, v4'); e('v_readfirstlane_b32 s93, v5')
    e('s_sub_u32 s60, s60, 1'); e('s_cbranch_scc1 L_end')
    e('s_cmp_eq_u32 s61, 0'); e('s_cbranch_scc1 L_waitqa')
    tags()
    e('s_cmp_eq_u32 s80, 0'); e('s_cbranch_scc1 L_loopK')
    c('helper: one iteration, nothing to reload (zero-size descriptor)')
    e(f's_mov_b32 s{SL+2}, 0'); e('s_mov_b32 s56, 1'); e('s_mov_b32 s57, 4'); e('s_mov_b32 s69, 0'); e('s_mov_b32 s78, 1'); e('s_mov_b64 vcc, -1')
    e(f'v_mov_b32 v{SAVE+6}, {L_FLAG+40}')
    e('s_branch L_bodyK')
    nthr = [0]
    def thr():
        nthr[0] += 1; n = nthr[0]
        e(f's_cbranch_vccnz L_thf{n}'); e(f's_cbranch_scc1 L_thd{n}'); e(f's_waitcnt vmcnt({D})')
        lab(f'L_thd{n}'); e(f's_waitcnt vmcnt({D2})'); lab(f'L_thf{n}'); e('s_waitcnt vmcnt(15)')
    def looptop(x):
        lab(f'L_loop{x}')
        c('depth level chosen by wave 3')
        e('s_waitcnt lgkmcnt(0)'); e(f'v_readfirstlane_b32 s60, v{SAVE+5}')
        e(f'ds_read_b32 v{SAVE+5}, v{SAVE+6} offset:8')
        e('s_or_b32 s69, s75, s60')
        e('s_cmp_le_u32 s56, s78'); e('s_cselect_b64 vcc, -1, 0')
        e('s_bitcmp1_b32 s60, 4'); e('s_cselect_b64 vcc, -1, vcc')
        if freeT:
            e('s_cmp_eq_u32 s56, 2'); e('s_cselect_b64 vcc, -1, vcc')
        e('s_cmp_eq_u32 s56, 1'); e(f's_cbranch_scc1 L_switch{x}')
        lab(f'L_body{x}')
    def count():
        e('s_mov_b64 exec, 1'); e(f'ds_add_u32 v{SAVE+6}, v41'); e('s_mov_b64 exec, -1')
    def redmax(r):
        e(f'v_mov_b32 v9, v{r}'); e('s_nop 1'); e(f'v_permlane32_swap_b32 v{r}, v9'); e(f'v_max_f32 v{r}, v{r}, v9')
        e(f'v_mov_b32 v9, v{r}'); e('s_nop 1'); e(f'v_permlane16_swap_b32 v{r}, v9'); e(f'v_max_f32 v{r}, v{r}, v9')
    c('K loop: scores to LDS (address v11, stride s66, lanes s[62:63]), running maximum v10')
    looptop('K')
    for t in range(4):
        K = RING + 16 * t
        count()
        if halfF and t == halfF:
            e('s_cmp_le_u32 s56, s78'); e('s_cselect_b64 vcc, -1, 0')
        e(f's_bitcmp1_b32 s69, {t}')
        for j in range(4):
            thr()
            e(f'v_mfma_f32_16x16x32_bf16 v[{QD+4*j}:{QD+4*j+3}], v[{K+4*j}:{K+4*j+3}], v[{QQ}:{QQ+3}], 0')
            load(t, j)
        adv(t)
        if t < 3: e('s_nop 2')
        S = 4 if t % 2 == 0 else 16
        for k in range(4):
            for j in range(4):
                if k == 0: e(f'v_mov_b32_dpp v{S+j}, v{QD+4*j} quad_perm:[0,0,0,0] row_mask:0xf bank_mask:0xf')
                else: e(f'v_add_f32_dpp v{S+j}, v{QD+4*j+k}, v{S+j} quad_perm:[{k},{k},{k},{k}] row_mask:0xf bank_mask:0xf')
        e(f'v_max3_f32 v10, v10, v{S}, v{S+1}'); e(f'v_max3_f32 v10, v10, v{S+2}, v{S+3}')
        e('s_mov_b64 exec, s[62:63]'); e(f'ds_write_b128 v11, v[{S}:{S+3}]'); e('s_mov_b64 exec, -1')
        e('v_add_u32 v11, s66, v11')
    e('s_sub_u32 s56, s56, 1'); e('s_cmp_lg_u32 s56, 0'); e('s_cbranch_scc1 L_loopK')
    e(f's_mov_b32 s56, {NP_B}')
    e('s_cmp_eq_u32 s57, 1'); e('s_cbranch_scc0 L_endKA')
    c('end of K of B: exact maximum of the scores of this wave')
    redmax(10)
    e('s_mov_b32 s57, 2'); e(f'v_add_u32 v38, s66, v{SAVE+1}')
    lab('L_startV')
    c('V pass: scores of the first tile in v[144:147], further scores at v38 (stride s66), maximum v10')
    e('v_mul_f32 v11, s59, v10'); e('v_sub_f32 v11, 0, v11')
    RS = (26, SAVE + 8)
    def soft(k, R, lg, src=QD):
        if k == 0:
            if lg is not None: e(f's_waitcnt lgkmcnt({lg})')
            for r in range(4): e(f'v_fma_f32 v{4+r}, v{src+r}, s59, v11')
            e(f'ds_read_b128 v[{QD}:{QD+3}], v38'); e('v_add_u32 v38, s66, v38')
        elif k == 1:
            for r in range(4): e(f'v_exp_f32 v{4+r}, v{4+r}')
        elif k == 2:
            e('v_cvt_pk_bf16_f32 v24, v4, v5'); e('v_cvt_pk_bf16_f32 v25, v6, v7')
            e('v_add_f32 v8, v4, v5'); e('v_add_f32 v9, v6, v7')
        if k >= 2:
            for r in (2 * k - 4, 2 * k - 3):
                e(f'v_perm_b32 v{R+2*r}, v{24+(r>>1)}, v{24+(r>>1)}, v{34+(r&1)}')
                e(f'v_perm_b32 v{R+2*r+1}, v{24+(r>>1)}, v{24+(r>>1)}, v{36+(r&1)}')
        if k == 3: e('v_add_f32 v8, v8, v9')
    soft(0, RS[0], None, src=PF); soft(1, RS[0], 0); e('v_mov_b32 v12, 0'); soft(2, RS[0], 0); soft(3, RS[0], 0)
    e('s_waitcnt lgkmcnt(1)')
    for r in range(8): e(f'v_mov_b32 v{16+r}, 0')
    looptop('V')
    for t in range(4):
        V = RING + 16 * t
        R = RS[t & 1]
        if halfF and t == halfF:
            e('s_cmp_le_u32 s56, s78'); e('s_cselect_b64 vcc, -1, 0')
        e(f's_bitcmp1_b32 s69, {t}')
        e('v_add_f32 v12, v12, v8')
        for r in range(4):
            thr()
            e(f'v_mfma_f32_16x16x16_bf16 v[16:19], v[{V+4*r}:{V+4*r+1}], v[{R+2*r}:{R+2*r+1}], v[16:19]')
            e(f'v_mfma_f32_16x16x16_bf16 v[20:23], v[{V+4*r+2}:{V+4*r+3}], v[{R+2*r}:{R+2*r+1}], v[20:23]')
            load(t, r)
            soft(r, RS[(t + 1) & 1], None if t == 0 else 0)
            if r == 0: count()
        adv(t)
    e('s_sub_u32 s56, s56, 1'); e('s_cmp_lg_u32 s56, 0'); e('s_cbranch_scc1 L_loopV')
    e('v_mov_b32 v9, v12'); e('v_mul_f32 v4, s59, v10')
    e('s_cmp_eq_u32 s57, 2'); e('s_cbranch_scc1 L_endVB')
    c('end of V of A: reduce the sum, publish the record')
    e('v_permlane32_swap_b32 v12, v9'); e('v_add_f32 v12, v12, v9')
    e('v_mov_b32 v9, v12')
    puttag(24, 8, SAVE + 3, src=16)
    e('v_permlane16_swap_b32 v12, v9'); e('v_add_f32 v5, v12, v9'); e('v_mov_b32 v6, s94'); e('v_mov_b32 v7, s95')
    if DIAG == 4:
        e('s_memrealtime s[70:71]'); e('s_waitcnt lgkmcnt(0)'); e('v_mov_b32 v8, s70'); e(f'ds_write_b32 v{SAVE+6}, v8 offset:32')
    e('s_cmp_eq_u32 s67, 2'); e('s_cbranch_scc0 L_pubslow')
    def pubA(p):
        e('s_mov_b32 exec_lo, 0x000f000f'); e('s_mov_b32 exec_hi, 0x000f000f')
        e(f'buffer_store_dwordx4 v[24:27], v15, s[{SWS}:{SWS+3}], s68 offen offset:{BASE+128} {p}')
        e(f'buffer_store_dwordx4 v[28:31], v15, s[{SWS}:{SWS+3}], s68 offen offset:{BASE+384} {p}')
        e('s_mov_b64 exec, 0x5555')
        e(f'buffer_store_dwordx4 v[4:7], v{SAVE+4}, s[{SWS}:{SWS+3}], s68 offen offset:{BASE} {p}')
        if p == 'sc1' and reA:
            e('s_cmp_eq_u32 s67, 2'); e('s_cbranch_scc1 L_end')
        e('s_mov_b64 exec, 1'); e(f'ds_add_u32 v{SAVE+6}, v41')
        if p == '' and reA:
            e('s_mov_b64 exec, -1'); e('v_mov_b32 v59, v40')
            waitlds('L_rea', 20, 1, sl=1)
            if reA > 1: e(f's_sleep {reA}')
        else:
            e('s_endpgm')
    pubA('')
    lab('L_pubslow')
    pubA('sc1')
    lab('L_endVB')
    c('end of V of B: hand the state to wave 4 through LDS')
    e(f'v_mov_b32 v{PF+4}, v4'); e(f'v_mov_b32 v{PF+5}, v12')
    e('s_mul_i32 s60, s64, 2560'); e('v_add_u32 v8, s60, v14'); e(f'v_add_u32 v9, s60, v{SAVE+4}')
    e('ds_write_b128 v8, v[16:19]'); e('ds_write_b128 v8, v[20:23] offset:1024'); e(f'ds_write_b64 v9, v[{PF+4}:{PF+5}] offset:2048')
    e('s_mov_b64 exec, 1'); e('ds_add_u32 v40, v41 offset:8'); e('s_mov_b64 exec, -1')
    e(f's_mov_b32 s56, {NP_A}'); e('s_mov_b32 s57, 3'); e('s_mov_b32 s66, 64'); e(f's_mov_b32 s78, {nfree}')
    e(f'v_add_u32 v38, 64, v{SAVE}'); e(f'v_mov_b32 v10, v{SAVE+2}')
    e('s_branch L_startV')
    lab('L_endKA')
    e('s_cmp_eq_u32 s57, 4'); e('s_cbranch_scc1 L_endhelp')
    e(f's_mov_b32 s60, {SPIN*4}')
    c('q of B, its flag and the maximum of the helper were fetched one iteration ago; fetch again if they were not ready')
    e('s_branch L_chkqb')
    def fetchqb():
        e(f'ds_read_b64 v[{PF+4}:{PF+5}], v40'); e(f'ds_read_b32 v{PF+6}, v{SAVE+6} offset:24'); e(f'ds_read_b128 v[{PF}:{PF+3}], v39')
    lab('L_waitqb')
    fetchqb()
    e('s_sub_u32 s60, s60, 1'); e('s_cbranch_scc1 L_end')
    lab('L_chkqb')
    e('s_waitcnt lgkmcnt(0)'); e(f'v_readfirstlane_b32 s67, v{PF+4}'); e(f'v_readfirstlane_b32 s61, v{PF+5}')
    for r in range(4): e(f'v_mov_b32 v{QQ+r}, v{PF+r}')
    e('s_cmp_eq_u32 s67, 0'); e('s_cbranch_scc1 L_waitqb')
    e('s_cmp_lt_u32 s61, 2'); e('s_cbranch_scc1 L_waitqb')
    e(f'v_max_f32 v{SAVE+2}, v10, v{PF+6}')
    e('s_mov_b32 s57, 1')
    e(f'v_mov_b32 v11, v{SAVE+1}'); e('s_movk_i32 s66, 0x100'); e('s_mov_b32 s62, 0x11111111'); e('s_mov_b32 s63, 0x11111111')
    e(f'v_mov_b32 v10, 0x{f32(-3.0e38):08x}')
    e('s_branch L_loopK')
    def switch(ptr, lg, vreg):
        e(f's_lshr_b32 s60, s65, {22-lg}'); e('s_lshl_b32 s60, s60, 22')
        srd(SL, ptr, 1 << 22, 's60')
        if lg == 18: usepass(LB, 77, 79)
        else: usepass(LA, 58, 76)
        e('s_add_u32 s88, s54, s84')
        e(f'v_mov_b32 v42, v{vreg}')
        if hold: e(f's_waitcnt vmcnt({hold-1})')
    c('last iteration of a pass: the loads move on to the next pass')
    lab('L_switchK')
    e('s_cmp_eq_u32 s57, 0'); e('s_cbranch_scc0 L_sw1')
    fetchqb()
    switch(16, 18, 13)
    e('s_branch L_bodyK')
    lab('L_sw1')
    e(f'ds_read_b128 v[{PF}:{PF+3}], v{SAVE+1}')
    switch(18, 18, 14)
    redmax(SAVE + 2)
    e('s_waitcnt lgkmcnt(0)')
    e('s_branch L_bodyK')
    lab('L_switchV')
    e(f's_mov_b32 s{SL+2}, 0')
    e('s_cmp_eq_u32 s57, 2'); e('s_cbranch_scc0 L_bodyV')
    e(f'ds_read_b128 v[{PF}:{PF+3}], v{SAVE}')
    switch(8, 20, 14)
    e('s_branch L_bodyV')
    lab('L_endhelp')
    c('helper: leave the maximum for the streaming wave, then become a finisher')
    redmax(10)
    e('s_lshl_b32 s60, s64, 2'); e(f'v_add_u32 v8, s60, v40')
    e('s_mov_b64 exec, 1'); e('ds_write_b32 v8, v10 offset:48'); e('ds_add_u32 v40, v41 offset:4'); e('s_mov_b64 exec, -1')
    e('s_mov_b32 s98, 1')
    e('s_branch L_svc')
    lab('L_ret_qb')
    pubq('', withid=False)
    e(f'v_and_b32 v8, 31, v0'); e(f's_mov_b32 s60, {8*STRIDE}'); e('v_mul_lo_u32 v13, v8, s60')
    e(f's_mul_i32 s75, s30, {STRIDE}'); e(f's_add_u32 s75, s75, {IDO+BASE}')
    e('v_lshrrev_b32 v15, 5, v0'); e('v_lshl_add_u32 v11, v15, 8, v11')
    e(f's_mov_b32 s60, {64*STRIDE}'); e('v_mul_lo_u32 v10, v15, s60'); e('v_add_u32 v10, v10, v12')
    waittiles('L_waitq', 8 * (NPK - tQ) - 6)
    e(f's_mov_b32 s62, {SPIN}')
    e('s_branch L_qg1')
    lab('L_qg')
    e(f's_cmp_eq_u32 s62, {SPIN-3}'); e('s_cbranch_scc0 L_qg2')
    pubq('sc1')
    lab('L_qg2')
    e('s_sleep 32')
    lab('L_qg1')
    e(f's_mul_i32 s60, s30, {STRIDE}'); e('s_lshl_b32 s61, s53, 7'); e('s_add_u32 s60, s60, s61'); e(f's_add_u32 s60, s60, {QBO+BASE}')
    for a in range(2):
        for p in range(8):
            n = a * 8 + p
            e(f'buffer_load_dwordx4 v[{64+4*n}:{64+4*n+3}], v10, s[{SWS}:{SWS+3}], s60 offen sc1')
            if p < 7: e(f's_add_u32 s60, s60, {8*STRIDE}')
        if a == 0: e(f's_add_u32 s60, s60, {(128-56)*STRIDE}')
    e(f'buffer_load_dwordx4 v[44:47], v13, s[{SWS}:{SWS+3}], s75 offen sc1')
    e('s_sub_u32 s62, s62, 1'); e('s_cbranch_scc1 L_end')
    e('s_waitcnt vmcnt(0)')
    untag(64, 64, 8)
    e('v_xor_b32 v46, s94, v46'); e('v_xor_b32 v47, s95, v47'); e('v_or_b32 v46, v46, v47')
    e('v_and_or_b32 v8, v8, v60, v46'); e('v_cmp_ne_u32 vcc, 0, v8'); e('s_cbranch_vccnz L_qg')
    c('flag value 2: all 32 workgroups of the group report this die; 1: they do not, write through to memory')
    e('v_cmp_ne_u32 vcc, s67, v44'); e('s_mov_b32 s67, 2')
    if local: e('s_cbranch_vccz L_qgdone')
    e('s_mov_b32 s67, 1')
    pubq('sc1')
    lab('L_qgdone')
    for a in range(2):
        for p in range(1, 8):
            for r in range(4): e(f'v_add_f32 v{64+32*a+r}, v{64+32*a+r}, v{64+32*a+4*p+r}')
        for r in range(4):
            e(f'v_cvt_pk_bf16_f32 v{64+32*a+r}, v{64+32*a+r}, v{64+32*a+r}')
        for r in range(4):
            e(f'ds_write_b16 v11, v{64+32*a+r} offset:{L_QB + 512*a + 16*r}')
    e('v_mov_b32 v8, s67')
    e('ds_write_b32 v59, v8')
    e('s_endpgm')
    lab('L_finisher')
    O1 = 128; O2 = 144; M1 = 44; M2 = 160; AC = 48
    c('wo slice: rows 128h + 4b + g + 8t, columns 128*(j&3)..')
    e('v_and_b32 v4, 0xf0, v14'); e('v_bfe_u32 v7, v0, 3, 1'); e('v_lshl_add_u32 v5, v2, 10, v4')
    e('s_lshl_b32 s69, s52, 17'); e('s_lshl_b32 s62, s53, 12'); e('s_add_u32 s69, s69, s62')
    e('s_and_b32 s62, s31, 3'); e('s_lshl_b32 s62, s62, 8'); e('s_add_u32 s69, s69, s62')
    e('s_cmp_eq_u32 s64, 0'); e(f's_cselect_b32 s{SW}, s12, s22'); e(f's_cselect_b32 s{SW+1}, s13, s23')
    e(f's_mov_b32 s{SW+2}, {1<<22}'); e(f's_mov_b32 s{SW+3}, 0x20000')
    c('s74 record base, s84..87 o offsets, s76 own y, s80 y gather, s77 output offset, s78 record stride')
    e(f's_lshl_b32 s76, s64, 10'); e('s_mov_b32 s77, s76'); e(f's_add_u32 s76, s76, {YA}')
    e('s_cmp_eq_u32 s64, 0'); e('s_cbranch_scc0 L_parB')
    e('s_and_b32 s60, s2, 0xc7'); e(f's_mul_i32 s74, s60, {STRIDE}'); e(f's_add_u32 s74, s74, {BASE}'); e('s_add_u32 s75, s74, 128'); e(f's_mov_b32 s78, {RA}')
    e('s_branch L_par')
    lab('L_parB')
    e(f's_mul_i32 s74, s30, {STRIDE}'); e(f's_add_u32 s74, s74, {OB+BASE}'); e('s_lshr_b32 s60, s31, 3')
    e('s_lshl_b32 s61, s60, 9'); e('s_add_u32 s75, s74, s61'); e('s_add_u32 s75, s75, 128')
    e('s_lshl_b32 s61, s60, 5'); e('s_add_u32 s74, s74, s61'); e(f's_mov_b32 s78, {64*STRIDE}')
    lab('L_par')
    e('s_lshl_b32 s60, s53, 8'); e('s_add_u32 s84, s75, s60')
    e('s_add_u32 s85, s84, s78'); e(f's_add_u32 s86, s84, {32*STRIDE}'); e('s_add_u32 s87, s86, s78')
    for k in range(4): e(f's_add_u32 s{88+k}, s{84+k}, {128*STRIDE}')
    e(f's_add_u32 s92, s74, {128*STRIDE}')
    e(f's_mov_b32 s60, {8*STRIDE}')
    e('v_mul_lo_u32 v15, v2, s60'); e('v_add_u32 v15, v15, v4')
    e('v_and_b32 v8, 3, v0'); e('v_xor_b32 v8, v8, v2'); e('v_lshl_add_u32 v8, v7, 2, v8'); e('v_mul_lo_u32 v13, v8, s60')
    e('v_bfe_u32 v8, v0, 2, 1'); e('v_mul_lo_u32 v8, v8, s78'); e('v_add_u32 v13, v13, v8')
    lgy = NY.bit_length() - 1
    NC = 256 // NY
    e(f'v_lshrrev_b32 v8, {lgy}, v0'); e('v_and_b32 v9, 7, v8'); e('v_lshrrev_b32 v8, 3, v8'); e('v_lshl_add_u32 v8, v8, 5, v9')
    e(f's_mov_b32 s60, {STRIDE}'); e('v_mul_lo_u32 v12, v8, s60')
    e(f'v_and_b32 v10, {NY-1}, v0'); e('v_lshl_add_u32 v12, v10, 4, v12')
    c('LDS scratch addresses: v57 write, v58 read')
    e('s_lshl_b32 s60, s64, 8'); e(f's_add_u32 s60, s60, {L_X}')
    e('v_lshrrev_b32 v8, 1, v2'); e('v_lshlrev_b32 v8, 7, v8'); e('v_and_b32 v9, 1, v2'); e('v_lshl_add_u32 v8, v9, 2, v8')
    e('v_and_b32 v9, 3, v0'); e('v_lshl_add_u32 v8, v9, 5, v8'); e('v_bfe_u32 v9, v0, 2, 2'); e('v_lshlrev_b32 v9, 3, v9')
    e('v_add3_u32 v57, v8, v9, s60')
    e('v_lshlrev_b32 v8, 7, v7'); e('v_lshl_add_u32 v8, v2, 5, v8'); e('v_add_u32 v58, s60, v8')
    c('s81 = 0 when this workgroup reduces outputs of its branch')
    e(f's_lshr_b32 s81, s2, {8-lgy}')
    e(f's_mul_i32 s60, s64, {NY//2}'); e('s_xor_b32 s81, s81, s60')
    e('s_and_b32 s61, s2, 3'); e(f's_mul_i32 s80, s61, {8*STRIDE}'); e('s_add_u32 s80, s80, s76'); e(f's_add_u32 s80, s80, {BASE}')
    e(f's_and_b32 s63, s2, {NC-1}'); e('s_lshr_b32 s63, s63, 2'); e(f's_lshl_b32 s63, s63, {lgy}')
    e('s_lshl_b32 s60, s63, 4'); e('s_add_u32 s80, s80, s60')
    e('s_lshl_b32 s61, s61, 8'); e('s_add_u32 s77, s77, s61')
    e('s_lshr_b32 s61, s63, 4'); e('s_lshl_b32 s61, s61, 6'); e('s_add_u32 s77, s77, s61')
    e('s_bfe_u32 s61, s63, 0x10003'); e('s_lshl_b32 s61, s61, 11'); e('s_add_u32 s77, s77, s61')
    e('s_and_b32 s61, s63, 7'); e('s_lshl_b32 s61, s61, 1'); e('s_add_u32 s77, s77, s61')
    e('v_and_b32 v8, 1, v2'); e('v_lshrrev_b32 v9, 1, v2'); e('v_lshl_add_u32 v8, v8, 1, v9'); e('v_lshlrev_b32 v11, 4, v8')
    e('v_lshl_add_u32 v11, v10, 1, v11')
    e('s_add_u32 s76, s76, s68')
    e(f'v_mov_b32 v{M2}, 0x{f32(-3.0e38):08x}')
    for r in range(4): e(f'v_mov_b32 v{DD+r}, 0')
    srd(SX, 24, 4096)
    if outpre:
        e('s_cmp_lg_u32 s81, 0'); e('s_cbranch_scc1 L_noop')
        e(f'buffer_load_ushort v63, v11, s[{SX}:{SX+3}], s77 offen'); e('s_waitcnt vmcnt(0)')
        lab('L_noop')
    e('s_cmp_eq_u32 s64, 0'); e('s_cbranch_scc1 L_waitA')
    c('branch B: merge the states of the two streaming waves and publish the record')
    waitlds('L_waitB', 8, 2)
    BO = 128
    e('v_lshlrev_b32 v10, 3, v0')
    e('ds_read_b32 v53, v59')
    e(f'ds_read_b128 v[{BO}:{BO+3}], v14'); e(f'ds_read_b128 v[{BO+4}:{BO+7}], v14 offset:1024'); e('ds_read_b64 v[44:45], v10 offset:2048')
    e(f'ds_read_b128 v[{BO+8}:{BO+11}], v14 offset:2560'); e(f'ds_read_b128 v[{BO+12}:{BO+15}], v14 offset:3584'); e('ds_read_b64 v[46:47], v10 offset:4608')
    e('s_waitcnt lgkmcnt(0)')
    e('v_readfirstlane_b32 s67, v53')
    e('v_max_f32 v48, v44, v46'); e('v_sub_f32 v8, v44, v48'); e('v_sub_f32 v9, v46, v48'); e('v_exp_f32 v8, v8'); e('v_exp_f32 v9, v9'); e('s_nop 0')
    e('v_mul_f32 v49, v45, v8'); e('v_fmac_f32 v49, v47, v9')
    e('v_mov_b32 v50, v49'); e('s_nop 1'); e('v_permlane32_swap_b32 v49, v50'); e('v_add_f32 v49, v49, v50')
    e('v_mov_b32 v50, v49'); e('s_nop 1'); e('v_permlane16_swap_b32 v49, v50'); e('v_add_f32 v49, v49, v50')
    e('v_mov_b32 v50, s94'); e('v_mov_b32 v51, s95')
    for r in range(8):
        e(f'v_mul_f32 v{BO+r}, v{BO+r}, v8'); e(f'v_fmac_f32 v{BO+r}, v{BO+8+r}, v9')
    puttag(BO, 8, 60)
    e('v_and_b32 v8, 3, v0'); e('v_lshl_add_u32 v8, v2, 2, v8'); e('v_lshlrev_b32 v8, 4, v8'); e('v_bfe_u32 v9, v0, 2, 2'); e('v_lshl_add_u32 v52, v9, 9, v8')
    if tPub < 31: waittiles('L_waitpub', 8 * (NIT - tPub) - 6)
    e(f's_add_u32 s60, s68, {OB}')
    def pubB(p):
        e(f'buffer_store_dwordx4 v[{BO}:{BO+3}], v52, s[{SWS}:{SWS+3}], s60 offen offset:128 {p}')
        e(f'buffer_store_dwordx4 v[{BO+4}:{BO+7}], v52, s[{SWS}:{SWS+3}], s60 offen offset:384 {p}')
        e('s_mov_b64 exec, 0x5555')
        e(f'buffer_store_dwordx4 v[48:51], v10, s[{SWS}:{SWS+3}], s60 offen {p}')
        e('s_mov_b64 exec, -1')
    e('s_cmp_eq_u32 s67, 2'); e('s_cbranch_scc1 L_pubBfast')
    pubB('sc1')
    e('s_branch L_pubBdone')
    lab('L_pubBfast')
    pubB('')
    lab('L_pubBdone')
    e('s_waitcnt vmcnt(0)')
    waittiles('L_waitg', 8 * (NIT - tG) - 6)
    DP = ['quad_perm:[1,0,3,2]', 'quad_perm:[2,3,0,1]', 'row_half_mirror']
    def gather(label, A, M, so, sm, weights):
        e(f's_mov_b32 s60, {SPIN}')
        lab(label)
        e(f'buffer_load_dwordx4 v[{M}:{M+3}], v13, s[{SWS}:{SWS+3}], s{sm} offen sc1')
        for k in range(4): e(f'buffer_load_dwordx4 v[{A+4*k}:{A+4*k+3}], v15, s[{SWS}:{SWS+3}], s{so+k} offen sc1')
        e('s_sub_u32 s60, s60, 1'); e('s_cbranch_scc1 L_end')
        e('s_waitcnt vmcnt(4)')
        if weights: e(f'v_max_f32 v62, v{M1}, v{M2}')
        e(f'v_xor_b32 v9, s94, v{M+2}'); e(f'v_xor_b32 v10, s95, v{M+3}')
        if weights: e(f'v_max_f32_dpp v62, v62, v62 {DP[0]} row_mask:0xf bank_mask:0xf')
        e('v_or_b32 v9, v9, v10')
        extra = [f'v_max_f32_dpp v62, v62, v62 {DP[1]} row_mask:0xf bank_mask:0xf', f'v_max_f32_dpp v62, v62, v62 {DP[2]} row_mask:0xf bank_mask:0xf',
                 f'v_sub_f32 v63, v{M1}, v62', 'v_exp_f32 v63, v63'] if weights else []
        for k in range(4):
            e(f's_waitcnt vmcnt({3-k})')
            ops = untag_ops(A + 4 * k, 4, 8, first=(k == 0))
            if extra and k < 2:
                ops.insert(1, extra[2 * k]); ops.insert(4, extra[2 * k + 1])
            for o in ops: e(o)
        e('v_and_or_b32 v8, v8, v60, v9')
        e('v_cmp_ne_u32 vcc, 0, v8')
        e(f's_cbranch_vccnz {label}')
    gather('L_g1', O2, M2, 88, 92, False)
    e('s_branch L_fin')
    lab('L_waitA')
    c('pace keeper: a wave that lags behind the mean progress of its group keeps more loads in flight')
    e(f's_lshl_b32 s61, s30, 7'); e(f's_add_u32 s96, s61, {PGO}')
    e('s_lshl_b32 s61, s31, 2'); e('v_mov_b32 v44, s61')
    e('v_and_b32 v45, 31, v0'); e('v_lshlrev_b32 v45, 2, v45')
    e('s_and_b32 s97, s94, 0xffff0000')
    e('v_mov_b32 v50, 0'); e('v_mov_b32 v51, 0')
    e(f's_mov_b32 s60, {SPIN*4}')
    lab('L_ctl')
    e('ds_read_b64 v[8:9], v59 offset:24'); e('s_waitcnt lgkmcnt(0)')
    e('v_add_u32 v46, v8, v9'); e('v_or_b32 v47, s97, v46')
    e('v_readfirstlane_b32 s61, v46')
    e('s_mov_b64 exec, 1'); e(f'buffer_store_dword v47, v44, s[{SWS}:{SWS+3}], s96 offen'); e('s_mov_b64 exec, -1')
    e('s_sub_u32 s60, s60, 1'); e('s_cbranch_scc1 L_end')
    e(f's_cmp_ge_u32 s61, {8*(NIT-ctlend)}'); e('s_cbranch_scc1 L_ctlend')
    e(f'buffer_load_dword v48, v45, s[{SWS}:{SWS+3}], s96 offen sc1')
    e('v_add_u32 v50, v50, v8'); e('v_add_u32 v51, v51, v9')
    e('s_waitcnt vmcnt(0)')
    e('v_xor_b32 v48, s97, v48'); e('v_cmp_lt_u32 vcc, 0xffff, v48')
    for d in (8, 4, 2, 1):
        e('s_nop 1'); e(f'v_add_u32_dpp v48, v48, v48 row_ror:{d} row_mask:0xf bank_mask:0xf')
    e('v_mov_b32 v49, v48'); e('s_nop 1'); e('v_permlane16_swap_b32 v48, v49'); e('v_add_u32 v48, v48, v49')
    e('v_lshlrev_b32 v50, 5, v50'); e('v_lshlrev_b32 v51, 5, v51')
    e('v_sub_u32 v50, v48, v50'); e('v_sub_u32 v51, v48, v51')
    e('s_cmp_eq_u64 vcc, 0'); e(f's_cselect_b32 s62, {thU}, 0x7fffffff'); e(f's_max_i32 s63, s62, {thF}')
    for r in (50, 51):
        e(f'v_cmp_lt_i32 vcc, s62, v{r}'); e('s_nop 1'); e(f'v_cndmask_b32 v{r+2}, 0, 15, vcc')
        e(f'v_cmp_lt_i32 vcc, s63, v{r}'); e('s_nop 1'); e(f'v_cndmask_b32 v{r+2}, v{r+2}, 31, vcc')
    e('ds_write_b64 v59, v[52:53] offset:32')
    e('v_mov_b32 v50, v8'); e('v_mov_b32 v51, v9')
    e('s_branch L_ctl')
    lab('L_ctlend')
    c('the wo slice follows the last V loads')
    waittiles('L_waitwl', 8 * NIT - tWL, sl=1)
    e('s_mov_b32 s60, s69')
    wload(DwA)
    waittiles('L_waitown', 8 * NIT + 2, sl=0)
    lab('L_fin')
    stamp(5)
    gather('L_g0', O1, M1, 84, 74, True)
    stamp(6)
    if DIAG == 4: e('v_writelane_b32 v1, s60, 14')
    c('v62 = maximum of the head, v63 = weight of the own record')
    for b in range(2):
        for k in range(4): e(f'v_mul_f32_dpp v{AC+4*b+k}, v63, v{O1+8*b+k} row_newbcast:{8*b} row_mask:0xf bank_mask:0xf')
    for b in range(2):
        for k in range(4): e(f'v_fmac_f32_dpp v{AC+4*b+k}, v63, v{O1+8*b+4+k} row_newbcast:{8*b+4} row_mask:0xf bank_mask:0xf')
    e(f'v_mul_f32 v61, v{M1+1}, v63')
    e('s_cmp_eq_u32 s64, 0'); e('s_cbranch_scc1 L_m3')
    e(f'v_sub_f32 v56, v{M2}, v62'); e('v_exp_f32 v56, v56'); e('s_nop 0'); e(f'v_fmac_f32 v61, v{M2+1}, v56'); e('s_nop 0')
    for n0 in range(2):
        for b in range(2):
            for k in range(4): e(f'v_fmac_f32_dpp v{AC+4*b+k}, v56, v{O2+8*b+4*n0+k} row_newbcast:{8*b+4*n0} row_mask:0xf bank_mask:0xf')
    lab('L_m3')
    for k in range(4): e(f'v_permlane32_swap_b32 v{AC+k}, v{AC+4+k}')
    for k in range(4): e(f'v_add_f32 v{AC+k}, v{AC+k}, v{AC+4+k}')
    e(f'v_add_f32_dpp v61, v61, v61 {DP[0]} row_mask:0xf bank_mask:0xf')
    e(f'v_permlane16_swap_b32 v{AC}, v{AC+2}'); e(f'v_permlane16_swap_b32 v{AC+1}, v{AC+3}')
    e(f'v_add_f32 v{AC}, v{AC}, v{AC+2}'); e(f'v_add_f32 v{AC+1}, v{AC+1}, v{AC+3}')
    e(f'v_cvt_pk_bf16_f32 v8, v{AC}, v{AC+1}')
    e('ds_write_b32 v57, v8')
    e(f'ds_read_b128 v[{XP}:{XP+3}], v58'); e(f'ds_read_b128 v[{XP+4}:{XP+7}], v58 offset:16')
    e(f'v_add_f32_dpp v61, v61, v61 {DP[1]} row_mask:0xf bank_mask:0xf'); e('s_nop 1')
    e(f'v_add_f32_dpp v61, v61, v61 {DP[2]} row_mask:0xf bank_mask:0xf')
    e('v_rcp_f32 v61, v61')
    e('s_waitcnt lgkmcnt(0)')
    e('s_cbranch_scc1 L_projmm')
    waittiles('L_waityb', 8 * NIT - tYB, sl=1)
    e('s_mov_b32 s60, s69')
    wload(DwB)
    if not mmw: e('s_waitcnt vmcnt(0)')
    e('s_branch L_projmm')
    lab('L_ret_fin')
    stamp(7)
    e('s_cmp_eq_u32 s64, 0'); e('s_cbranch_scc0 L_yw1')
    e('v_mov_b32 v8, 1'); e('ds_write_b32 v59, v8 offset:20')
    e('s_cmp_lg_u32 s81, 0'); e('s_cbranch_scc1 L_done')
    e('s_branch L_yw2')
    lab('L_yw1')
    e('s_cmp_lg_u32 s81, 0'); e('s_cbranch_scc1 L_done')
    c('branch B polls only after branch A of this workgroup has published')
    waitlds('L_yw', 20, 1, sl=1)
    lab('L_yw2')
    assert NS * NY * 4 <= 96 and NY >= 2
    def yissue(s):
        for n in range(NY):
            if n == 0: so = 's80'
            else:
                e(f's_add_u32 s61, s80, {n*(256//NY)*STRIDE}'); so = 's61'
            r = WT + 4 * (s * NY + n)
            e(f'buffer_load_dwordx4 v[{r}:{r+3}], v12, s[{SWS}:{SWS+3}], {so} offen sc1')
    c('two staggered polls of the y records in flight')
    for s in range(NS):
        if s: e(f's_sleep {ysp}')
        yissue(s)
    lab('L_y')
    for s in range(NS):
        for n in range(NY):
            r = WT + 4 * (s * NY + n)
            e(f's_waitcnt vmcnt({(NS-1)*NY + NY-1-n})')
            untag(r, 4, 8, first=(n == 0))
            if n == 1:
                for k in range(4): e(f'v_add_f32 v{AC+k}, v{r-4+k}, v{r+k}')
            elif n > 1:
                for k in range(4): e(f'v_add_f32 v{AC+k}, v{AC+k}, v{r+k}')
        e('v_and_b32 v8, 0xff, v8'); e('v_cmp_ne_u32 vcc, 0, v8'); e('s_cbranch_vccz L_yok')
        yissue(s)
    e('s_sub_u32 s60, s60, 1'); e('s_cbranch_scc0 L_y')
    e('s_endpgm')
    lab('L_yok')
    stamp(8)
    e(f'v_permlane32_swap_b32 v{AC}, v{AC+1}'); e(f'v_permlane32_swap_b32 v{AC+2}, v{AC+3}')
    e(f'v_add_f32 v{AC}, v{AC}, v{AC+1}'); e(f'v_add_f32 v{AC+2}, v{AC+2}, v{AC+3}'); e('s_nop 1')
    e(f'v_permlane16_swap_b32 v{AC}, v{AC+2}'); e(f'v_add_f32 v8, v{AC}, v{AC+2}')
    for d in (8, 4, 2, 1):
        if d >= NY:
            e('s_nop 1'); e(f'v_add_f32_dpp v8, v8, v8 row_ror:{d} row_mask:0xf bank_mask:0xf')
    e('v_cvt_pk_bf16_f32 v8, v8, v8')
    m = ((1 << NY) - 1) * 0x00010001
    e(f's_mov_b32 exec_lo, 0x{m:08x}'); e(f's_mov_b32 exec_hi, 0x{m:08x}')
    e(f'buffer_store_short v8, v11, s[{SX}:{SX+3}], s77 offen')
    c('every workgroup has read the tag word by now: leave the tag of this launch behind')
    e('s_or_b32 s60, s2, s64'); e('s_cbranch_scc1 L_done')
    if fulln:
        e('s_mov_b64 exec, 0xffffffff'); e('v_mov_b32 v9, s94'); e('v_lshlrev_b32 v10, 2, v0')
    else:
        e('s_mov_b64 exec, 1'); e('v_mov_b32 v9, s94'); e('v_mov_b32 v10, 0')
    e(f'buffer_store_dword v9, v10, s[{SWS}:{SWS+3}], 0 offen')
    lab('L_done')
    if DIAG:
        e('s_mov_b64 exec, -1')
        e('ds_read_b64 v[8:9], v59 offset:56'); e('s_waitcnt lgkmcnt(0)'); e('v_readfirstlane_b32 s60, v8'); e('v_readfirstlane_b32 s61, v9'); e('s_nop 3')
        e('v_writelane_b32 v1, s60, 12'); e('v_writelane_b32 v1, s61, 13'); e('s_getreg_b32 s60, hwreg(HW_REG_XCC_ID, 0, 3)'); e('v_writelane_b32 v1, s60, 15')
        e('s_memrealtime s[70:71]'); e('s_waitcnt lgkmcnt(0)'); e('v_writelane_b32 v1, s70, 9'); e('v_writelane_b32 v1, s72, 0')
        e('s_add_u32 s48, s28, 0x4000000'); e('s_addc_u32 s49, s29, 0'); e('s_mov_b32 s50, 0x100000'); e('s_mov_b32 s51, 0x20000')
        e('s_lshl_b32 s60, s2, 4'); e('s_add_u32 s60, s60, s3'); e('s_lshl_b32 s60, s60, 7')
        e('v_lshlrev_b32 v2, 2, v0')
        e('s_mov_b64 exec, 0xffffffff')
        e(f'buffer_store_dword v1, v2, s[{SWS}:{SWS+3}], s60 offen')
    lab('L_end')
    e('s_endpgm')
    L.append('.section .rodata,"a"'); L.append('.p2align 6'); L.append(f'.amdhsa_kernel {NAME}')
    L.append('  .amdhsa_next_free_vgpr 168'); L.append('  .amdhsa_next_free_sgpr 99'); L.append('  .amdhsa_accum_offset 168')
    L.append('  .amdhsa_group_segment_fixed_size 0'); L.append('  .amdhsa_kernarg_size 104'); L.append('  .amdhsa_user_sgpr_count 2')
    L.append('  .amdhsa_user_sgpr_kernarg_segment_ptr 1'); L.append('  .amdhsa_system_sgpr_workgroup_id_x 1'); L.append('.end_amdhsa_kernel')
    return '\n'.join(L) + '\n'

if __name__ == '__main__':
    kw = {}
    for a in sys.argv[2:]:
        k, v = a.split('=')
        kw[k] = int(v, 0)
    open(sys.argv[1], 'w').write(gen(**kw))
```

```python
import sys, struct, os
NAME = 'concat_heads__mha_block_cached__gqa_block_cached__decode_kernel'
def f32(x): return struct.unpack('<I', struct.pack('<f', x))[0]
_ref = 'concat_heads__mha_block_cached__gqa_block_cached__decode.s.ref'
HEADER = open(_ref).read().split('; Override launch')[0] if os.path.exists(_ref) else ''

LAY_A = ((13, 15), 12, (16, 21), [0, 0, 48, 40, 32, 38, 34, 18])
LAY_B = ((13, 16), 12, (15, 21, 19, 20), [0, 0, 8, 8, 14, 2, 2, 6])

DOC = r'''
; ---------------------------------------------------------------------------------------------
; Design
; ---------------------------------------------------------------------------------------------'''

def gen(DIAG=0, D=9, mE=0x33, thU=36, thF=144, halfF=0, freeT=0, hold=0, xc=1, xdiv=8, xsm=1, xnull=0, xclamp=124, xsh=0, c1=60, st1=0, st2=0, fsh=8, xend=6, mO=0, xkeep=0, thL=None, DwH=16, TAB=0, bar2=0, pipeK=0, loK=0, loV=0, burstV=0, grpK=1, grpV=1, DK=0, DV=0, ctlend=2, nfree=1, Dr=3, Dp=5, q0=3, qslp=3, KF=6, tQ=14, tPub=31, tG=28,
        tWL=6, tYB=4, DwA=9, DwB=9, slp=4, NY=8, NS=2, ysp=7, fulln=1, outpre=0, reA=0, local=1, mmw=0, pre0=10, fastT=1, layA=None, layB=None):
    LA = layA or LAY_A; LB = layB or LAY_B
    D2 = D + 1
    NW = 6
    BASE = 128
    RA = 640; OB = 2 * RA; YA = OB + 128 + 2048; YB = YA + 1024; QBO = YB + 1024; QAO = QBO + 1024; IDO = QAO + 1024; STRIDE = IDO + 128
    PGO = BASE + 256 * STRIDE; XGO = PGO + 8 * 128; WSBYTES = XGO + 8 * 256
    L_QA = 8192; L_QB = L_QA + 256; L_FLAG = L_QB + 1024; L_X = L_FLAG + 64
    L_SA = 10240; L_SB = L_SA + 16384; LDS = L_SB + 16384 + 1024
    NP_A = 32; NP_B = 8; NPK = NP_A - 1; NIT = NPK + NP_A + 2 * NP_B
    SPIN = 1 << 18
    WQA, WFA, WFB, WQB = 2, 3, 4, 5
    L = []
    def e(s): L.append('    ' + s)
    def lab(s): L.append(s + ':')
    def c(s): L.append('    ; ' + s)
    L.append(HEADER.rstrip('\n'))
    L.append(f'; @launch grid=(256,1,1) block=({NW*64},1,1) lds={LDS}')
    L.append(DOC.strip('\n'))
    L.append('.amdgcn_target "amdgcn-amd-amdhsa--gfx950"')
    L.append('.text'); L.append(f'.globl {NAME}')
    L.append('.p2align 12'); L.append(f'.fill {(4096 - 0x300) // 4}, 4, 0xbf810000')
    L.append('.p2align 8'); L.append(f'.type {NAME},@function')
    lab(NAME)
    def stamp(idx):
        if DIAG != 4: return
        e('s_memrealtime s[70:71]'); e('s_waitcnt lgkmcnt(0)'); e(f'v_writelane_b32 v1, s70, {idx}')
    def srd(d, lo, size, off=None):
        if off is None:
            e(f's_mov_b32 s{d}, s{lo}'); e(f's_mov_b32 s{d+1}, s{lo+1}')
        else:
            e(f's_add_u32 s{d}, s{lo}, {off}'); e(f's_addc_u32 s{d+1}, s{lo+1}, 0')
        e(f's_mov_b32 s{d+2}, {size}'); e(f's_mov_b32 s{d+3}, 0x20000')
    def basesel():
        e('s_mov_b32 s62, 0xaaaaaaaa'); e('s_mov_b32 s63, 0xaaaaaaaa')
        e('v_mov_b32 v8, 0x0c0c0100'); e('v_mov_b32 v9, 0x01000c0c')
        e('v_cndmask_b32 v60, v8, v9, s[62:63]')
        e('v_mov_b32 v8, 0x0c0c0302'); e('v_mov_b32 v9, 0x03020c0c')
        e('v_cndmask_b32 v61, v8, v9, s[62:63]')
        e('v_mov_b32 v62, 0x0c0c0c0c')
    TG = 36
    def tags():
        e('s_add_u32 s94, s93, 0x01010101'); e('s_not_b32 s95, s94')
        e(f's_and_b32 s{TG}, s94, 0xff'); e(f's_bfe_u32 s{TG+1}, s94, 0x80008'); e(f's_bfe_u32 s{TG+2}, s94, 0x80010'); e(f's_lshr_b32 s{TG+3}, s94, 24')
    def puttag(r, n, vm, src=None):
        for k in range(n): e(f'v_bfi_b32 v{r+k}, v{vm}, s{TG+(k&3)}, v{(r if src is None else src)+k}')
    def untag_ops(r, n, acc, first=True):
        ops = [f'v_xor_b32 v{r+k}, s{TG+(k&3)}, v{r+k}' for k in range(n)]
        k = 0
        if first:
            ops.append(f'v_or3_b32 v{acc}, v{r}, v{r+1}, v{r+2}'); k = 3
        while k + 1 < n:
            ops.append(f'v_or3_b32 v{acc}, v{acc}, v{r+k}, v{r+k+1}'); k += 2
        if k < n: ops.append(f'v_or_b32 v{acc}, v{acc}, v{r+k}')
        return ops
    def untag(*a, **k):
        for o in untag_ops(*a, **k): e(o)
    def waitlds(label, off, target, sl=None):
        e(f's_mov_b32 s60, {SPIN*4}')
        lab(label)
        e(f's_sleep {slp if sl is None else sl}')
        e(f'ds_read_b32 v8, v59 offset:{off}'); e('s_waitcnt lgkmcnt(0)'); e('v_readfirstlane_b32 s61, v8')
        e('s_sub_u32 s60, s60, 1'); e('s_cbranch_scc1 L_end')
        e(f's_cmp_lt_u32 s61, {target}'); e(f's_cbranch_scc1 {label}')
    def waittiles(label, tiles, sl=None):
        e(f's_mov_b32 s60, {SPIN*4}')
        lab(label)
        e(f's_sleep {slp if sl is None else sl}')
        e(f'ds_read_b64 v[8:9], v59 offset:24'); e('s_waitcnt lgkmcnt(0)'); e('v_add_u32 v8, v8, v9')
        e('s_sub_u32 s60, s60, 1'); e('v_readfirstlane_b32 s61, v8'); e('s_cbranch_scc1 L_end')
        e(f's_cmp_lt_u32 s61, {tiles}'); e(f's_cbranch_scc1 {label}')
    SL, SW, SX, SWS = 32, 40, 44, 48
    RING = 64; WT = 64; XP = 16; SEL = 24; RR = 32; DD = 40; QQ = 44; QD = 48; SAVE = 128; PF = 144
    nwl = [0]
    def wload(dw, cond=False):
        for t in range(16):
            if t > dw and cond:
                nwl[0] += 1
                e(f's_cbranch_vccnz L_wl{nwl[0]}'); e(f's_waitcnt vmcnt({dw})'); lab(f'L_wl{nwl[0]}')
                if t > DwH: e(f's_waitcnt vmcnt({DwH})')
            elif t > dw: e(f's_waitcnt vmcnt({dw})')
            e(f'buffer_load_dwordx4 v[{WT+4*t}:{WT+4*t+3}], v5, s[{SW}:{SW+3}], s60 offen nt')
            if t < 15: e('s_addk_i32 s60, 0x2000')
    def xload():
        e(f'buffer_load_dwordx4 v[{XP}:{XP+3}], v6, s[{SX}:{SX+3}], s61 offen')
        e(f'buffer_load_dwordx4 v[{XP+4}:{XP+7}], v6, s[{SX}:{SX+3}], s61 offen offset:16')
    e('s_cmp_ge_u32 s2, 256'); e('s_cbranch_scc1 L_end')
    e('s_load_dwordx16 s[4:19], s[0:1], 0')
    e('s_load_dwordx8 s[20:27], s[0:1], 64')
    e('s_load_dwordx2 s[28:29], s[0:1], 96')
    if DIAG: e('s_memrealtime s[72:73]')
    e('v_lshrrev_b32 v1, 6, v0')
    e('v_and_b32 v0, 63, v0')
    e('v_readfirstlane_b32 s3, v1')
    e('s_and_b32 s30, s2, 7')
    e('s_lshr_b32 s31, s2, 3')
    e('s_lshr_b32 s60, s31, 3')
    e('s_lshl2_add_u32 s52, s30, s60')
    e('v_lshrrev_b32 v2, 4, v0')
    e('v_lshlrev_b32 v14, 4, v0')
    e('s_bfe_u32 s53, s31, 0x10002')
    if DIAG: e('v_mov_b32 v1, 0')
    e(f's_bitcmp1_b32 {(1 << WQA) | (1 << WQB)}, s3')
    e('s_cbranch_scc0 L_str_pro')
    c('q waves: rows 64*(j&7).. of wq, columns of head h')
    e('s_and_b32 s66, s31, 7')
    e('s_lshl_b32 s60, s66, 19'); e('s_lshl_b32 s62, s52, 8'); e('s_add_u32 s60, s60, s62')
    e('s_lshl_b32 s61, s66, 7')
    e('v_and_b32 v4, 0xf0, v14')
    e('v_bfe_u32 v7, v0, 3, 1')
    e('v_lshlrev_b32 v6, 5, v2')
    e('v_lshl_add_u32 v6, v7, 10, v6')
    e('v_lshl_add_u32 v5, v2, 17, v4')
    e(f's_mov_b32 s{SW+2}, {1<<22}'); e(f's_mov_b32 s{SW+3}, 0x20000'); e(f's_movk_i32 s{SX+2}, 0x800'); e(f's_mov_b32 s{SX+3}, 0x20000')
    e(f's_cmp_eq_u32 s3, {WQA}')
    e('s_waitcnt lgkmcnt(0)')
    e(f's_cselect_b32 s{SW}, s10, s20'); e(f's_cselect_b32 s{SW+1}, s11, s21')
    e(f's_cselect_b32 s{SX}, s4, s14'); e(f's_cselect_b32 s{SX+1}, s5, s15')
    e('s_load_dword s93, s[28:29], 0')
    e('s_cbranch_scc0 L_qb_pro')
    xload(); wload(16)
    c('the loads of this wave go first: everyone else starts behind this barrier')
    e('s_barrier')
    if bar2: e('s_barrier')
    e('s_branch L_qsetup')
    lab('L_str_pro')
    e('s_lshl_b32 s60, s53, 5'); e('s_add_u32 s60, s60, s52')
    e('s_and_b32 s62, s31, 3'); e('s_lshl2_add_u32 s65, s60, s62')
    e('v_and_b32 v10, 3, v0'); e('v_bfe_u32 v9, v0, 2, 2')
    e('v_lshl_add_u32 v10, v2, 2, v10')
    e('v_lshlrev_b32 v10, 4, v10')
    e('v_lshl_add_u32 v42, v9, 8, v10')
    e(f's_cmp_ge_u32 s3, {WFA}'); e('s_cselect_b32 s80, 1, 0')
    e('s_xor_b32 s64, s3, s80'); e('s_and_b32 s64, s64, 1')
    def itbits(lay):
        ld, wv, wg, cc = lay
        used = list(ld) + [wv] + list(wg)
        return [b for b in range(12, 22) if b not in used]
    def layout(lay, sSt, sB0):
        ld, wv, wg, cc = lay
        first = True
        for k in range(8):
            if cc[k] == 0: continue
            e(f's_bitcmp1_b32 s65, {k}')
            if first: e(f's_cselect_b32 s60, {cc[k]}, 0'); first = False
            else: e(f's_cselect_b32 s61, {cc[k]}, 0'); e('s_add_u32 s60, s60, s61')
        e(f's_lshl_b32 s{sB0}, s64, {wv}')
        def deposit(dst, src, srcbit, bits, init):
            k = 0
            while k < len(bits):
                n = 1
                while k + n < len(bits) and bits[k + n] == bits[k] + n: n += 1
                e(f's_bfe_u32 s61, s{src}, 0x{(n << 16) | (srcbit + k):x}')
                if init: e(f's_lshl_b32 s{dst}, s61, {bits[k]}'); init = False
                else: e(f's_lshl_b32 s61, s61, {bits[k]}'); e(f's_or_b32 s{dst}, s{dst}, s61')
                k += n
        deposit(sB0, 65, 0, wg, False)
        if any(v & 1 for v in cc): deposit(sB0, 60, 0, [ld[1]], False)
        deposit(sSt, 60, 1, itbits(lay), True)
    def usepass(lay, sSt, sB0):
        ld = lay[0]
        if TAB:
            r = [40, 41, 42, 43, 44, 45] if sSt == 58 else [89, 90, 91, 92, 96, 97]
            for k in range(4): e(f's_mov_b32 s{84+k}, s{r[k]}')
            e(f's_mov_b32 s54, s{r[4]}'); e(f's_mov_b32 s55, s{r[5]}')
            return
        e(f's_mov_b32 s54, s{sSt}'); e(f's_mov_b32 s55, {sum(1 << b for b in itbits(lay))}')
        e(f's_mov_b32 s84, s{sB0}'); e(f's_xor_b32 s85, s84, {1 << ld[0]}'); e(f's_xor_b32 s86, s84, {1 << ld[1]}'); e(f's_xor_b32 s87, s85, {1 << ld[1]}')
    if TAB:
        e('s_lshl_b32 s60, s2, 1'); e('s_add_u32 s60, s60, s64'); e('s_lshl_b32 s60, s60, 6'); e('s_add_u32 s60, s60, 0x2000000')
        e('s_waitcnt lgkmcnt(0)')
        e('s_add_u32 s62, s28, s60'); e('s_addc_u32 s63, s29, 0')
        e('s_load_dwordx8 s[40:47], s[62:63], 0'); e('s_load_dwordx4 s[84:87], s[62:63], 32'); e('s_load_dwordx2 s[96:97], s[62:63], 48')
        e('s_waitcnt lgkmcnt(0)')
        for k in range(4): e(f's_mov_b32 s{89+k}, s{84+k}')
    else:
        layout(LA, 58, 76)
    usepass(LA, 58, 76)
    e('s_sub_u32 s54, s54, s80'); e('s_and_b32 s54, s54, s55')
    e('s_lshr_b32 s60, s65, 2'); e('s_lshl_b32 s60, s60, 22')
    e(f'v_mov_b32 v40, {L_FLAG}'); e('v_mov_b32 v4, 0'); e('v_mov_b32 v5, 0')
    for o in (0, 8, 16, 24, 32): e(f'ds_write_b64 v40, v[4:5] offset:{o}')
    e('s_waitcnt lgkmcnt(0)')
    srd(SL, 6, 1 << 22, 's60')
    e('s_xor_b32 s88, s54, s84')
    e('s_barrier')
    if bar2: e('s_barrier')
    def load(t, j): e(f'buffer_load_dwordx4 v[{RING+16*t+4*j}:{RING+16*t+4*j+3}], v42, s[{SL}:{SL+3}], s88 offen offset:{1024*j} nt')
    def adv(t):
        if t == 3:
            e('s_orn2_b32 s54, s54, s55'); e('s_add_u32 s54, s54, 1'); e('s_and_b32 s54, s54, s55')
        e(f's_xor_b32 s88, s54, s{84 + ((t + 1) & 3)}')
    def ringload(n0, n1):
        for n in range(n0, n1):
            if n > Dr: e(f's_waitcnt vmcnt({Dr})')
            load(n >> 2, n & 3)
            if n & 3 == 3: adv(n >> 2)
    ringload(0, Dr + 1)
    e('s_branch L_stream')
    lab('L_qb_pro')
    srd(SWS, 28, WSBYTES)
    e(f'v_min_u32 v8, {STRIDE//128-pre0-1}, v0'); e('v_lshlrev_b32 v8, 7, v8')
    e(f's_mul_i32 s62, s2, {STRIDE}'); e(f's_add_u32 s62, s62, {BASE+pre0*128}')
    e('s_barrier')
    c('touch the hand-off lines of this workgroup so that later write-backs meet them in the memory-side cache')
    e(f'buffer_load_dword v63, v8, s[{SWS}:{SWS+3}], s62 offen')
    xload(); wload(Dp)
    if bar2: e('s_barrier')
    lab('L_qsetup')
    e('s_mov_b32 s98, 0')
    lab('L_svc')
    c('byte selectors that place one bf16 value at position lane&7 of an MFMA operand')
    e('s_setprio 3')
    basesel()
    e('s_mov_b32 s62, 0x03030303'); e('s_mov_b32 s63, 0x03030303')
    for k in range(4):
        e(f'v_cndmask_b32 v{SEL+2*k}, v62, v60, s[62:63]')
        e(f'v_cndmask_b32 v{SEL+2*k+1}, v62, v61, s[62:63]')
        if k < 3: e('s_lshl_b64 s[62:63], s[62:63], 2')
    e('v_and_b32 v3, 7, v0')
    e(f'v_mov_b32 v59, {L_FLAG}'); e('v_mov_b32 v60, 0xff'); e('v_mov_b32 v61, 1.0')
    srd(SWS, 28, WSBYTES)
    e(f's_mul_i32 s68, s2, {STRIDE}'); e(f's_add_u32 s68, s68, {BASE}')
    e('s_cmp_eq_u32 s98, 1'); e('s_cbranch_scc1 L_finisher')
    for r in range(4): e(f'v_mov_b32 v{DD+r}, 0')
    e(f's_cmp_eq_u32 s3, {WQA}'); e(f's_cselect_b32 s76, 1024, 0'); e('s_add_u32 s76, s76, s68'); e(f's_add_u32 s76, s76, {QBO}')
    c('q gather lane offsets: two producers per load')
    e('v_lshrrev_b32 v8, 5, v0'); e('v_bfe_u32 v9, v0, 3, 2')
    e('v_lshlrev_b32 v12, 8, v9'); e('v_lshl_add_u32 v12, v3, 4, v12')
    e('v_lshlrev_b32 v11, 6, v9'); e('v_lshl_add_u32 v11, v3, 1, v11')
    e(f's_mov_b32 s60, {8*STRIDE}'); e('v_mul_lo_u32 v10, v8, s60'); e('v_add_u32 v10, v10, v12'); e('v_mul_lo_u32 v13, v3, s60')
    e('s_and_b32 s60, s2, 0xc7'); e(f's_mul_i32 s75, s60, {STRIDE}')
    e('s_lshl_b32 s61, s53, 7'); e('s_add_u32 s74, s75, s61'); e(f's_add_u32 s74, s74, {QAO+BASE}'); e(f's_add_u32 s75, s75, {IDO+BASE}')
    for k in range(1, 4): e(f's_add_u32 s{84+k}, s74, {16*k*STRIDE}')
    e('s_getreg_b32 s67, hwreg(HW_REG_XCC_ID, 0, 4)')
    e(f's_add_u32 s77, s68, {IDO}')
    e('s_waitcnt lgkmcnt(0)')
    tags()
    e('v_mov_b32 v48, s67'); e('v_mov_b32 v49, s67'); e('v_mov_b32 v50, s94'); e('v_mov_b32 v51, s95')
    e('s_waitcnt vmcnt(%d)' % (16 if mmw else 0))
    lab('L_projmm')
    c('D[chunk][(b,i)] = v61 * sum_t W_t x delta(XP_t): 64 rows of a weight matrix times two input vectors')
    for t in range(16):
        r = RR + 4 * (t & 1)
        for k in range(4):
            e(f'v_perm_b32 v{r+k}, v{XP+(t>>1)}, v{XP+(t>>1)}, v{SEL+2*k+(t&1)}')
        if t > 0:
            tp = t - 1; rp = RR + 4 * (tp & 1)
            if mmw and tp % mmw == 0: e(f's_waitcnt vmcnt({max(0, 16-tp-mmw)})')
            e(f'v_mfma_f32_16x16x32_bf16 v[{DD}:{DD+3}], v[{WT+4*tp}:{WT+4*tp+3}], v[{rp}:{rp+3}], v[{DD}:{DD+3}]')
    e('s_waitcnt vmcnt(0)')
    e(f'v_mfma_f32_16x16x32_bf16 v[{DD}:{DD+3}], v[{WT+60}:{WT+63}], v[{RR+4}:{RR+7}], v[{DD}:{DD+3}]')
    e(f's_mov_b32 s60, {SPIN}')
    e('s_cmp_eq_u32 s98, 1')
    e('s_nop 5')
    for r in range(4): e(f'v_mul_f32 v{DD+r}, v{DD+r}, v61')
    puttag(DD, 4, 60)
    e('s_cbranch_scc0 L_q0')
    e(f'buffer_store_dwordx4 v[{DD}:{DD+3}], v14, s[{SWS}:{SWS+3}], s76 offen sc1')
    e('s_branch L_ret_fin')
    lab('L_q0')
    e(f's_cmp_eq_u32 s3, {WQA}'); e('s_cbranch_scc0 L_ret_qb')
    c('q of branch A: publish the slice and the die id in the cache of this die first, gather the eight slices')
    def pubq(p, withid=True):
        e(f'buffer_store_dwordx4 v[{DD}:{DD+3}], v14, s[{SWS}:{SWS+3}], s76 offen {p}')
        if withid:
            e('s_mov_b64 exec, 0xff')
            e(f'buffer_store_dwordx4 v[48:51], v14, s[{SWS}:{SWS+3}], s77 offen {p}')
            e('s_mov_b64 exec, -1')
    pubq('')
    lab('L_qa')
    e(f's_sleep {qslp}')
    for k in range(4):
        e(f'buffer_load_dwordx4 v[{64+4*k}:{64+4*k+3}], v10, s[{SWS}:{SWS+3}], s{74 if k == 0 else 84+k} offen sc1')
    for k in range(4):
        e(f's_waitcnt vmcnt({3-k})')
        untag(64 + 4 * k, 4, 8, first=(k == 0))
        if k > 0:
            for r in range(4): e(f'v_add_f32 v{64+r}, v{64+r}, v{64+4*k+r}')
    e('v_and_b32 v8, 0xff, v8'); e('v_cmp_ne_u32 vcc, 0, v8'); e('s_cbranch_vccz L_qaok')
    e('s_sub_u32 s60, s60, 1'); e('s_cbranch_scc1 L_end')
    e(f's_cmp_eq_u32 s60, {SPIN-KF}'); e('s_cbranch_scc0 L_qa')
    c('still incomplete: the group may span dies, write through to memory')
    pubq('sc1')
    e('s_branch L_qa')
    lab('L_qaok')
    e('v_permlane32_swap_b32 v64, v66'); e('v_permlane32_swap_b32 v65, v67')
    e('v_add_f32 v64, v64, v66'); e('v_add_f32 v65, v65, v67')
    e('v_and_b32 v8, 32, v0'); e('v_add_u32 v11, v11, v8')
    e('v_cvt_pk_bf16_f32 v64, v64, v65')
    e('v_mov_b32 v8, 1'); e('v_mov_b32 v9, s93')
    e(f'ds_write_b16 v11, v64 offset:{L_QA}'); e(f'ds_write_b16_d16_hi v11, v64 offset:{L_QA+16}')
    e('ds_write_b32 v59, v9 offset:16'); e('ds_write_b32 v59, v8 offset:12')
    c('unless all eight readers report this die, write the slice through to memory')
    e(f'buffer_load_dwordx4 v[44:47], v13, s[{SWS}:{SWS+3}], s75 offen sc1')
    e('s_waitcnt vmcnt(0)')
    e('v_xor_b32 v46, s94, v46'); e('v_xor_b32 v47, s95, v47'); e('v_xor_b32 v44, s67, v44'); e('v_or3_b32 v46, v46, v47, v44')
    e('v_cmp_ne_u32 vcc, 0, v46')
    if local: e('s_cbranch_vccz L_end')
    pubq('sc1')
    e('s_endpgm')
    L.append('.p2align 12')
    lab('L_stream')
    e('v_mov_b32 v13, v42')
    e('v_lshl_add_u32 v15, v9, 9, v10')
    e(f'v_add_u32 v38, {L_QA}, v10')
    e(f'v_lshl_add_u32 v39, v9, 8, v38'); e(f'v_add_u32 v39, {L_QB-L_QA}, v39')
    e('s_lshl_b32 s60, s64, 13'); e(f's_add_u32 s60, s60, {L_SA}')
    e(f'v_lshl_add_u32 v{SAVE}, v2, 4, s60')
    e(f'v_lshl_add_u32 v8, v2, 2, v9'); e(f's_add_u32 s60, s60, {L_SB-L_SA}')
    e(f'v_lshl_add_u32 v{SAVE+1}, v8, 4, s60')
    e(f'v_mov_b32 v{SAVE+3}, 0xff'); e(f'v_lshlrev_b32 v{SAVE+4}, 3, v0')
    basesel()
    e('s_mov_b32 s62, 0x33333333'); e('s_mov_b32 s63, 0x33333333')
    e('v_cndmask_b32 v34, v62, v60, s[62:63]'); e('v_cndmask_b32 v35, v62, v61, s[62:63]')
    e('v_cndmask_b32 v36, v60, v62, s[62:63]'); e('v_cndmask_b32 v37, v61, v62, s[62:63]')
    e('v_mov_b32 v41, 1')
    e(f's_mov_b32 s59, 0x{f32(128**-0.5*1.4426950408889634):08x}')
    srd(SWS, 28, WSBYTES)
    e(f's_mul_i32 s68, s2, {STRIDE}'); e(f's_mul_i32 s60, s64, {RA}'); e('s_add_u32 s68, s68, s60')
    c('pass 0: K of A')
    e(f's_mov_b32 s56, {NPK}'); e('s_mov_b32 s57, 0'); e('s_mov_b32 s78, 0')
    e('s_lshl_b32 s60, s64, 2')
    e(f's_add_u32 s60, s60, {L_FLAG+24}'); e(f'v_mov_b32 v{SAVE+6}, s60'); e(f'v_mov_b32 v{SAVE+5}, 0')
    e(f's_mul_i32 s60, s80, {NPK*256}'); e(f'v_add_u32 v11, s60, v{SAVE}')
    if not TAB: layout(LB, 77, 79)
    e('s_mov_b32 s66, 64'); e('s_mov_b32 s62, 0x00010001'); e('s_mov_b32 s63, 0x00010001')
    e(f'v_mov_b32 v10, 0x{f32(-3.0e38):08x}')
    ringload(Dr + 1, 16)
    e(f's_mov_b32 s60, {SPIN*4}')
    lab('L_waitqa')
    e('ds_read_b32 v4, v40 offset:12'); e('ds_read_b32 v5, v40 offset:16'); e(f'ds_read_b128 v[{QQ}:{QQ+3}], v38')
    e('s_waitcnt lgkmcnt(0)'); e('v_readfirstlane_b32 s61, v4'); e('v_readfirstlane_b32 s93, v5')
    e('s_sub_u32 s60, s60, 1'); e('s_cbranch_scc1 L_end')
    e('s_cmp_eq_u32 s61, 0'); e('s_cbranch_scc1 L_waitqa')
    tags()
    e('s_cmp_eq_u32 s80, 0'); e('s_cbranch_scc1 L_loopK')
    c('helper: one iteration, nothing to reload (zero-size descriptor)')
    e(f's_mov_b32 s{SL+2}, 0'); e('s_mov_b32 s56, 1'); e('s_mov_b32 s57, 4'); e('s_mov_b32 s69, 0'); e('s_mov_b32 s78, 1'); e('s_mov_b64 vcc, -1')
    e(f'v_mov_b32 v{SAVE+6}, {L_FLAG+40}')
    e('s_branch L_bodyK')
    nthr = [0]
    def thr(lo=0, D=D, skip=False):
        D2 = D + 1
        if skip:
            e('s_waitcnt vmcnt(15)'); return
        nthr[0] += 1; n = nthr[0]
        e(f's_cbranch_vccnz L_thf{n}'); e(f's_cbranch_scc1 L_thd{n}'); e(f's_waitcnt vmcnt({D-lo})')
        lab(f'L_thd{n}'); e(f's_waitcnt vmcnt({D2})'); lab(f'L_thf{n}'); e('s_waitcnt vmcnt(15)')
    def looptop(x):
        lab(f'L_loop{x}')
        c('depth level chosen by wave 3')
        e('s_waitcnt lgkmcnt(0)'); e(f'v_readfirstlane_b32 s69, v{SAVE+5}')
        e(f'ds_read_b32 v{SAVE+5}, v{SAVE+6} offset:8')
        e('s_cmp_le_u32 s56, s78'); e('s_cselect_b64 vcc, -1, 0')
        e('s_bitcmp1_b32 s69, 4'); e('s_cselect_b64 vcc, -1, vcc')
        if freeT:
            e('s_cmp_eq_u32 s56, 2'); e('s_cselect_b64 vcc, -1, vcc')
        e('s_cmp_eq_u32 s56, 1'); e(f's_cbranch_scc1 L_switch{x}')
        lab(f'L_body{x}')
    def count():
        e('s_mov_b64 exec, 1'); e(f'ds_add_u32 v{SAVE+6}, v41'); e('s_mov_b64 exec, -1')
    def redmax(r):
        e(f'v_mov_b32 v9, v{r}'); e('s_nop 1'); e(f'v_permlane32_swap_b32 v{r}, v9'); e(f'v_max_f32 v{r}, v{r}, v9')
        e(f'v_mov_b32 v9, v{r}'); e('s_nop 1'); e(f'v_permlane16_swap_b32 v{r}, v9'); e(f'v_max_f32 v{r}, v{r}, v9')
    c('K loop: scores to LDS (address v11, stride s66, lanes s[62:63]), running maximum v10')
    looptop('K')
    QS = (QD, 152)
    def score(k, Q, S, guard=None):
        for j in range(4):
            if k == 0: e(f'v_mov_b32_dpp v{S+j}, v{Q+4*j} quad_perm:[0,0,0,0] row_mask:0xf bank_mask:0xf')
            else: e(f'v_add_f32_dpp v{S+j}, v{Q+4*j+k}, v{S+j} quad_perm:[{k},{k},{k},{k}] row_mask:0xf bank_mask:0xf')
        if k == 3:
            if guard:
                e('s_cmp_eq_u32 s81, 1'); e('s_mov_b32 s81, 0'); e(f's_cbranch_scc1 {guard}')
            e(f'v_max3_f32 v10, v10, v{S}, v{S+1}'); e(f'v_max3_f32 v10, v10, v{S+2}, v{S+3}')
            e('s_mov_b64 exec, s[62:63]'); e(f'ds_write_b128 v11, v[{S}:{S+3}]'); e('s_mov_b64 exec, -1')
            e('v_add_u32 v11, s66, v11')
            if guard: lab(guard)
    for t in range(4):
        K = RING + 16 * t
        Q = QS[t & 1] if pipeK else QD
        count()
        if halfF and t == halfF:
            e('s_cmp_le_u32 s56, s78'); e('s_cselect_b64 vcc, -1, 0')
        e(f's_bitcmp1_b32 s69, {t}')
        for j in range(4):
            thr((loK >> (4 * t + j)) & 1, DK or D, j % grpK != 0)
            e(f'v_mfma_f32_16x16x32_bf16 v[{Q+4*j}:{Q+4*j+3}], v[{K+4*j}:{K+4*j+3}], v[{QQ}:{QQ+3}], 0')
            load(t, j)
            if pipeK: score(j, QS[(t + 1) & 1], 16 if t % 2 == 0 else 4, 'L_first' if t == 0 else None)
        adv(t)
        if not pipeK:
            if t < 3: e('s_nop 2')
            for k in range(4): score(k, QD, 4 if t % 2 == 0 else 16)
    e('s_sub_u32 s56, s56, 1'); e('s_cmp_lg_u32 s56, 0'); e('s_cbranch_scc1 L_loopK')
    assert not pipeK
    e(f's_mov_b32 s56, {NP_B}')
    e('s_cmp_eq_u32 s57, 1'); e('s_cbranch_scc0 L_endKA')
    c('end of K of B: exact maximum of the scores of this wave')
    redmax(10)
    e('s_mov_b32 s57, 2'); e(f'v_add_u32 v38, s66, v{SAVE+1}')
    lab('L_startV')
    c('V pass: scores of the first tile in v[144:147], further scores at v38 (stride s66), maximum v10')
    e('v_mul_f32 v11, s59, v10'); e('v_sub_f32 v11, 0, v11')
    RS = (26, SAVE + 8)
    def soft(k, R, lg, src=QD):
        if k == 0:
            if lg is not None: e(f's_waitcnt lgkmcnt({lg})')
            for r in range(4): e(f'v_fma_f32 v{4+r}, v{src+r}, s59, v11')
            e(f'ds_read_b128 v[{QD}:{QD+3}], v38'); e('v_add_u32 v38, s66, v38')
        elif k == 1:
            for r in range(4): e(f'v_exp_f32 v{4+r}, v{4+r}')
        elif k == 2:
            e('v_cvt_pk_bf16_f32 v24, v4, v5'); e('v_cvt_pk_bf16_f32 v25, v6, v7')
            e('v_add_f32 v8, v4, v5'); e('v_add_f32 v9, v6, v7')
        if k >= 2:
            for r in (2 * k - 4, 2 * k - 3):
                e(f'v_perm_b32 v{R+2*r}, v{24+(r>>1)}, v{24+(r>>1)}, v{34+(r&1)}')
                e(f'v_perm_b32 v{R+2*r+1}, v{24+(r>>1)}, v{24+(r>>1)}, v{36+(r&1)}')
        if k == 3: e('v_add_f32 v8, v8, v9')
    soft(0, RS[0], None, src=PF); soft(1, RS[0], 0); e('v_mov_b32 v12, 0'); soft(2, RS[0], 0); soft(3, RS[0], 0)
    e('s_waitcnt lgkmcnt(1)')
    for r in range(8): e(f'v_mov_b32 v{16+r}, 0')
    looptop('V')
    for t in range(4):
        V = RING + 16 * t
        R = RS[t & 1]
        if halfF and t == halfF:
            e('s_cmp_le_u32 s56, s78'); e('s_cselect_b64 vcc, -1, 0')
        e(f's_bitcmp1_b32 s69, {t}')
        e('v_add_f32 v12, v12, v8')
        for r in range(4):
            thr((loV >> (4 * t + r)) & 1, DV or D, r % grpV != 0)
            e(f'v_mfma_f32_16x16x16_bf16 v[16:19], v[{V+4*r}:{V+4*r+1}], v[{R+2*r}:{R+2*r+1}], v[16:19]')
            e(f'v_mfma_f32_16x16x16_bf16 v[20:23], v[{V+4*r+2}:{V+4*r+3}], v[{R+2*r}:{R+2*r+1}], v[20:23]')
            load(t, r)
            if not burstV:
                soft(r, RS[(t + 1) & 1], None if t == 0 else 0)
                if r == 0: count()
        if burstV:
            for r in range(4):
                soft(r, RS[(t + 1) & 1], None if t == 0 else 0)
                if r == 1: count()
        adv(t)
    e('s_sub_u32 s56, s56, 1'); e('s_cmp_lg_u32 s56, 0'); e('s_cbranch_scc1 L_loopV')
    e('v_mov_b32 v9, v12'); e('v_mul_f32 v4, s59, v10')
    e('s_cmp_eq_u32 s57, 2'); e('s_cbranch_scc1 L_endVB')
    c('end of V of A: reduce the sum, publish the record')
    e('v_permlane32_swap_b32 v12, v9'); e('v_add_f32 v12, v12, v9')
    e('v_mov_b32 v9, v12')
    puttag(24, 8, SAVE + 3, src=16)
    e('v_permlane16_swap_b32 v12, v9'); e('v_add_f32 v5, v12, v9'); e('v_mov_b32 v6, s94'); e('v_mov_b32 v7, s95')
    if DIAG == 4:
        e('s_memrealtime s[70:71]'); e('s_waitcnt lgkmcnt(0)'); e('v_mov_b32 v8, s70'); e(f'ds_write_b32 v{SAVE+6}, v8 offset:32')
    e('s_cmp_eq_u32 s67, 2'); e('s_cbranch_scc0 L_pubslow')
    def pubA(p):
        e('s_mov_b32 exec_lo, 0x000f000f'); e('s_mov_b32 exec_hi, 0x000f000f')
        e(f'buffer_store_dwordx4 v[24:27], v15, s[{SWS}:{SWS+3}], s68 offen offset:{BASE+128} {p}')
        e(f'buffer_store_dwordx4 v[28:31], v15, s[{SWS}:{SWS+3}], s68 offen offset:{BASE+384} {p}')
        e('s_mov_b64 exec, 0x5555')
        e(f'buffer_store_dwordx4 v[4:7], v{SAVE+4}, s[{SWS}:{SWS+3}], s68 offen offset:{BASE} {p}')
        if p == 'sc1' and reA:
            e('s_cmp_eq_u32 s67, 2'); e('s_cbranch_scc1 L_end')
        e('s_mov_b64 exec, 1'); e(f'ds_add_u32 v{SAVE+6}, v41')
        if p == '' and reA:
            e('s_mov_b64 exec, -1'); e('v_mov_b32 v59, v40')
            waitlds('L_rea', 20, 1, sl=1)
            if reA > 1: e(f's_sleep {reA}')
        else:
            e('s_endpgm')
    pubA('')
    lab('L_pubslow')
    pubA('sc1')
    lab('L_endVB')
    c('end of V of B: hand the state to wave 4 through LDS')
    e(f'v_mov_b32 v{PF+4}, v4'); e(f'v_mov_b32 v{PF+5}, v12')
    e('s_mul_i32 s60, s64, 2560'); e('v_add_u32 v8, s60, v14'); e(f'v_add_u32 v9, s60, v{SAVE+4}')
    e('ds_write_b128 v8, v[16:19]'); e('ds_write_b128 v8, v[20:23] offset:1024'); e(f'ds_write_b64 v9, v[{PF+4}:{PF+5}] offset:2048')
    e('s_mov_b64 exec, 1'); e('ds_add_u32 v40, v41 offset:8'); e('s_mov_b64 exec, -1')
    e(f's_mov_b32 s56, {NP_A}'); e('s_mov_b32 s57, 3'); e('s_mov_b32 s66, 64'); e(f's_mov_b32 s78, {nfree}')
    e(f'v_add_u32 v38, 64, v{SAVE}'); e(f'v_mov_b32 v10, v{SAVE+2}')
    e('s_branch L_startV')
    lab('L_endKA')
    e('s_cmp_eq_u32 s57, 4'); e('s_cbranch_scc1 L_endhelp')
    e(f's_mov_b32 s60, {SPIN*4}')
    c('q of B, its flag and the maximum of the helper were fetched one iteration ago; fetch again if they were not ready')
    e('s_branch L_chkqb')
    def fetchqb():
        e(f'ds_read_b64 v[{PF+4}:{PF+5}], v40'); e(f'ds_read_b32 v{PF+6}, v{SAVE+6} offset:24'); e(f'ds_read_b128 v[{PF}:{PF+3}], v39')
    lab('L_waitqb')
    fetchqb()
    e('s_sub_u32 s60, s60, 1'); e('s_cbranch_scc1 L_end')
    lab('L_chkqb')
    e('s_waitcnt lgkmcnt(0)'); e(f'v_readfirstlane_b32 s67, v{PF+4}'); e(f'v_readfirstlane_b32 s61, v{PF+5}')
    for r in range(4): e(f'v_mov_b32 v{QQ+r}, v{PF+r}')
    e('s_cmp_eq_u32 s67, 0'); e('s_cbranch_scc1 L_waitqb')
    e('s_cmp_lt_u32 s61, 2'); e('s_cbranch_scc1 L_waitqb')
    e(f'v_max_f32 v{SAVE+2}, v10, v{PF+6}')
    e('s_mov_b32 s57, 1')
    e(f'v_mov_b32 v11, v{SAVE+1}'); e('s_movk_i32 s66, 0x100'); e('s_mov_b32 s62, 0x11111111'); e('s_mov_b32 s63, 0x11111111')
    e(f'v_mov_b32 v10, 0x{f32(-3.0e38):08x}')
    e('s_branch L_loopK')
    def switch(ptr, lg, vreg):
        e(f's_lshr_b32 s60, s65, {22-lg}'); e('s_lshl_b32 s60, s60, 22')
        srd(SL, ptr, 1 << 22, 's60')
        if lg == 18: usepass(LB, 77, 79)
        else: usepass(LA, 58, 76)
        e('s_xor_b32 s88, s54, s84')
        e(f'v_mov_b32 v42, v{vreg}')
        if hold: e(f's_waitcnt vmcnt({hold-1})')
    c('last iteration of a pass: the loads move on to the next pass')
    lab('L_switchK')
    e('s_cmp_eq_u32 s57, 0'); e('s_cbranch_scc0 L_sw1')
    fetchqb()
    switch(16, 18, 13)
    e('s_branch L_bodyK')
    lab('L_sw1')
    e(f'ds_read_b128 v[{PF}:{PF+3}], v{SAVE+1}')
    switch(18, 18, 14)
    redmax(SAVE + 2)
    e('s_waitcnt lgkmcnt(0)')
    e('s_branch L_bodyK')
    lab('L_switchV')
    e(f's_mov_b32 s{SL+2}, 0')
    e('s_cmp_eq_u32 s57, 2'); e('s_cbranch_scc0 L_bodyV')
    e(f'ds_read_b128 v[{PF}:{PF+3}], v{SAVE}')
    switch(8, 20, 14)
    e('s_branch L_bodyV')
    lab('L_endhelp')
    c('helper: leave the maximum for the streaming wave, then become a finisher')
    redmax(10)
    e('s_lshl_b32 s60, s64, 2'); e(f'v_add_u32 v8, s60, v40')
    e('s_mov_b64 exec, 1'); e('ds_write_b32 v8, v10 offset:48'); e('ds_add_u32 v40, v41 offset:4'); e('s_mov_b64 exec, -1')
    e('s_mov_b32 s98, 1')
    e('s_branch L_svc')
    lab('L_ret_qb')
    pubq('', withid=False)
    e(f'v_and_b32 v8, 31, v0'); e(f's_mov_b32 s60, {8*STRIDE}'); e('v_mul_lo_u32 v13, v8, s60')
    e(f's_mul_i32 s75, s30, {STRIDE}'); e(f's_add_u32 s75, s75, {IDO+BASE}')
    e('v_lshrrev_b32 v15, 5, v0'); e('v_lshl_add_u32 v11, v15, 8, v11')
    e(f's_mov_b32 s60, {64*STRIDE}'); e('v_mul_lo_u32 v10, v15, s60'); e('v_add_u32 v10, v10, v12')
    waittiles('L_waitq', 8 * (NPK - tQ) - 6)
    e(f's_mov_b32 s62, {SPIN}')
    e('s_branch L_qg1')
    lab('L_qg')
    e(f's_cmp_eq_u32 s62, {SPIN-3}'); e('s_cbranch_scc0 L_qg2')
    pubq('sc1')
    lab('L_qg2')
    e('s_sleep 32')
    lab('L_qg1')
    e(f's_mul_i32 s60, s30, {STRIDE}'); e('s_lshl_b32 s61, s53, 7'); e('s_add_u32 s60, s60, s61'); e(f's_add_u32 s60, s60, {QBO+BASE}')
    for a in range(2):
        for p in range(8):
            n = a * 8 + p
            e(f'buffer_load_dwordx4 v[{64+4*n}:{64+4*n+3}], v10, s[{SWS}:{SWS+3}], s60 offen sc1')
            if p < 7: e(f's_add_u32 s60, s60, {8*STRIDE}')
        if a == 0: e(f's_add_u32 s60, s60, {(128-56)*STRIDE}')
    e(f'buffer_load_dwordx4 v[44:47], v13, s[{SWS}:{SWS+3}], s75 offen sc1')
    e('s_sub_u32 s62, s62, 1'); e('s_cbranch_scc1 L_end')
    e('s_waitcnt vmcnt(0)')
    untag(64, 64, 8)
    e('v_xor_b32 v46, s94, v46'); e('v_xor_b32 v47, s95, v47'); e('v_or_b32 v46, v46, v47')
    e('v_and_or_b32 v8, v8, v60, v46'); e('v_cmp_ne_u32 vcc, 0, v8'); e('s_cbranch_vccnz L_qg')
    c('flag value 2: all 32 workgroups of the group report this die; 1: they do not, write through to memory')
    e('v_cmp_ne_u32 vcc, s67, v44'); e('s_mov_b32 s67, 2')
    if local: e('s_cbranch_vccz L_qgdone')
    e('s_mov_b32 s67, 1')
    pubq('sc1')
    lab('L_qgdone')
    for a in range(2):
        for p in range(1, 8):
            for r in range(4): e(f'v_add_f32 v{64+32*a+r}, v{64+32*a+r}, v{64+32*a+4*p+r}')
        for r in range(4):
            e(f'v_cvt_pk_bf16_f32 v{64+32*a+r}, v{64+32*a+r}, v{64+32*a+r}')
        for r in range(4):
            e(f'ds_write_b16 v11, v{64+32*a+r} offset:{L_QB + 512*a + 16*r}')
    e('v_mov_b32 v8, s67')
    e('ds_write_b32 v59, v8')
    e('s_endpgm')
    lab('L_finisher')
    O1 = 128; O2 = 144; M1 = 44; M2 = 160; AC = 48
    c('wo slice: rows 128h + 4b + g + 8t, columns 128*(j&3)..')
    e('v_and_b32 v4, 0xf0, v14'); e('v_bfe_u32 v7, v0, 3, 1'); e('v_lshl_add_u32 v5, v2, 10, v4')
    e('s_lshl_b32 s69, s52, 17'); e('s_lshl_b32 s62, s53, 12'); e('s_add_u32 s69, s69, s62')
    e('s_and_b32 s62, s31, 3'); e('s_lshl_b32 s62, s62, 8'); e('s_add_u32 s69, s69, s62')
    e('s_cmp_eq_u32 s64, 0'); e(f's_cselect_b32 s{SW}, s12, s22'); e(f's_cselect_b32 s{SW+1}, s13, s23')
    e(f's_mov_b32 s{SW+2}, {1<<22}'); e(f's_mov_b32 s{SW+3}, 0x20000')
    c('s74 record base, s84..87 o offsets, s76 own y, s80 y gather, s77 output offset, s78 record stride')
    e(f's_lshl_b32 s76, s64, 10'); e('s_mov_b32 s77, s76'); e(f's_add_u32 s76, s76, {YA}')
    e('s_cmp_eq_u32 s64, 0'); e('s_cbranch_scc0 L_parB')
    e('s_and_b32 s60, s2, 0xc7'); e(f's_mul_i32 s74, s60, {STRIDE}'); e(f's_add_u32 s74, s74, {BASE}'); e('s_add_u32 s75, s74, 128'); e(f's_mov_b32 s78, {RA}')
    e('s_branch L_par')
    lab('L_parB')
    e(f's_mul_i32 s74, s30, {STRIDE}'); e(f's_add_u32 s74, s74, {OB+BASE}'); e('s_lshr_b32 s60, s31, 3')
    e('s_lshl_b32 s61, s60, 9'); e('s_add_u32 s75, s74, s61'); e('s_add_u32 s75, s75, 128')
    e('s_lshl_b32 s61, s60, 5'); e('s_add_u32 s74, s74, s61'); e(f's_mov_b32 s78, {64*STRIDE}')
    lab('L_par')
    e('s_lshl_b32 s60, s53, 8'); e('s_add_u32 s84, s75, s60')
    e('s_add_u32 s85, s84, s78'); e(f's_add_u32 s86, s84, {32*STRIDE}'); e('s_add_u32 s87, s86, s78')
    for k in range(4): e(f's_add_u32 s{88+k}, s{84+k}, {128*STRIDE}')
    e(f's_add_u32 s92, s74, {128*STRIDE}')
    e(f's_mov_b32 s60, {8*STRIDE}')
    e('v_mul_lo_u32 v15, v2, s60'); e('v_add_u32 v15, v15, v4')
    e('v_and_b32 v8, 3, v0'); e('v_xor_b32 v8, v8, v2'); e('v_lshl_add_u32 v8, v7, 2, v8'); e('v_mul_lo_u32 v13, v8, s60')
    e('v_bfe_u32 v8, v0, 2, 1'); e('v_mul_lo_u32 v8, v8, s78'); e('v_add_u32 v13, v13, v8')
    lgy = NY.bit_length() - 1
    NC = 256 // NY
    e(f'v_lshrrev_b32 v8, {lgy}, v0'); e('v_and_b32 v9, 7, v8'); e('v_lshrrev_b32 v8, 3, v8'); e('v_lshl_add_u32 v8, v8, 5, v9')
    e(f's_mov_b32 s60, {STRIDE}'); e('v_mul_lo_u32 v12, v8, s60')
    e(f'v_and_b32 v10, {NY-1}, v0'); e('v_lshl_add_u32 v12, v10, 4, v12')
    c('LDS scratch addresses: v57 write, v58 read')
    e('s_lshl_b32 s60, s64, 8'); e(f's_add_u32 s60, s60, {L_X}')
    e('v_lshrrev_b32 v8, 1, v2'); e('v_lshlrev_b32 v8, 7, v8'); e('v_and_b32 v9, 1, v2'); e('v_lshl_add_u32 v8, v9, 2, v8')
    e('v_and_b32 v9, 3, v0'); e('v_lshl_add_u32 v8, v9, 5, v8'); e('v_bfe_u32 v9, v0, 2, 2'); e('v_lshlrev_b32 v9, 3, v9')
    e('v_add3_u32 v57, v8, v9, s60')
    e('v_lshlrev_b32 v8, 7, v7'); e('v_lshl_add_u32 v8, v2, 5, v8'); e('v_add_u32 v58, s60, v8')
    c('s81 = 0 when this workgroup reduces outputs of its branch')
    e(f's_lshr_b32 s81, s2, {8-lgy}')
    e(f's_mul_i32 s60, s64, {NY//2}'); e('s_xor_b32 s81, s81, s60')
    e('s_and_b32 s61, s2, 3'); e(f's_mul_i32 s80, s61, {8*STRIDE}'); e('s_add_u32 s80, s80, s76'); e(f's_add_u32 s80, s80, {BASE}')
    e(f's_and_b32 s63, s2, {NC-1}'); e('s_lshr_b32 s63, s63, 2'); e(f's_lshl_b32 s63, s63, {lgy}')
    e('s_lshl_b32 s60, s63, 4'); e('s_add_u32 s80, s80, s60')
    e('s_lshl_b32 s61, s61, 8'); e('s_add_u32 s77, s77, s61')
    e('s_lshr_b32 s61, s63, 4'); e('s_lshl_b32 s61, s61, 6'); e('s_add_u32 s77, s77, s61')
    e('s_bfe_u32 s61, s63, 0x10003'); e('s_lshl_b32 s61, s61, 11'); e('s_add_u32 s77, s77, s61')
    e('s_and_b32 s61, s63, 7'); e('s_lshl_b32 s61, s61, 1'); e('s_add_u32 s77, s77, s61')
    e('v_and_b32 v8, 1, v2'); e('v_lshrrev_b32 v9, 1, v2'); e('v_lshl_add_u32 v8, v8, 1, v9'); e('v_lshlrev_b32 v11, 4, v8')
    e('v_lshl_add_u32 v11, v10, 1, v11')
    e('s_add_u32 s76, s76, s68')
    e(f'v_mov_b32 v{M2}, 0x{f32(-3.0e38):08x}')
    for r in range(4): e(f'v_mov_b32 v{DD+r}, 0')
    srd(SX, 24, 4096)
    if outpre:
        e('s_cmp_lg_u32 s81, 0'); e('s_cbranch_scc1 L_noop')
        e(f'buffer_load_ushort v63, v11, s[{SX}:{SX+3}], s77 offen'); e('s_waitcnt vmcnt(0)')
        lab('L_noop')
    e('s_cmp_eq_u32 s64, 0'); e('s_cbranch_scc1 L_waitA')
    c('branch B: merge the states of the two streaming waves and publish the record')
    waitlds('L_waitB', 8, 2)
    BO = 128
    e('v_lshlrev_b32 v10, 3, v0')
    e('ds_read_b32 v53, v59')
    e(f'ds_read_b128 v[{BO}:{BO+3}], v14'); e(f'ds_read_b128 v[{BO+4}:{BO+7}], v14 offset:1024'); e('ds_read_b64 v[44:45], v10 offset:2048')
    e(f'ds_read_b128 v[{BO+8}:{BO+11}], v14 offset:2560'); e(f'ds_read_b128 v[{BO+12}:{BO+15}], v14 offset:3584'); e('ds_read_b64 v[46:47], v10 offset:4608')
    e('s_waitcnt lgkmcnt(0)')
    e('v_readfirstlane_b32 s67, v53')
    e('v_max_f32 v48, v44, v46'); e('v_sub_f32 v8, v44, v48'); e('v_sub_f32 v9, v46, v48'); e('v_exp_f32 v8, v8'); e('v_exp_f32 v9, v9'); e('s_nop 0')
    e('v_mul_f32 v49, v45, v8'); e('v_fmac_f32 v49, v47, v9')
    e('v_mov_b32 v50, v49'); e('s_nop 1'); e('v_permlane32_swap_b32 v49, v50'); e('v_add_f32 v49, v49, v50')
    e('v_mov_b32 v50, v49'); e('s_nop 1'); e('v_permlane16_swap_b32 v49, v50'); e('v_add_f32 v49, v49, v50')
    e('v_mov_b32 v50, s94'); e('v_mov_b32 v51, s95')
    for r in range(8):
        e(f'v_mul_f32 v{BO+r}, v{BO+r}, v8'); e(f'v_fmac_f32 v{BO+r}, v{BO+8+r}, v9')
    puttag(BO, 8, 60)
    e('v_and_b32 v8, 3, v0'); e('v_lshl_add_u32 v8, v2, 2, v8'); e('v_lshlrev_b32 v8, 4, v8'); e('v_bfe_u32 v9, v0, 2, 2'); e('v_lshl_add_u32 v52, v9, 9, v8')
    if tPub < 31: waittiles('L_waitpub', 8 * (NIT - tPub) - 6)
    e(f's_add_u32 s60, s68, {OB}')
    def pubB(p):
        e(f'buffer_store_dwordx4 v[{BO}:{BO+3}], v52, s[{SWS}:{SWS+3}], s60 offen offset:128 {p}')
        e(f'buffer_store_dwordx4 v[{BO+4}:{BO+7}], v52, s[{SWS}:{SWS+3}], s60 offen offset:384 {p}')
        e('s_mov_b64 exec, 0x5555')
        e(f'buffer_store_dwordx4 v[48:51], v10, s[{SWS}:{SWS+3}], s60 offen {p}')
        e('s_mov_b64 exec, -1')
    e('s_cmp_eq_u32 s67, 2'); e('s_cbranch_scc1 L_pubBfast')
    pubB('sc1')
    e('s_branch L_pubBdone')
    lab('L_pubBfast')
    pubB('')
    lab('L_pubBdone')
    e('s_waitcnt vmcnt(0)')
    waittiles('L_waitg', 8 * (NIT - tG) - 6)
    DP = ['quad_perm:[1,0,3,2]', 'quad_perm:[2,3,0,1]', 'row_half_mirror']
    def gather(label, A, M, so, sm, weights):
        e(f's_mov_b32 s60, {SPIN}')
        lab(label)
        e(f'buffer_load_dwordx4 v[{M}:{M+3}], v13, s[{SWS}:{SWS+3}], s{sm} offen sc1')
        for k in range(4): e(f'buffer_load_dwordx4 v[{A+4*k}:{A+4*k+3}], v15, s[{SWS}:{SWS+3}], s{so+k} offen sc1')
        e('s_sub_u32 s60, s60, 1'); e('s_cbranch_scc1 L_end')
        e('s_waitcnt vmcnt(4)')
        if weights: e(f'v_max_f32 v62, v{M1}, v{M2}')
        e(f'v_xor_b32 v9, s94, v{M+2}'); e(f'v_xor_b32 v10, s95, v{M+3}')
        if weights: e(f'v_max_f32_dpp v62, v62, v62 {DP[0]} row_mask:0xf bank_mask:0xf')
        e('v_or_b32 v9, v9, v10')
        extra = [f'v_max_f32_dpp v62, v62, v62 {DP[1]} row_mask:0xf bank_mask:0xf', f'v_max_f32_dpp v62, v62, v62 {DP[2]} row_mask:0xf bank_mask:0xf',
                 f'v_sub_f32 v63, v{M1}, v62', 'v_exp_f32 v63, v63'] if weights else []
        for k in range(4):
            e(f's_waitcnt vmcnt({3-k})')
            ops = untag_ops(A + 4 * k, 4, 8, first=(k == 0))
            if extra and k < 2:
                ops.insert(1, extra[2 * k]); ops.insert(4, extra[2 * k + 1])
            for o in ops: e(o)
        e('v_and_or_b32 v8, v8, v60, v9')
        e('v_cmp_ne_u32 vcc, 0, v8')
        e(f's_cbranch_vccnz {label}')
    gather('L_g1', O2, M2, 88, 92, False)
    e('s_branch L_fin')
    lab('L_waitA')
    c('pace keeper: a wave that lags behind the mean progress of its group keeps more loads in flight')
    e(f's_lshl_b32 s61, s30, 7'); e(f's_add_u32 s96, s61, {PGO}')
    e('s_lshl_b32 s61, s31, 2'); e('v_mov_b32 v44, s61')
    e('v_and_b32 v45, 31, v0'); e('v_lshlrev_b32 v45, 2, v45')
    e('s_and_b32 s97, s94, 0xffff0000')
    e('v_mov_b32 v50, 0'); e('v_mov_b32 v51, 0')
    c('tiles that always keep one more load in flight: the even dies see a slightly longer memory latency')
    e('s_getreg_b32 s61, hwreg(HW_REG_XCC_ID, 0, 1)'); e('s_cmp_eq_u32 s61, 0'); e(f's_cselect_b32 s61, {mE & 15}, {mO}'); e('v_mov_b32 v54, s61')
    c('group leader (j = 0): s54/s55 group sum now and one round ago, s56 raw lag, s57 offset folded into the own word')
    e('s_mov_b32 s54, 0'); e('s_mov_b32 s55, 0'); e('s_mov_b32 s56, 0'); e('s_mov_b32 s57, 0'); e('s_mov_b64 s[82:83], 0'); e('s_mov_b32 s79, 0')
    e('v_lshlrev_b32 v55, 8, v3'); e('v_mov_b32 v132, 0'); e('v_mov_b32 v133, 0')
    e(f's_lshl_b32 s58, s30, 8'); e(f's_add_u32 s58, s58, {XGO}'); e(f's_mov_b32 s59, {XGO}')
    e(f's_mov_b32 s60, {SPIN*4}')
    lab('L_ctl')
    e('ds_read_b64 v[8:9], v59 offset:24'); e('s_add_u32 s63, s57, 128'); e('s_lshr_b32 s63, s63, 2'); e('s_lshl_b32 s63, s63, 10'); e('s_waitcnt lgkmcnt(0)')
    e('v_add_u32 v46, v8, v9'); e('v_add_u32 v47, s63, v46')
    e('v_readfirstlane_b32 s61, v46'); e('v_or_b32 v47, s97, v47')
    e('s_mov_b64 exec, 1'); e(f'buffer_store_dword v47, v44, s[{SWS}:{SWS+3}], s96 offen'); e('s_mov_b64 exec, -1')
    e('s_sub_u32 s60, s60, 1'); e('s_cbranch_scc1 L_end')
    e(f's_cmp_ge_u32 s61, {8*(NIT-ctlend)}'); e('s_cbranch_scc1 L_ctlend')
    e(f'buffer_load_dword v48, v45, s[{SWS}:{SWS+3}], s96 offen sc1')
    if xc:
        if xend:
            e(f's_cmp_ge_u32 s61, {8*(NIT-xend)}'); e('s_cselect_b32 s31, 1, s31')
            if not xkeep: e('s_cselect_b32 s57, 0, s57')
        e('s_cmp_eq_u32 s31, 0'); e('s_cbranch_scc0 L_nx1')
        e(f'buffer_load_dwordx4 v[128:131], v55, s[{SWS}:{SWS+3}], s59 offen sc1')
        lab('L_nx1')
    e('v_add_u32 v50, v50, v8'); e('v_add_u32 v51, v51, v9')
    e('s_waitcnt vmcnt(0)')
    e('v_xor_b32 v48, s97, v48'); e('v_cmp_lt_u32 vcc, 0xffff, v48')
    e('v_readfirstlane_b32 s65, v48'); e('v_and_b32 v48, 0x3ff, v48')
    e('s_bfe_u32 s65, s65, 0x6000a'); e('s_lshl_b32 s65, s65, 2'); e('s_sub_u32 s65, s65, 128')
    for d in (8, 4, 2, 1):
        e('s_nop 1'); e(f'v_add_u32_dpp v48, v48, v48 row_ror:{d} row_mask:0xf bank_mask:0xf')
    e('v_mov_b32 v49, v48'); e('s_nop 1'); e('v_permlane16_swap_b32 v48, v49'); e('v_add_u32 v48, v48, v49')
    e('v_lshlrev_b32 v50, 5, v50'); e('v_lshlrev_b32 v51, 5, v51')
    e('v_sub_u32 v50, v48, v50'); e('v_sub_u32 v51, v48, v51')
    if xc:
        e('s_or_b32 s62, vcc_lo, s31'); e('s_cbranch_scc1 L_nx2')
        e('s_mov_b32 s55, s54'); e('v_readfirstlane_b32 s54, v48')
        c('lanes 0..7: a new report of group a gives its lead over this group')
        e('v_xor_b32 v130, s94, v130'); e('v_xor_b32 v131, s95, v131'); e('v_or_b32 v130, v130, v131')
        e('v_cmp_eq_u32 s[62:63], 0, v130'); e('v_cmp_ne_u32 s[66:67], v128, v132')
        e('s_add_u32 s75, s54, s55'); e('s_lshr_b32 s75, s75, 1')
        e('s_and_b64 s[66:67], s[66:67], s[62:63]')
        e('v_subrev_u32 v134, s75, v128')
        e('v_cndmask_b32 v133, v133, v134, s[66:67]'); e('v_cndmask_b32 v132, v132, v128, s[66:67]')
        e('s_and_b64 s[66:67], s[66:67], s[82:83]'); e('s_or_b64 s[82:83], s[82:83], s[62:63]')
        e('s_or_b32 s79, s79, s66')
        e('v_cmp_ne_u32 s[62:63], s30, v3'); e('s_nop 1'); e('v_cndmask_b32 v134, 0, v133, s[62:63]')
        for d in DP:
            e('s_nop 1'); e(f'v_add_u32_dpp v134, v134, v134 {d} row_mask:0xf bank_mask:0xf'); e(f'v_add_u32_dpp v129, v129, v129 {d} row_mask:0xf bank_mask:0xf')
        e('s_nop 0'); e('v_readfirstlane_b32 s62, v134'); e('v_readfirstlane_b32 s63, v129')
        e('s_and_b32 s66, s79, 0xff'); e('s_cmp_eq_u32 s66, 0xff'); e('s_cbranch_scc0 L_nx3')
        e(f's_mul_i32 s56, s56, {(1<<xsm)-1}'); e('s_add_u32 s56, s56, s62'); e(f's_ashr_i32 s56, s56, {xsm}')
        e('s_ashr_i32 s63, s63, 3'); e('s_sub_u32 s62, s56, s63'); e(f's_ashr_i32 s62, s62, {3+xsh}')
        e(f's_min_i32 s62, s62, {xclamp}'); e(f's_max_i32 s57, s62, {-xclamp}')
        if xnull: e('s_mov_b32 s57, 0')
        lab('L_nx3')
        e(f's_and_b32 s62, s60, {xdiv-1}'); e('s_cbranch_scc1 L_nx2')
        e('v_mov_b32 v128, s54'); e('v_mov_b32 v129, s56'); e('v_mov_b32 v130, s94'); e('v_mov_b32 v131, s95')
        e('s_mov_b64 exec, 0xff')
        e(f'buffer_store_dwordx4 v[128:131], v14, s[{SWS}:{SWS+3}], s58 offen sc1')
        e('s_mov_b64 exec, -1')
        lab('L_nx2')
    e(f's_min_i32 s62, s65, {c1}'); e(f's_max_i32 s62, s62, {-c1}'); e(f's_sub_u32 s62, {thU}, s62')
    e('s_cmp_eq_u64 vcc, 0'); e('s_cselect_b32 s62, s62, 0x7fffffff'); e(f's_max_i32 s63, s62, {thF}')
    for r in (50, 51):
        e(f'v_cmp_lt_i32 vcc, s62, v{r}'); e('s_nop 1'); e(f'v_cndmask_b32 v{r+2}, v54, 15, vcc')
        e(f'v_cmp_lt_i32 vcc, s63, v{r}'); e('s_nop 1'); e(f'v_cndmask_b32 v{r+2}, v{r+2}, 31, vcc')
    if thL is not None:
        e('v_add_u32 v54, v50, v51'); e('v_ashrrev_i32 v54, 1, v54'); e('v_add_u32 v54, s65, v54'); e('ds_write_b32 v59, v54 offset:44')
    e('ds_write_b64 v59, v[52:53] offset:32')
    e('v_mov_b32 v50, v8'); e('v_mov_b32 v51, v9')
    e('s_branch L_ctl')
    lab('L_ctlend')
    c('the wo slice follows the last V loads')
    waittiles('L_waitwl', 8 * NIT - tWL, sl=1)
    e('s_mov_b32 s60, s69')
    if thL is not None: e(f'v_cmp_lt_i32 vcc, {thL}, v54')
    wload(DwA, thL is not None)
    waittiles('L_waitown', 8 * NIT + 2, sl=0)
    lab('L_fin')
    stamp(5)
    gather('L_g0', O1, M1, 84, 74, True)
    stamp(6)
    if DIAG == 4: e('v_writelane_b32 v1, s60, 14')
    c('v62 = maximum of the head, v63 = weight of the own record')
    for b in range(2):
        for k in range(4): e(f'v_mul_f32_dpp v{AC+4*b+k}, v63, v{O1+8*b+k} row_newbcast:{8*b} row_mask:0xf bank_mask:0xf')
    for b in range(2):
        for k in range(4): e(f'v_fmac_f32_dpp v{AC+4*b+k}, v63, v{O1+8*b+4+k} row_newbcast:{8*b+4} row_mask:0xf bank_mask:0xf')
    e(f'v_mul_f32 v61, v{M1+1}, v63')
    e('s_cmp_eq_u32 s64, 0'); e('s_cbranch_scc1 L_m3')
    e(f'v_sub_f32 v56, v{M2}, v62'); e('v_exp_f32 v56, v56'); e('s_nop 0'); e(f'v_fmac_f32 v61, v{M2+1}, v56'); e('s_nop 0')
    for n0 in range(2):
        for b in range(2):
            for k in range(4): e(f'v_fmac_f32_dpp v{AC+4*b+k}, v56, v{O2+8*b+4*n0+k} row_newbcast:{8*b+4*n0} row_mask:0xf bank_mask:0xf')
    lab('L_m3')
    for k in range(4): e(f'v_permlane32_swap_b32 v{AC+k}, v{AC+4+k}')
    for k in range(4): e(f'v_add_f32 v{AC+k}, v{AC+k}, v{AC+4+k}')
    e(f'v_add_f32_dpp v61, v61, v61 {DP[0]} row_mask:0xf bank_mask:0xf')
    e(f'v_permlane16_swap_b32 v{AC}, v{AC+2}'); e(f'v_permlane16_swap_b32 v{AC+1}, v{AC+3}')
    e(f'v_add_f32 v{AC}, v{AC}, v{AC+2}'); e(f'v_add_f32 v{AC+1}, v{AC+1}, v{AC+3}')
    e(f'v_cvt_pk_bf16_f32 v8, v{AC}, v{AC+1}')
    e('ds_write_b32 v57, v8')
    e(f'ds_read_b128 v[{XP}:{XP+3}], v58'); e(f'ds_read_b128 v[{XP+4}:{XP+7}], v58 offset:16')
    e(f'v_add_f32_dpp v61, v61, v61 {DP[1]} row_mask:0xf bank_mask:0xf'); e('s_nop 1')
    e(f'v_add_f32_dpp v61, v61, v61 {DP[2]} row_mask:0xf bank_mask:0xf')
    e('v_rcp_f32 v61, v61')
    e('s_waitcnt lgkmcnt(0)')
    e('s_cbranch_scc1 L_projmm')
    waittiles('L_waityb', 8 * NIT - tYB, sl=1)
    e('s_mov_b32 s60, s69')
    if thL is not None:
        e('ds_read_b32 v54, v59 offset:44'); e('s_waitcnt lgkmcnt(0)'); e(f'v_cmp_lt_i32 vcc, {thL}, v54')
    wload(DwB, thL is not None)
    if not mmw: e('s_waitcnt vmcnt(0)')
    e('s_branch L_projmm')
    lab('L_ret_fin')
    stamp(7)
    e('s_cmp_eq_u32 s64, 0'); e('s_cbranch_scc0 L_yw1')
    e('v_mov_b32 v8, 1'); e('ds_write_b32 v59, v8 offset:20')
    e('s_cmp_lg_u32 s81, 0'); e('s_cbranch_scc1 L_done')
    e('s_branch L_yw2')
    lab('L_yw1')
    e('s_cmp_lg_u32 s81, 0'); e('s_cbranch_scc1 L_done')
    c('branch B polls only after branch A of this workgroup has published')
    waitlds('L_yw', 20, 1, sl=1)
    lab('L_yw2')
    assert NS * NY * 4 <= 96 and NY >= 2
    def yissue(s):
        for n in range(NY):
            if n == 0: so = 's80'
            else:
                e(f's_add_u32 s61, s80, {n*(256//NY)*STRIDE}'); so = 's61'
            r = WT + 4 * (s * NY + n)
            e(f'buffer_load_dwordx4 v[{r}:{r+3}], v12, s[{SWS}:{SWS+3}], {so} offen sc1')
    c('two staggered polls of the y records in flight')
    for s in range(NS):
        if s: e(f's_sleep {ysp}')
        yissue(s)
    lab('L_y')
    for s in range(NS):
        for n in range(NY):
            r = WT + 4 * (s * NY + n)
            e(f's_waitcnt vmcnt({(NS-1)*NY + NY-1-n})')
            untag(r, 4, 8, first=(n == 0))
            if n == 1:
                for k in range(4): e(f'v_add_f32 v{AC+k}, v{r-4+k}, v{r+k}')
            elif n > 1:
                for k in range(4): e(f'v_add_f32 v{AC+k}, v{AC+k}, v{r+k}')
        e('v_and_b32 v8, 0xff, v8'); e('v_cmp_ne_u32 vcc, 0, v8'); e('s_cbranch_vccz L_yok')
        yissue(s)
    e('s_sub_u32 s60, s60, 1'); e('s_cbranch_scc0 L_y')
    e('s_endpgm')
    lab('L_yok')
    stamp(8)
    e(f'v_permlane32_swap_b32 v{AC}, v{AC+1}'); e(f'v_permlane32_swap_b32 v{AC+2}, v{AC+3}')
    e(f'v_add_f32 v{AC}, v{AC}, v{AC+1}'); e(f'v_add_f32 v{AC+2}, v{AC+2}, v{AC+3}'); e('s_nop 1')
    e(f'v_permlane16_swap_b32 v{AC}, v{AC+2}'); e(f'v_add_f32 v8, v{AC}, v{AC+2}')
    for d in (8, 4, 2, 1):
        if d >= NY:
            e('s_nop 1'); e(f'v_add_f32_dpp v8, v8, v8 row_ror:{d} row_mask:0xf bank_mask:0xf')
    e('v_cvt_pk_bf16_f32 v8, v8, v8')
    m = ((1 << NY) - 1) * 0x00010001
    e(f's_mov_b32 exec_lo, 0x{m:08x}'); e(f's_mov_b32 exec_hi, 0x{m:08x}')
    e(f'buffer_store_short v8, v11, s[{SX}:{SX+3}], s77 offen')
    c('every workgroup has read the tag word by now: leave the tag of this launch behind')
    e('s_or_b32 s60, s2, s64'); e('s_cbranch_scc1 L_done')
    if fulln:
        e('s_mov_b64 exec, 0xffffffff'); e('v_mov_b32 v9, s94'); e('v_lshlrev_b32 v10, 2, v0')
    else:
        e('s_mov_b64 exec, 1'); e('v_mov_b32 v9, s94'); e('v_mov_b32 v10, 0')
    e(f'buffer_store_dword v9, v10, s[{SWS}:{SWS+3}], 0 offen')
    lab('L_done')
    if DIAG:
        e('s_mov_b64 exec, -1')
        e('ds_read_b64 v[8:9], v59 offset:56'); e('s_waitcnt lgkmcnt(0)'); e('v_readfirstlane_b32 s60, v8'); e('v_readfirstlane_b32 s61, v9'); e('s_nop 3')
        e('v_writelane_b32 v1, s60, 12'); e('v_writelane_b32 v1, s61, 13'); e('s_getreg_b32 s60, hwreg(HW_REG_XCC_ID, 0, 3)'); e('v_writelane_b32 v1, s60, 15')
        e('s_memrealtime s[70:71]'); e('s_waitcnt lgkmcnt(0)'); e('v_writelane_b32 v1, s70, 9'); e('v_writelane_b32 v1, s72, 0')
        e('s_add_u32 s48, s28, 0x4000000'); e('s_addc_u32 s49, s29, 0'); e('s_mov_b32 s50, 0x100000'); e('s_mov_b32 s51, 0x20000')
        e('s_lshl_b32 s60, s2, 4'); e('s_add_u32 s60, s60, s3'); e('s_lshl_b32 s60, s60, 7')
        e('v_lshlrev_b32 v2, 2, v0')
        e('s_mov_b64 exec, 0xffffffff')
        e(f'buffer_store_dword v1, v2, s[{SWS}:{SWS+3}], s60 offen')
    lab('L_end')
    e('s_endpgm')
    L.append('.section .rodata,"a"'); L.append('.p2align 6'); L.append(f'.amdhsa_kernel {NAME}')
    L.append('  .amdhsa_next_free_vgpr 168'); L.append('  .amdhsa_next_free_sgpr 99'); L.append('  .amdhsa_accum_offset 168')
    L.append('  .amdhsa_group_segment_fixed_size 0'); L.append('  .amdhsa_kernarg_size 104'); L.append('  .amdhsa_user_sgpr_count 2')
    L.append('  .amdhsa_user_sgpr_kernarg_segment_ptr 1'); L.append('  .amdhsa_system_sgpr_workgroup_id_x 1'); L.append('.end_amdhsa_kernel')
    return '\n'.join(L) + '\n'

if __name__ == '__main__':
    kw = {}
    for a in sys.argv[2:]:
        k, v = a.split('=')
        kw[k] = int(v, 0)
    open(sys.argv[1], 'w').write(gen(**kw))
```

```python
import sys, struct, os
NAME = 'concat_heads__mha_block_cached__gqa_block_cached__decode_kernel'
def f32(x): return struct.unpack('<I', struct.pack('<f', x))[0]
_ref = 'concat_heads__mha_block_cached__gqa_block_cached__decode.s.ref'
HEADER = open(_ref).read().split('; Override launch')[0] if os.path.exists(_ref) else ''

LAY_A = ((13, 15), 12, (16, 21), [0, 0, 48, 40, 32, 38, 34, 18])
LAY_B = ((13, 16), 12, (15, 21, 19, 20), [0, 0, 8, 8, 14, 2, 2, 14])

DOC = r'''
; ---------------------------------------------------------------------------------------------
; Design
; ---------------------------------------------------------------------------------------------'''

def gen(DIAG=0, D=9, mE=0x33, thU=36, thF=144, halfF=0, freeT=0, hold=0, bar2=0, pipeK=0, loK=0, loV=0, burstV=0, grpK=1, grpV=1, DK=0, DV=0, ctlend=2, nfree=1, Dr=3, Dp=5, q0=3, qslp=3, KF=6, tQ=14, tPub=31, tG=28,
        tWL=6, tYB=4, DwA=9, DwB=9, slp=4, NY=8, NS=2, ysp=7, fulln=1, outpre=0, reA=0, local=1, mmw=0, pre0=10, fastT=1, layA=None, layB=None):
    LA = layA or LAY_A; LB = layB or LAY_B
    D2 = D + 1
    NW = 6
    BASE = 128
    RA = 640; OB = 2 * RA; YA = OB + 128 + 2048; YB = YA + 1024; QBO = YB + 1024; QAO = QBO + 1024; IDO = QAO + 1024; STRIDE = IDO + 128
    PGO = BASE + 256 * STRIDE; WSBYTES = PGO + 8 * 128
    L_QA = 8192; L_QB = L_QA + 256; L_FLAG = L_QB + 1024; L_X = L_FLAG + 64
    L_SA = 10240; L_SB = L_SA + 16384; LDS = L_SB + 16384 + 1024
    NP_A = 32; NP_B = 8; NPK = NP_A - 1; NIT = NPK + NP_A + 2 * NP_B
    SPIN = 1 << 18
    WQA, WFA, WFB, WQB = 2, 3, 4, 5
    L = []
    def e(s): L.append('    ' + s)
    def lab(s): L.append(s + ':')
    def c(s): L.append('    ; ' + s)
    L.append(HEADER.rstrip('\n'))
    L.append(f'; @launch grid=(256,1,1) block=({NW*64},1,1) lds={LDS}')
    L.append(DOC.strip('\n'))
    L.append('.amdgcn_target "amdgcn-amd-amdhsa--gfx950"')
    L.append('.text'); L.append(f'.globl {NAME}')
    L.append('.p2align 12'); L.append(f'.fill {(4096 - 0x300) // 4}, 4, 0xbf810000')
    L.append('.p2align 8'); L.append(f'.type {NAME},@function')
    lab(NAME)
    def stamp(idx):
        if DIAG != 4: return
        e('s_memrealtime s[70:71]'); e('s_waitcnt lgkmcnt(0)'); e(f'v_writelane_b32 v1, s70, {idx}')
    def srd(d, lo, size, off=None):
        if off is None:
            e(f's_mov_b32 s{d}, s{lo}'); e(f's_mov_b32 s{d+1}, s{lo+1}')
        else:
            e(f's_add_u32 s{d}, s{lo}, {off}'); e(f's_addc_u32 s{d+1}, s{lo+1}, 0')
        e(f's_mov_b32 s{d+2}, {size}'); e(f's_mov_b32 s{d+3}, 0x20000')
    def basesel():
        e('s_mov_b32 s62, 0xaaaaaaaa'); e('s_mov_b32 s63, 0xaaaaaaaa')
        e('v_mov_b32 v8, 0x0c0c0100'); e('v_mov_b32 v9, 0x01000c0c')
        e('v_cndmask_b32 v60, v8, v9, s[62:63]')
        e('v_mov_b32 v8, 0x0c0c0302'); e('v_mov_b32 v9, 0x03020c0c')
        e('v_cndmask_b32 v61, v8, v9, s[62:63]')
        e('v_mov_b32 v62, 0x0c0c0c0c')
    TG = 36
    def tags():
        e('s_add_u32 s94, s93, 0x01010101'); e('s_not_b32 s95, s94')
        e(f's_and_b32 s{TG}, s94, 0xff'); e(f's_bfe_u32 s{TG+1}, s94, 0x80008'); e(f's_bfe_u32 s{TG+2}, s94, 0x80010'); e(f's_lshr_b32 s{TG+3}, s94, 24')
    def puttag(r, n, vm, src=None):
        for k in range(n): e(f'v_bfi_b32 v{r+k}, v{vm}, s{TG+(k&3)}, v{(r if src is None else src)+k}')
    def untag_ops(r, n, acc, first=True):
        ops = [f'v_xor_b32 v{r+k}, s{TG+(k&3)}, v{r+k}' for k in range(n)]
        k = 0
        if first:
            ops.append(f'v_or3_b32 v{acc}, v{r}, v{r+1}, v{r+2}'); k = 3
        while k + 1 < n:
            ops.append(f'v_or3_b32 v{acc}, v{acc}, v{r+k}, v{r+k+1}'); k += 2
        if k < n: ops.append(f'v_or_b32 v{acc}, v{acc}, v{r+k}')
        return ops
    def untag(*a, **k):
        for o in untag_ops(*a, **k): e(o)
    def waitlds(label, off, target, sl=None):
        e(f's_mov_b32 s60, {SPIN*4}')
        lab(label)
        e(f's_sleep {slp if sl is None else sl}')
        e(f'ds_read_b32 v8, v59 offset:{off}'); e('s_waitcnt lgkmcnt(0)'); e('v_readfirstlane_b32 s61, v8')
        e('s_sub_u32 s60, s60, 1'); e('s_cbranch_scc1 L_end')
        e(f's_cmp_lt_u32 s61, {target}'); e(f's_cbranch_scc1 {label}')
    def waittiles(label, tiles, sl=None):
        e(f's_mov_b32 s60, {SPIN*4}')
        lab(label)
        e(f's_sleep {slp if sl is None else sl}')
        e(f'ds_read_b64 v[8:9], v59 offset:24'); e('s_waitcnt lgkmcnt(0)'); e('v_add_u32 v8, v8, v9')
        e('s_sub_u32 s60, s60, 1'); e('v_readfirstlane_b32 s61, v8'); e('s_cbranch_scc1 L_end')
        e(f's_cmp_lt_u32 s61, {tiles}'); e(f's_cbranch_scc1 {label}')
    SL, SW, SX, SWS = 32, 40, 44, 48
    RING = 64; WT = 64; XP = 16; SEL = 24; RR = 32; DD = 40; QQ = 44; QD = 48; SAVE = 128; PF = 144
    def wload(dw):
        for t in range(16):
            if t > dw: e(f's_waitcnt vmcnt({dw})')
            e(f'buffer_load_dwordx4 v[{WT+4*t}:{WT+4*t+3}], v5, s[{SW}:{SW+3}], s60 offen nt')
            if t < 15: e('s_addk_i32 s60, 0x2000')
    def xload():
        e(f'buffer_load_dwordx4 v[{XP}:{XP+3}], v6, s[{SX}:{SX+3}], s61 offen')
        e(f'buffer_load_dwordx4 v[{XP+4}:{XP+7}], v6, s[{SX}:{SX+3}], s61 offen offset:16')
    e('s_cmp_ge_u32 s2, 256'); e('s_cbranch_scc1 L_end')
    e('s_load_dwordx16 s[4:19], s[0:1], 0')
    e('s_load_dwordx8 s[20:27], s[0:1], 64')
    e('s_load_dwordx2 s[28:29], s[0:1], 96')
    if DIAG: e('s_memrealtime s[72:73]')
    e('v_lshrrev_b32 v1, 6, v0')
    e('v_and_b32 v0, 63, v0')
    e('v_readfirstlane_b32 s3, v1')
    e('s_and_b32 s30, s2, 7')
    e('s_lshr_b32 s31, s2, 3')
    e('s_lshr_b32 s60, s31, 3')
    e('s_lshl2_add_u32 s52, s30, s60')
    e('v_lshrrev_b32 v2, 4, v0')
    e('v_lshlrev_b32 v14, 4, v0')
    e('s_bfe_u32 s53, s31, 0x10002')
    if DIAG: e('v_mov_b32 v1, 0')
    e(f's_bitcmp1_b32 {(1 << WQA) | (1 << WQB)}, s3')
    e('s_cbranch_scc0 L_str_pro')
    c('q waves: rows 64*(j&7).. of wq, columns of head h')
    e('s_and_b32 s66, s31, 7')
    e('s_lshl_b32 s60, s66, 19'); e('s_lshl_b32 s62, s52, 8'); e('s_add_u32 s60, s60, s62')
    e('s_lshl_b32 s61, s66, 7')
    e('v_and_b32 v4, 0xf0, v14')
    e('v_bfe_u32 v7, v0, 3, 1')
    e('v_lshlrev_b32 v6, 5, v2')
    e('v_lshl_add_u32 v6, v7, 10, v6')
    e('v_lshl_add_u32 v5, v2, 17, v4')
    e(f's_mov_b32 s{SW+2}, {1<<22}'); e(f's_mov_b32 s{SW+3}, 0x20000'); e(f's_movk_i32 s{SX+2}, 0x800'); e(f's_mov_b32 s{SX+3}, 0x20000')
    e(f's_cmp_eq_u32 s3, {WQA}')
    e('s_waitcnt lgkmcnt(0)')
    e(f's_cselect_b32 s{SW}, s10, s20'); e(f's_cselect_b32 s{SW+1}, s11, s21')
    e(f's_cselect_b32 s{SX}, s4, s14'); e(f's_cselect_b32 s{SX+1}, s5, s15')
    e('s_load_dword s93, s[28:29], 0')
    e('s_cbranch_scc0 L_qb_pro')
    xload(); wload(16)
    c('the loads of this wave go first: everyone else starts behind this barrier')
    e('s_barrier')
    if bar2: e('s_barrier')
    e('s_branch L_qsetup')
    lab('L_str_pro')
    e('s_lshl_b32 s60, s53, 5'); e('s_add_u32 s60, s60, s52')
    e('s_and_b32 s62, s31, 3'); e('s_lshl2_add_u32 s65, s60, s62')
    e('v_and_b32 v10, 3, v0'); e('v_bfe_u32 v9, v0, 2, 2')
    e('v_lshl_add_u32 v10, v2, 2, v10')
    e('v_lshlrev_b32 v10, 4, v10')
    e('v_lshl_add_u32 v42, v9, 8, v10')
    e(f's_cmp_ge_u32 s3, {WFA}'); e('s_cselect_b32 s80, 1, 0')
    e('s_xor_b32 s64, s3, s80'); e('s_and_b32 s64, s64, 1')
    def itbits(lay):
        ld, wv, wg, cc = lay
        used = list(ld) + [wv] + list(wg)
        return [b for b in range(12, 22) if b not in used]
    def layout(lay, sSt, sB0):
        ld, wv, wg, cc = lay
        first = True
        for k in range(8):
            if cc[k] == 0: continue
            e(f's_bitcmp1_b32 s65, {k}')
            if first: e(f's_cselect_b32 s60, {cc[k]}, 0'); first = False
            else: e(f's_cselect_b32 s61, {cc[k]}, 0'); e('s_add_u32 s60, s60, s61')
        e(f's_lshl_b32 s{sB0}, s64, {wv}')
        def deposit(dst, src, srcbit, bits, init):
            k = 0
            while k < len(bits):
                n = 1
                while k + n < len(bits) and bits[k + n] == bits[k] + n: n += 1
                e(f's_bfe_u32 s61, s{src}, 0x{(n << 16) | (srcbit + k):x}')
                if init: e(f's_lshl_b32 s{dst}, s61, {bits[k]}'); init = False
                else: e(f's_lshl_b32 s61, s61, {bits[k]}'); e(f's_or_b32 s{dst}, s{dst}, s61')
                k += n
        deposit(sB0, 65, 0, wg, False)
        if any(v & 1 for v in cc): deposit(sB0, 60, 0, [ld[1]], False)
        deposit(sSt, 60, 1, itbits(lay), True)
    def usepass(lay, sSt, sB0):
        ld = lay[0]
        e(f's_mov_b32 s54, s{sSt}'); e(f's_mov_b32 s55, {sum(1 << b for b in itbits(lay))}')
        e(f's_mov_b32 s84, s{sB0}'); e(f's_xor_b32 s85, s84, {1 << ld[0]}'); e(f's_xor_b32 s86, s84, {1 << ld[1]}'); e(f's_xor_b32 s87, s85, {1 << ld[1]}')
    layout(LA, 58, 76)
    usepass(LA, 58, 76)
    e('s_sub_u32 s54, s54, s80'); e('s_and_b32 s54, s54, s55')
    e('s_lshr_b32 s60, s65, 2'); e('s_lshl_b32 s60, s60, 22')
    e(f'v_mov_b32 v40, {L_FLAG}'); e('v_mov_b32 v4, 0'); e('v_mov_b32 v5, 0')
    for o in (0, 8, 16, 24, 32): e(f'ds_write_b64 v40, v[4:5] offset:{o}')
    e('s_waitcnt lgkmcnt(0)')
    srd(SL, 6, 1 << 22, 's60')
    e('s_add_u32 s88, s54, s84')
    e('s_barrier')
    if bar2: e('s_barrier')
    def load(t, j): e(f'buffer_load_dwordx4 v[{RING+16*t+4*j}:{RING+16*t+4*j+3}], v42, s[{SL}:{SL+3}], s88 offen offset:{1024*j} nt')
    def adv(t):
        if t == 3:
            e('s_orn2_b32 s54, s54, s55'); e('s_add_u32 s54, s54, 1'); e('s_and_b32 s54, s54, s55')
        e(f's_add_u32 s88, s54, s{84 + ((t + 1) & 3)}')
    def ringload(n0, n1):
        for n in range(n0, n1):
            if n > Dr: e(f's_waitcnt vmcnt({Dr})')
            load(n >> 2, n & 3)
            if n & 3 == 3: adv(n >> 2)
    ringload(0, Dr + 1)
    e('s_branch L_stream')
    lab('L_qb_pro')
    srd(SWS, 28, WSBYTES)
    e(f'v_min_u32 v8, {STRIDE//128-pre0-1}, v0'); e('v_lshlrev_b32 v8, 7, v8')
    e(f's_mul_i32 s62, s2, {STRIDE}'); e(f's_add_u32 s62, s62, {BASE+pre0*128}')
    e('s_barrier')
    c('touch the hand-off lines of this workgroup so that later write-backs meet them in the memory-side cache')
    e(f'buffer_load_dword v63, v8, s[{SWS}:{SWS+3}], s62 offen')
    xload(); wload(Dp)
    if bar2: e('s_barrier')
    lab('L_qsetup')
    e('s_mov_b32 s98, 0')
    lab('L_svc')
    c('byte selectors that place one bf16 value at position lane&7 of an MFMA operand')
    e('s_setprio 3')
    basesel()
    e('s_mov_b32 s62, 0x03030303'); e('s_mov_b32 s63, 0x03030303')
    for k in range(4):
        e(f'v_cndmask_b32 v{SEL+2*k}, v62, v60, s[62:63]')
        e(f'v_cndmask_b32 v{SEL+2*k+1}, v62, v61, s[62:63]')
        if k < 3: e('s_lshl_b64 s[62:63], s[62:63], 2')
    e('v_and_b32 v3, 7, v0')
    e(f'v_mov_b32 v59, {L_FLAG}'); e('v_mov_b32 v60, 0xff'); e('v_mov_b32 v61, 1.0')
    srd(SWS, 28, WSBYTES)
    e(f's_mul_i32 s68, s2, {STRIDE}'); e(f's_add_u32 s68, s68, {BASE}')
    e('s_cmp_eq_u32 s98, 1'); e('s_cbranch_scc1 L_finisher')
    for r in range(4): e(f'v_mov_b32 v{DD+r}, 0')
    e(f's_cmp_eq_u32 s3, {WQA}'); e(f's_cselect_b32 s76, 1024, 0'); e('s_add_u32 s76, s76, s68'); e(f's_add_u32 s76, s76, {QBO}')
    c('q gather lane offsets: two producers per load')
    e('v_lshrrev_b32 v8, 5, v0'); e('v_bfe_u32 v9, v0, 3, 2')
    e('v_lshlrev_b32 v12, 8, v9'); e('v_lshl_add_u32 v12, v3, 4, v12')
    e('v_lshlrev_b32 v11, 6, v9'); e('v_lshl_add_u32 v11, v3, 1, v11')
    e(f's_mov_b32 s60, {8*STRIDE}'); e('v_mul_lo_u32 v10, v8, s60'); e('v_add_u32 v10, v10, v12'); e('v_mul_lo_u32 v13, v3, s60')
    e('s_and_b32 s60, s2, 0xc7'); e(f's_mul_i32 s75, s60, {STRIDE}')
    e('s_lshl_b32 s61, s53, 7'); e('s_add_u32 s74, s75, s61'); e(f's_add_u32 s74, s74, {QAO+BASE}'); e(f's_add_u32 s75, s75, {IDO+BASE}')
    for k in range(1, 4): e(f's_add_u32 s{84+k}, s74, {16*k*STRIDE}')
    e('s_getreg_b32 s67, hwreg(HW_REG_XCC_ID, 0, 4)')
    e(f's_add_u32 s77, s68, {IDO}')
    e('s_waitcnt lgkmcnt(0)')
    tags()
    e('v_mov_b32 v48, s67'); e('v_mov_b32 v49, s67'); e('v_mov_b32 v50, s94'); e('v_mov_b32 v51, s95')
    e('s_waitcnt vmcnt(%d)' % (16 if mmw else 0))
    lab('L_projmm')
    c('D[chunk][(b,i)] = v61 * sum_t W_t x delta(XP_t): 64 rows of a weight matrix times two input vectors')
    for t in range(16):
        r = RR + 4 * (t & 1)
        for k in range(4):
            e(f'v_perm_b32 v{r+k}, v{XP+(t>>1)}, v{XP+(t>>1)}, v{SEL+2*k+(t&1)}')
        if t > 0:
            tp = t - 1; rp = RR + 4 * (tp & 1)
            if mmw and tp % mmw == 0: e(f's_waitcnt vmcnt({max(0, 16-tp-mmw)})')
            e(f'v_mfma_f32_16x16x32_bf16 v[{DD}:{DD+3}], v[{WT+4*tp}:{WT+4*tp+3}], v[{rp}:{rp+3}], v[{DD}:{DD+3}]')
    e('s_waitcnt vmcnt(0)')
    e(f'v_mfma_f32_16x16x32_bf16 v[{DD}:{DD+3}], v[{WT+60}:{WT+63}], v[{RR+4}:{RR+7}], v[{DD}:{DD+3}]')
    e(f's_mov_b32 s60, {SPIN}')
    e('s_cmp_eq_u32 s98, 1')
    e('s_nop 5')
    for r in range(4): e(f'v_mul_f32 v{DD+r}, v{DD+r}, v61')
    puttag(DD, 4, 60)
    e('s_cbranch_scc0 L_q0')
    e(f'buffer_store_dwordx4 v[{DD}:{DD+3}], v14, s[{SWS}:{SWS+3}], s76 offen sc1')
    e('s_branch L_ret_fin')
    lab('L_q0')
    e(f's_cmp_eq_u32 s3, {WQA}'); e('s_cbranch_scc0 L_ret_qb')
    c('q of branch A: publish the slice and the die id in the cache of this die first, gather the eight slices')
    def pubq(p, withid=True):
        e(f'buffer_store_dwordx4 v[{DD}:{DD+3}], v14, s[{SWS}:{SWS+3}], s76 offen {p}')
        if withid:
            e('s_mov_b64 exec, 0xff')
            e(f'buffer_store_dwordx4 v[48:51], v14, s[{SWS}:{SWS+3}], s77 offen {p}')
            e('s_mov_b64 exec, -1')
    pubq('')
    lab('L_qa')
    e(f's_sleep {qslp}')
    for k in range(4):
        e(f'buffer_load_dwordx4 v[{64+4*k}:{64+4*k+3}], v10, s[{SWS}:{SWS+3}], s{74 if k == 0 else 84+k} offen sc1')
    for k in range(4):
        e(f's_waitcnt vmcnt({3-k})')
        untag(64 + 4 * k, 4, 8, first=(k == 0))
        if k > 0:
            for r in range(4): e(f'v_add_f32 v{64+r}, v{64+r}, v{64+4*k+r}')
    e('v_and_b32 v8, 0xff, v8'); e('v_cmp_ne_u32 vcc, 0, v8'); e('s_cbranch_vccz L_qaok')
    e('s_sub_u32 s60, s60, 1'); e('s_cbranch_scc1 L_end')
    e(f's_cmp_eq_u32 s60, {SPIN-KF}'); e('s_cbranch_scc0 L_qa')
    c('still incomplete: the group may span dies, write through to memory')
    pubq('sc1')
    e('s_branch L_qa')
    lab('L_qaok')
    e('v_permlane32_swap_b32 v64, v66'); e('v_permlane32_swap_b32 v65, v67')
    e('v_add_f32 v64, v64, v66'); e('v_add_f32 v65, v65, v67')
    e('v_and_b32 v8, 32, v0'); e('v_add_u32 v11, v11, v8')
    e('v_cvt_pk_bf16_f32 v64, v64, v65')
    e('v_mov_b32 v8, 1'); e('v_mov_b32 v9, s93')
    e(f'ds_write_b16 v11, v64 offset:{L_QA}'); e(f'ds_write_b16_d16_hi v11, v64 offset:{L_QA+16}')
    e('ds_write_b32 v59, v9 offset:16'); e('ds_write_b32 v59, v8 offset:12')
    c('unless all eight readers report this die, write the slice through to memory')
    e(f'buffer_load_dwordx4 v[44:47], v13, s[{SWS}:{SWS+3}], s75 offen sc1')
    e('s_waitcnt vmcnt(0)')
    e('v_xor_b32 v46, s94, v46'); e('v_xor_b32 v47, s95, v47'); e('v_xor_b32 v44, s67, v44'); e('v_or3_b32 v46, v46, v47, v44')
    e('v_cmp_ne_u32 vcc, 0, v46')
    if local: e('s_cbranch_vccz L_end')
    pubq('sc1')
    e('s_endpgm')
    L.append('.p2align 12')
    lab('L_stream')
    e('v_mov_b32 v13, v42')
    e('v_lshl_add_u32 v15, v9, 9, v10')
    e(f'v_add_u32 v38, {L_QA}, v10')
    e(f'v_lshl_add_u32 v39, v9, 8, v38'); e(f'v_add_u32 v39, {L_QB-L_QA}, v39')
    e('s_lshl_b32 s60, s64, 13'); e(f's_add_u32 s60, s60, {L_SA}')
    e(f'v_lshl_add_u32 v{SAVE}, v2, 4, s60')
    e(f'v_lshl_add_u32 v8, v2, 2, v9'); e(f's_add_u32 s60, s60, {L_SB-L_SA}')
    e(f'v_lshl_add_u32 v{SAVE+1}, v8, 4, s60')
    e(f'v_mov_b32 v{SAVE+3}, 0xff'); e(f'v_lshlrev_b32 v{SAVE+4}, 3, v0')
    basesel()
    e('s_mov_b32 s62, 0x33333333'); e('s_mov_b32 s63, 0x33333333')
    e('v_cndmask_b32 v34, v62, v60, s[62:63]'); e('v_cndmask_b32 v35, v62, v61, s[62:63]')
    e('v_cndmask_b32 v36, v60, v62, s[62:63]'); e('v_cndmask_b32 v37, v61, v62, s[62:63]')
    e('v_mov_b32 v41, 1')
    e(f's_mov_b32 s59, 0x{f32(128**-0.5*1.4426950408889634):08x}')
    srd(SWS, 28, WSBYTES)
    e(f's_mul_i32 s68, s2, {STRIDE}'); e(f's_mul_i32 s60, s64, {RA}'); e('s_add_u32 s68, s68, s60')
    c('pass 0: K of A')
    e(f's_mov_b32 s56, {NPK}'); e('s_mov_b32 s57, 0'); e('s_mov_b32 s78, 0'); e('s_mov_b32 s81, 1')
    c('tiles that keep one more load in flight: the even dies see a slightly longer memory latency')
    e('s_getreg_b32 s60, hwreg(HW_REG_XCC_ID, 0, 1)'); e('s_cmp_eq_u32 s60, 0'); e(f's_cselect_b32 s75, {mE}, 0')
    e('s_lshl_b32 s60, s64, 2'); e('s_lshr_b32 s75, s75, s60'); e('s_and_b32 s75, s75, 15')
    e(f's_add_u32 s60, s60, {L_FLAG+24}'); e(f'v_mov_b32 v{SAVE+6}, s60'); e(f'v_mov_b32 v{SAVE+5}, 0')
    e(f's_mul_i32 s60, s80, {NPK*256}'); e(f'v_add_u32 v11, s60, v{SAVE}')
    layout(LB, 77, 79)
    e('s_mov_b32 s66, 64'); e('s_mov_b32 s62, 0x00010001'); e('s_mov_b32 s63, 0x00010001')
    e(f'v_mov_b32 v10, 0x{f32(-3.0e38):08x}')
    ringload(Dr + 1, 16)
    e(f's_mov_b32 s60, {SPIN*4}')
    lab('L_waitqa')
    e('ds_read_b32 v4, v40 offset:12'); e('ds_read_b32 v5, v40 offset:16'); e(f'ds_read_b128 v[{QQ}:{QQ+3}], v38')
    e('s_waitcnt lgkmcnt(0)'); e('v_readfirstlane_b32 s61, v4'); e('v_readfirstlane_b32 s93, v5')
    e('s_sub_u32 s60, s60, 1'); e('s_cbranch_scc1 L_end')
    e('s_cmp_eq_u32 s61, 0'); e('s_cbranch_scc1 L_waitqa')
    tags()
    e('s_cmp_eq_u32 s80, 0'); e('s_cbranch_scc1 L_loopK')
    c('helper: one iteration, nothing to reload (zero-size descriptor)')
    e(f's_mov_b32 s{SL+2}, 0'); e('s_mov_b32 s56, 1'); e('s_mov_b32 s57, 4'); e('s_mov_b32 s69, 0'); e('s_mov_b32 s78, 1'); e('s_mov_b64 vcc, -1')
    e(f'v_mov_b32 v{SAVE+6}, {L_FLAG+40}')
    e('s_branch L_bodyK')
    nthr = [0]
    def thr(lo=0, D=D, skip=False):
        D2 = D + 1
        if skip:
            e('s_waitcnt vmcnt(15)'); return
        nthr[0] += 1; n = nthr[0]
        e(f's_cbranch_vccnz L_thf{n}'); e(f's_cbranch_scc1 L_thd{n}'); e(f's_waitcnt vmcnt({D-lo})')
        lab(f'L_thd{n}'); e(f's_waitcnt vmcnt({D2})'); lab(f'L_thf{n}'); e('s_waitcnt vmcnt(15)')
    def looptop(x):
        lab(f'L_loop{x}')
        c('depth level chosen by wave 3')
        e('s_waitcnt lgkmcnt(0)'); e(f'v_readfirstlane_b32 s60, v{SAVE+5}')
        e(f'ds_read_b32 v{SAVE+5}, v{SAVE+6} offset:8')
        e('s_or_b32 s69, s75, s60')
        e('s_cmp_le_u32 s56, s78'); e('s_cselect_b64 vcc, -1, 0')
        e('s_bitcmp1_b32 s60, 4'); e('s_cselect_b64 vcc, -1, vcc')
        if freeT:
            e('s_cmp_eq_u32 s56, 2'); e('s_cselect_b64 vcc, -1, vcc')
        e('s_cmp_eq_u32 s56, 1'); e(f's_cbranch_scc1 L_switch{x}')
        lab(f'L_body{x}')
    def count():
        e('s_mov_b64 exec, 1'); e(f'ds_add_u32 v{SAVE+6}, v41'); e('s_mov_b64 exec, -1')
    def redmax(r):
        e(f'v_mov_b32 v9, v{r}'); e('s_nop 1'); e(f'v_permlane32_swap_b32 v{r}, v9'); e(f'v_max_f32 v{r}, v{r}, v9')
        e(f'v_mov_b32 v9, v{r}'); e('s_nop 1'); e(f'v_permlane16_swap_b32 v{r}, v9'); e(f'v_max_f32 v{r}, v{r}, v9')
    c('K loop: scores to LDS (address v11, stride s66, lanes s[62:63]), running maximum v10')
    looptop('K')
    QS = (QD, 152)
    def score(k, Q, S, guard=None):
        for j in range(4):
            if k == 0: e(f'v_mov_b32_dpp v{S+j}, v{Q+4*j} quad_perm:[0,0,0,0] row_mask:0xf bank_mask:0xf')
            else: e(f'v_add_f32_dpp v{S+j}, v{Q+4*j+k}, v{S+j} quad_perm:[{k},{k},{k},{k}] row_mask:0xf bank_mask:0xf')
        if k == 3:
            if guard:
                e('s_cmp_eq_u32 s81, 1'); e('s_mov_b32 s81, 0'); e(f's_cbranch_scc1 {guard}')
            e(f'v_max3_f32 v10, v10, v{S}, v{S+1}'); e(f'v_max3_f32 v10, v10, v{S+2}, v{S+3}')
            e('s_mov_b64 exec, s[62:63]'); e(f'ds_write_b128 v11, v[{S}:{S+3}]'); e('s_mov_b64 exec, -1')
            e('v_add_u32 v11, s66, v11')
            if guard: lab(guard)
    for t in range(4):
        K = RING + 16 * t
        Q = QS[t & 1] if pipeK else QD
        count()
        if halfF and t == halfF:
            e('s_cmp_le_u32 s56, s78'); e('s_cselect_b64 vcc, -1, 0')
        e(f's_bitcmp1_b32 s69, {t}')
        for j in range(4):
            thr((loK >> (4 * t + j)) & 1, DK or D, j % grpK != 0)
            e(f'v_mfma_f32_16x16x32_bf16 v[{Q+4*j}:{Q+4*j+3}], v[{K+4*j}:{K+4*j+3}], v[{QQ}:{QQ+3}], 0')
            load(t, j)
            if pipeK: score(j, QS[(t + 1) & 1], 16 if t % 2 == 0 else 4, 'L_first' if t == 0 else None)
        adv(t)
        if not pipeK:
            if t < 3: e('s_nop 2')
            for k in range(4): score(k, QD, 4 if t % 2 == 0 else 16)
    e('s_sub_u32 s56, s56, 1'); e('s_cmp_lg_u32 s56, 0'); e('s_cbranch_scc1 L_loopK')
    if pipeK:
        for k in range(4): score(k, QS[1], 16)
        e('s_mov_b32 s81, 1')
    e(f's_mov_b32 s56, {NP_B}')
    e('s_cmp_eq_u32 s57, 1'); e('s_cbranch_scc0 L_endKA')
    c('end of K of B: exact maximum of the scores of this wave')
    redmax(10)
    e('s_mov_b32 s57, 2'); e(f'v_add_u32 v38, s66, v{SAVE+1}')
    lab('L_startV')
    c('V pass: scores of the first tile in v[144:147], further scores at v38 (stride s66), maximum v10')
    e('v_mul_f32 v11, s59, v10'); e('v_sub_f32 v11, 0, v11')
    RS = (26, SAVE + 8)
    def soft(k, R, lg, src=QD):
        if k == 0:
            if lg is not None: e(f's_waitcnt lgkmcnt({lg})')
            for r in range(4): e(f'v_fma_f32 v{4+r}, v{src+r}, s59, v11')
            e(f'ds_read_b128 v[{QD}:{QD+3}], v38'); e('v_add_u32 v38, s66, v38')
        elif k == 1:
            for r in range(4): e(f'v_exp_f32 v{4+r}, v{4+r}')
        elif k == 2:
            e('v_cvt_pk_bf16_f32 v24, v4, v5'); e('v_cvt_pk_bf16_f32 v25, v6, v7')
            e('v_add_f32 v8, v4, v5'); e('v_add_f32 v9, v6, v7')
        if k >= 2:
            for r in (2 * k - 4, 2 * k - 3):
                e(f'v_perm_b32 v{R+2*r}, v{24+(r>>1)}, v{24+(r>>1)}, v{34+(r&1)}')
                e(f'v_perm_b32 v{R+2*r+1}, v{24+(r>>1)}, v{24+(r>>1)}, v{36+(r&1)}')
        if k == 3: e('v_add_f32 v8, v8, v9')
    soft(0, RS[0], None, src=PF); soft(1, RS[0], 0); e('v_mov_b32 v12, 0'); soft(2, RS[0], 0); soft(3, RS[0], 0)
    e('s_waitcnt lgkmcnt(1)')
    for r in range(8): e(f'v_mov_b32 v{16+r}, 0')
    looptop('V')
    for t in range(4):
        V = RING + 16 * t
        R = RS[t & 1]
        if halfF and t == halfF:
            e('s_cmp_le_u32 s56, s78'); e('s_cselect_b64 vcc, -1, 0')
        e(f's_bitcmp1_b32 s69, {t}')
        e('v_add_f32 v12, v12, v8')
        for r in range(4):
            thr((loV >> (4 * t + r)) & 1, DV or D, r % grpV != 0)
            e(f'v_mfma_f32_16x16x16_bf16 v[16:19], v[{V+4*r}:{V+4*r+1}], v[{R+2*r}:{R+2*r+1}], v[16:19]')
            e(f'v_mfma_f32_16x16x16_bf16 v[20:23], v[{V+4*r+2}:{V+4*r+3}], v[{R+2*r}:{R+2*r+1}], v[20:23]')
            load(t, r)
            if not burstV:
                soft(r, RS[(t + 1) & 1], None if t == 0 else 0)
                if r == 0: count()
        if burstV:
            for r in range(4):
                soft(r, RS[(t + 1) & 1], None if t == 0 else 0)
                if r == 1: count()
        adv(t)
    e('s_sub_u32 s56, s56, 1'); e('s_cmp_lg_u32 s56, 0'); e('s_cbranch_scc1 L_loopV')
    e('v_mov_b32 v9, v12'); e('v_mul_f32 v4, s59, v10')
    e('s_cmp_eq_u32 s57, 2'); e('s_cbranch_scc1 L_endVB')
    c('end of V of A: reduce the sum, publish the record')
    e('v_permlane32_swap_b32 v12, v9'); e('v_add_f32 v12, v12, v9')
    e('v_mov_b32 v9, v12')
    puttag(24, 8, SAVE + 3, src=16)
    e('v_permlane16_swap_b32 v12, v9'); e('v_add_f32 v5, v12, v9'); e('v_mov_b32 v6, s94'); e('v_mov_b32 v7, s95')
    if DIAG == 4:
        e('s_memrealtime s[70:71]'); e('s_waitcnt lgkmcnt(0)'); e('v_mov_b32 v8, s70'); e(f'ds_write_b32 v{SAVE+6}, v8 offset:32')
    e('s_cmp_eq_u32 s67, 2'); e('s_cbranch_scc0 L_pubslow')
    def pubA(p):
        e('s_mov_b32 exec_lo, 0x000f000f'); e('s_mov_b32 exec_hi, 0x000f000f')
        e(f'buffer_store_dwordx4 v[24:27], v15, s[{SWS}:{SWS+3}], s68 offen offset:{BASE+128} {p}')
        e(f'buffer_store_dwordx4 v[28:31], v15, s[{SWS}:{SWS+3}], s68 offen offset:{BASE+384} {p}')
        e('s_mov_b64 exec, 0x5555')
        e(f'buffer_store_dwordx4 v[4:7], v{SAVE+4}, s[{SWS}:{SWS+3}], s68 offen offset:{BASE} {p}')
        if p == 'sc1' and reA:
            e('s_cmp_eq_u32 s67, 2'); e('s_cbranch_scc1 L_end')
        e('s_mov_b64 exec, 1'); e(f'ds_add_u32 v{SAVE+6}, v41')
        if p == '' and reA:
            e('s_mov_b64 exec, -1'); e('v_mov_b32 v59, v40')
            waitlds('L_rea', 20, 1, sl=1)
            if reA > 1: e(f's_sleep {reA}')
        else:
            e('s_endpgm')
    pubA('')
    lab('L_pubslow')
    pubA('sc1')
    lab('L_endVB')
    c('end of V of B: hand the state to wave 4 through LDS')
    e(f'v_mov_b32 v{PF+4}, v4'); e(f'v_mov_b32 v{PF+5}, v12')
    e('s_mul_i32 s60, s64, 2560'); e('v_add_u32 v8, s60, v14'); e(f'v_add_u32 v9, s60, v{SAVE+4}')
    e('ds_write_b128 v8, v[16:19]'); e('ds_write_b128 v8, v[20:23] offset:1024'); e(f'ds_write_b64 v9, v[{PF+4}:{PF+5}] offset:2048')
    e('s_mov_b64 exec, 1'); e('ds_add_u32 v40, v41 offset:8'); e('s_mov_b64 exec, -1')
    e(f's_mov_b32 s56, {NP_A}'); e('s_mov_b32 s57, 3'); e('s_mov_b32 s66, 64'); e(f's_mov_b32 s78, {nfree}')
    e(f'v_add_u32 v38, 64, v{SAVE}'); e(f'v_mov_b32 v10, v{SAVE+2}')
    e('s_branch L_startV')
    lab('L_endKA')
    e('s_cmp_eq_u32 s57, 4'); e('s_cbranch_scc1 L_endhelp')
    e(f's_mov_b32 s60, {SPIN*4}')
    c('q of B, its flag and the maximum of the helper were fetched one iteration ago; fetch again if they were not ready')
    e('s_branch L_chkqb')
    def fetchqb():
        e(f'ds_read_b64 v[{PF+4}:{PF+5}], v40'); e(f'ds_read_b32 v{PF+6}, v{SAVE+6} offset:24'); e(f'ds_read_b128 v[{PF}:{PF+3}], v39')
    lab('L_waitqb')
    fetchqb()
    e('s_sub_u32 s60, s60, 1'); e('s_cbranch_scc1 L_end')
    lab('L_chkqb')
    e('s_waitcnt lgkmcnt(0)'); e(f'v_readfirstlane_b32 s67, v{PF+4}'); e(f'v_readfirstlane_b32 s61, v{PF+5}')
    for r in range(4): e(f'v_mov_b32 v{QQ+r}, v{PF+r}')
    e('s_cmp_eq_u32 s67, 0'); e('s_cbranch_scc1 L_waitqb')
    e('s_cmp_lt_u32 s61, 2'); e('s_cbranch_scc1 L_waitqb')
    e(f'v_max_f32 v{SAVE+2}, v10, v{PF+6}')
    e('s_mov_b32 s57, 1')
    e(f'v_mov_b32 v11, v{SAVE+1}'); e('s_movk_i32 s66, 0x100'); e('s_mov_b32 s62, 0x11111111'); e('s_mov_b32 s63, 0x11111111')
    e(f'v_mov_b32 v10, 0x{f32(-3.0e38):08x}')
    e('s_branch L_loopK')
    def switch(ptr, lg, vreg):
        e(f's_lshr_b32 s60, s65, {22-lg}'); e('s_lshl_b32 s60, s60, 22')
        srd(SL, ptr, 1 << 22, 's60')
        if lg == 18: usepass(LB, 77, 79)
        else: usepass(LA, 58, 76)
        e('s_add_u32 s88, s54, s84')
        e(f'v_mov_b32 v42, v{vreg}')
        if hold: e(f's_waitcnt vmcnt({hold-1})')
    c('last iteration of a pass: the loads move on to the next pass')
    lab('L_switchK')
    e('s_cmp_eq_u32 s57, 0'); e('s_cbranch_scc0 L_sw1')
    fetchqb()
    switch(16, 18, 13)
    e('s_branch L_bodyK')
    lab('L_sw1')
    e(f'ds_read_b128 v[{PF}:{PF+3}], v{SAVE+1}')
    switch(18, 18, 14)
    redmax(SAVE + 2)
    e('s_waitcnt lgkmcnt(0)')
    e('s_branch L_bodyK')
    lab('L_switchV')
    e(f's_mov_b32 s{SL+2}, 0')
    e('s_cmp_eq_u32 s57, 2'); e('s_cbranch_scc0 L_bodyV')
    e(f'ds_read_b128 v[{PF}:{PF+3}], v{SAVE}')
    switch(8, 20, 14)
    e('s_branch L_bodyV')
    lab('L_endhelp')
    c('helper: leave the maximum for the streaming wave, then become a finisher')
    redmax(10)
    e('s_lshl_b32 s60, s64, 2'); e(f'v_add_u32 v8, s60, v40')
    e('s_mov_b64 exec, 1'); e('ds_write_b32 v8, v10 offset:48'); e('ds_add_u32 v40, v41 offset:4'); e('s_mov_b64 exec, -1')
    e('s_mov_b32 s98, 1')
    e('s_branch L_svc')
    lab('L_ret_qb')
    pubq('', withid=False)
    e(f'v_and_b32 v8, 31, v0'); e(f's_mov_b32 s60, {8*STRIDE}'); e('v_mul_lo_u32 v13, v8, s60')
    e(f's_mul_i32 s75, s30, {STRIDE}'); e(f's_add_u32 s75, s75, {IDO+BASE}')
    e('v_lshrrev_b32 v15, 5, v0'); e('v_lshl_add_u32 v11, v15, 8, v11')
    e(f's_mov_b32 s60, {64*STRIDE}'); e('v_mul_lo_u32 v10, v15, s60'); e('v_add_u32 v10, v10, v12')
    waittiles('L_waitq', 8 * (NPK - tQ) - 6)
    e(f's_mov_b32 s62, {SPIN}')
    e('s_branch L_qg1')
    lab('L_qg')
    e(f's_cmp_eq_u32 s62, {SPIN-3}'); e('s_cbranch_scc0 L_qg2')
    pubq('sc1')
    lab('L_qg2')
    e('s_sleep 32')
    lab('L_qg1')
    e(f's_mul_i32 s60, s30, {STRIDE}'); e('s_lshl_b32 s61, s53, 7'); e('s_add_u32 s60, s60, s61'); e(f's_add_u32 s60, s60, {QBO+BASE}')
    for a in range(2):
        for p in range(8):
            n = a * 8 + p
            e(f'buffer_load_dwordx4 v[{64+4*n}:{64+4*n+3}], v10, s[{SWS}:{SWS+3}], s60 offen sc1')
            if p < 7: e(f's_add_u32 s60, s60, {8*STRIDE}')
        if a == 0: e(f's_add_u32 s60, s60, {(128-56)*STRIDE}')
    e(f'buffer_load_dwordx4 v[44:47], v13, s[{SWS}:{SWS+3}], s75 offen sc1')
    e('s_sub_u32 s62, s62, 1'); e('s_cbranch_scc1 L_end')
    e('s_waitcnt vmcnt(0)')
    untag(64, 64, 8)
    e('v_xor_b32 v46, s94, v46'); e('v_xor_b32 v47, s95, v47'); e('v_or_b32 v46, v46, v47')
    e('v_and_or_b32 v8, v8, v60, v46'); e('v_cmp_ne_u32 vcc, 0, v8'); e('s_cbranch_vccnz L_qg')
    c('flag value 2: all 32 workgroups of the group report this die; 1: they do not, write through to memory')
    e('v_cmp_ne_u32 vcc, s67, v44'); e('s_mov_b32 s67, 2')
    if local: e('s_cbranch_vccz L_qgdone')
    e('s_mov_b32 s67, 1')
    pubq('sc1')
    lab('L_qgdone')
    for a in range(2):
        for p in range(1, 8):
            for r in range(4): e(f'v_add_f32 v{64+32*a+r}, v{64+32*a+r}, v{64+32*a+4*p+r}')
        for r in range(4):
            e(f'v_cvt_pk_bf16_f32 v{64+32*a+r}, v{64+32*a+r}, v{64+32*a+r}')
        for r in range(4):
            e(f'ds_write_b16 v11, v{64+32*a+r} offset:{L_QB + 512*a + 16*r}')
    e('v_mov_b32 v8, s67')
    e('ds_write_b32 v59, v8')
    e('s_endpgm')
    lab('L_finisher')
    O1 = 128; O2 = 144; M1 = 44; M2 = 160; AC = 48
    c('wo slice: rows 128h + 4b + g + 8t, columns 128*(j&3)..')
    e('v_and_b32 v4, 0xf0, v14'); e('v_bfe_u32 v7, v0, 3, 1'); e('v_lshl_add_u32 v5, v2, 10, v4')
    e('s_lshl_b32 s69, s52, 17'); e('s_lshl_b32 s62, s53, 12'); e('s_add_u32 s69, s69, s62')
    e('s_and_b32 s62, s31, 3'); e('s_lshl_b32 s62, s62, 8'); e('s_add_u32 s69, s69, s62')
    e('s_cmp_eq_u32 s64, 0'); e(f's_cselect_b32 s{SW}, s12, s22'); e(f's_cselect_b32 s{SW+1}, s13, s23')
    e(f's_mov_b32 s{SW+2}, {1<<22}'); e(f's_mov_b32 s{SW+3}, 0x20000')
    c('s74 record base, s84..87 o offsets, s76 own y, s80 y gather, s77 output offset, s78 record stride')
    e(f's_lshl_b32 s76, s64, 10'); e('s_mov_b32 s77, s76'); e(f's_add_u32 s76, s76, {YA}')
    e('s_cmp_eq_u32 s64, 0'); e('s_cbranch_scc0 L_parB')
    e('s_and_b32 s60, s2, 0xc7'); e(f's_mul_i32 s74, s60, {STRIDE}'); e(f's_add_u32 s74, s74, {BASE}'); e('s_add_u32 s75, s74, 128'); e(f's_mov_b32 s78, {RA}')
    e('s_branch L_par')
    lab('L_parB')
    e(f's_mul_i32 s74, s30, {STRIDE}'); e(f's_add_u32 s74, s74, {OB+BASE}'); e('s_lshr_b32 s60, s31, 3')
    e('s_lshl_b32 s61, s60, 9'); e('s_add_u32 s75, s74, s61'); e('s_add_u32 s75, s75, 128')
    e('s_lshl_b32 s61, s60, 5'); e('s_add_u32 s74, s74, s61'); e(f's_mov_b32 s78, {64*STRIDE}')
    lab('L_par')
    e('s_lshl_b32 s60, s53, 8'); e('s_add_u32 s84, s75, s60')
    e('s_add_u32 s85, s84, s78'); e(f's_add_u32 s86, s84, {32*STRIDE}'); e('s_add_u32 s87, s86, s78')
    for k in range(4): e(f's_add_u32 s{88+k}, s{84+k}, {128*STRIDE}')
    e(f's_add_u32 s92, s74, {128*STRIDE}')
    e(f's_mov_b32 s60, {8*STRIDE}')
    e('v_mul_lo_u32 v15, v2, s60'); e('v_add_u32 v15, v15, v4')
    e('v_and_b32 v8, 3, v0'); e('v_xor_b32 v8, v8, v2'); e('v_lshl_add_u32 v8, v7, 2, v8'); e('v_mul_lo_u32 v13, v8, s60')
    e('v_bfe_u32 v8, v0, 2, 1'); e('v_mul_lo_u32 v8, v8, s78'); e('v_add_u32 v13, v13, v8')
    lgy = NY.bit_length() - 1
    NC = 256 // NY
    e(f'v_lshrrev_b32 v8, {lgy}, v0'); e('v_and_b32 v9, 7, v8'); e('v_lshrrev_b32 v8, 3, v8'); e('v_lshl_add_u32 v8, v8, 5, v9')
    e(f's_mov_b32 s60, {STRIDE}'); e('v_mul_lo_u32 v12, v8, s60')
    e(f'v_and_b32 v10, {NY-1}, v0'); e('v_lshl_add_u32 v12, v10, 4, v12')
    c('LDS scratch addresses: v57 write, v58 read')
    e('s_lshl_b32 s60, s64, 8'); e(f's_add_u32 s60, s60, {L_X}')
    e('v_lshrrev_b32 v8, 1, v2'); e('v_lshlrev_b32 v8, 7, v8'); e('v_and_b32 v9, 1, v2'); e('v_lshl_add_u32 v8, v9, 2, v8')
    e('v_and_b32 v9, 3, v0'); e('v_lshl_add_u32 v8, v9, 5, v8'); e('v_bfe_u32 v9, v0, 2, 2'); e('v_lshlrev_b32 v9, 3, v9')
    e('v_add3_u32 v57, v8, v9, s60')
    e('v_lshlrev_b32 v8, 7, v7'); e('v_lshl_add_u32 v8, v2, 5, v8'); e('v_add_u32 v58, s60, v8')
    c('s81 = 0 when this workgroup reduces outputs of its branch')
    e(f's_lshr_b32 s81, s2, {8-lgy}')
    e(f's_mul_i32 s60, s64, {NY//2}'); e('s_xor_b32 s81, s81, s60')
    e('s_and_b32 s61, s2, 3'); e(f's_mul_i32 s80, s61, {8*STRIDE}'); e('s_add_u32 s80, s80, s76'); e(f's_add_u32 s80, s80, {BASE}')
    e(f's_and_b32 s63, s2, {NC-1}'); e('s_lshr_b32 s63, s63, 2'); e(f's_lshl_b32 s63, s63, {lgy}')
    e('s_lshl_b32 s60, s63, 4'); e('s_add_u32 s80, s80, s60')
    e('s_lshl_b32 s61, s61, 8'); e('s_add_u32 s77, s77, s61')
    e('s_lshr_b32 s61, s63, 4'); e('s_lshl_b32 s61, s61, 6'); e('s_add_u32 s77, s77, s61')
    e('s_bfe_u32 s61, s63, 0x10003'); e('s_lshl_b32 s61, s61, 11'); e('s_add_u32 s77, s77, s61')
    e('s_and_b32 s61, s63, 7'); e('s_lshl_b32 s61, s61, 1'); e('s_add_u32 s77, s77, s61')
    e('v_and_b32 v8, 1, v2'); e('v_lshrrev_b32 v9, 1, v2'); e('v_lshl_add_u32 v8, v8, 1, v9'); e('v_lshlrev_b32 v11, 4, v8')
    e('v_lshl_add_u32 v11, v10, 1, v11')
    e('s_add_u32 s76, s76, s68')
    e(f'v_mov_b32 v{M2}, 0x{f32(-3.0e38):08x}')
    for r in range(4): e(f'v_mov_b32 v{DD+r}, 0')
    srd(SX, 24, 4096)
    if outpre:
        e('s_cmp_lg_u32 s81, 0'); e('s_cbranch_scc1 L_noop')
        e(f'buffer_load_ushort v63, v11, s[{SX}:{SX+3}], s77 offen'); e('s_waitcnt vmcnt(0)')
        lab('L_noop')
    e('s_cmp_eq_u32 s64, 0'); e('s_cbranch_scc1 L_waitA')
    c('branch B: merge the states of the two streaming waves and publish the record')
    waitlds('L_waitB', 8, 2)
    BO = 128
    e('v_lshlrev_b32 v10, 3, v0')
    e('ds_read_b32 v53, v59')
    e(f'ds_read_b128 v[{BO}:{BO+3}], v14'); e(f'ds_read_b128 v[{BO+4}:{BO+7}], v14 offset:1024'); e('ds_read_b64 v[44:45], v10 offset:2048')
    e(f'ds_read_b128 v[{BO+8}:{BO+11}], v14 offset:2560'); e(f'ds_read_b128 v[{BO+12}:{BO+15}], v14 offset:3584'); e('ds_read_b64 v[46:47], v10 offset:4608')
    e('s_waitcnt lgkmcnt(0)')
    e('v_readfirstlane_b32 s67, v53')
    e('v_max_f32 v48, v44, v46'); e('v_sub_f32 v8, v44, v48'); e('v_sub_f32 v9, v46, v48'); e('v_exp_f32 v8, v8'); e('v_exp_f32 v9, v9'); e('s_nop 0')
    e('v_mul_f32 v49, v45, v8'); e('v_fmac_f32 v49, v47, v9')
    e('v_mov_b32 v50, v49'); e('s_nop 1'); e('v_permlane32_swap_b32 v49, v50'); e('v_add_f32 v49, v49, v50')
    e('v_mov_b32 v50, v49'); e('s_nop 1'); e('v_permlane16_swap_b32 v49, v50'); e('v_add_f32 v49, v49, v50')
    e('v_mov_b32 v50, s94'); e('v_mov_b32 v51, s95')
    for r in range(8):
        e(f'v_mul_f32 v{BO+r}, v{BO+r}, v8'); e(f'v_fmac_f32 v{BO+r}, v{BO+8+r}, v9')
    puttag(BO, 8, 60)
    e('v_and_b32 v8, 3, v0'); e('v_lshl_add_u32 v8, v2, 2, v8'); e('v_lshlrev_b32 v8, 4, v8'); e('v_bfe_u32 v9, v0, 2, 2'); e('v_lshl_add_u32 v52, v9, 9, v8')
    if tPub < 31: waittiles('L_waitpub', 8 * (NIT - tPub) - 6)
    e(f's_add_u32 s60, s68, {OB}')
    def pubB(p):
        e(f'buffer_store_dwordx4 v[{BO}:{BO+3}], v52, s[{SWS}:{SWS+3}], s60 offen offset:128 {p}')
        e(f'buffer_store_dwordx4 v[{BO+4}:{BO+7}], v52, s[{SWS}:{SWS+3}], s60 offen offset:384 {p}')
        e('s_mov_b64 exec, 0x5555')
        e(f'buffer_store_dwordx4 v[48:51], v10, s[{SWS}:{SWS+3}], s60 offen {p}')
        e('s_mov_b64 exec, -1')
    e('s_cmp_eq_u32 s67, 2'); e('s_cbranch_scc1 L_pubBfast')
    pubB('sc1')
    e('s_branch L_pubBdone')
    lab('L_pubBfast')
    pubB('')
    lab('L_pubBdone')
    e('s_waitcnt vmcnt(0)')
    waittiles('L_waitg', 8 * (NIT - tG) - 6)
    DP = ['quad_perm:[1,0,3,2]', 'quad_perm:[2,3,0,1]', 'row_half_mirror']
    def gather(label, A, M, so, sm, weights):
        e(f's_mov_b32 s60, {SPIN}')
        lab(label)
        e(f'buffer_load_dwordx4 v[{M}:{M+3}], v13, s[{SWS}:{SWS+3}], s{sm} offen sc1')
        for k in range(4): e(f'buffer_load_dwordx4 v[{A+4*k}:{A+4*k+3}], v15, s[{SWS}:{SWS+3}], s{so+k} offen sc1')
        e('s_sub_u32 s60, s60, 1'); e('s_cbranch_scc1 L_end')
        e('s_waitcnt vmcnt(4)')
        if weights: e(f'v_max_f32 v62, v{M1}, v{M2}')
        e(f'v_xor_b32 v9, s94, v{M+2}'); e(f'v_xor_b32 v10, s95, v{M+3}')
        if weights: e(f'v_max_f32_dpp v62, v62, v62 {DP[0]} row_mask:0xf bank_mask:0xf')
        e('v_or_b32 v9, v9, v10')
        extra = [f'v_max_f32_dpp v62, v62, v62 {DP[1]} row_mask:0xf bank_mask:0xf', f'v_max_f32_dpp v62, v62, v62 {DP[2]} row_mask:0xf bank_mask:0xf',
                 f'v_sub_f32 v63, v{M1}, v62', 'v_exp_f32 v63, v63'] if weights else []
        for k in range(4):
            e(f's_waitcnt vmcnt({3-k})')
            ops = untag_ops(A + 4 * k, 4, 8, first=(k == 0))
            if extra and k < 2:
                ops.insert(1, extra[2 * k]); ops.insert(4, extra[2 * k + 1])
            for o in ops: e(o)
        e('v_and_or_b32 v8, v8, v60, v9')
        e('v_cmp_ne_u32 vcc, 0, v8')
        e(f's_cbranch_vccnz {label}')
    gather('L_g1', O2, M2, 88, 92, False)
    e('s_branch L_fin')
    lab('L_waitA')
    c('pace keeper: a wave that lags behind the mean progress of its group keeps more loads in flight')
    e(f's_lshl_b32 s61, s30, 7'); e(f's_add_u32 s96, s61, {PGO}')
    e('s_lshl_b32 s61, s31, 2'); e('v_mov_b32 v44, s61')
    e('v_and_b32 v45, 31, v0'); e('v_lshlrev_b32 v45, 2, v45')
    e('s_and_b32 s97, s94, 0xffff0000')
    e('v_mov_b32 v50, 0'); e('v_mov_b32 v51, 0')
    e(f's_mov_b32 s60, {SPIN*4}')
    lab('L_ctl')
    e('ds_read_b64 v[8:9], v59 offset:24'); e('s_waitcnt lgkmcnt(0)')
    e('v_add_u32 v46, v8, v9'); e('v_or_b32 v47, s97, v46')
    e('v_readfirstlane_b32 s61, v46')
    e('s_mov_b64 exec, 1'); e(f'buffer_store_dword v47, v44, s[{SWS}:{SWS+3}], s96 offen'); e('s_mov_b64 exec, -1')
    e('s_sub_u32 s60, s60, 1'); e('s_cbranch_scc1 L_end')
    e(f's_cmp_ge_u32 s61, {8*(NIT-ctlend)}'); e('s_cbranch_scc1 L_ctlend')
    e(f'buffer_load_dword v48, v45, s[{SWS}:{SWS+3}], s96 offen sc1')
    e('v_add_u32 v50, v50, v8'); e('v_add_u32 v51, v51, v9')
    e('s_waitcnt vmcnt(0)')
    e('v_xor_b32 v48, s97, v48'); e('v_cmp_lt_u32 vcc, 0xffff, v48')
    for d in (8, 4, 2, 1):
        e('s_nop 1'); e(f'v_add_u32_dpp v48, v48, v48 row_ror:{d} row_mask:0xf bank_mask:0xf')
    e('v_mov_b32 v49, v48'); e('s_nop 1'); e('v_permlane16_swap_b32 v48, v49'); e('v_add_u32 v48, v48, v49')
    e('v_lshlrev_b32 v50, 5, v50'); e('v_lshlrev_b32 v51, 5, v51')
    e('v_sub_u32 v50, v48, v50'); e('v_sub_u32 v51, v48, v51')
    e('s_cmp_eq_u64 vcc, 0'); e(f's_cselect_b32 s62, {thU}, 0x7fffffff'); e(f's_max_i32 s63, s62, {thF}')
    for r in (50, 51):
        e(f'v_cmp_lt_i32 vcc, s62, v{r}'); e('s_nop 1'); e(f'v_cndmask_b32 v{r+2}, 0, 15, vcc')
        e(f'v_cmp_lt_i32 vcc, s63, v{r}'); e('s_nop 1'); e(f'v_cndmask_b32 v{r+2}, v{r+2}, 31, vcc')
    e('ds_write_b64 v59, v[52:53] offset:32')
    e('v_mov_b32 v50, v8'); e('v_mov_b32 v51, v9')
    e('s_branch L_ctl')
    lab('L_ctlend')
    c('the wo slice follows the last V loads')
    waittiles('L_waitwl', 8 * NIT - tWL, sl=1)
    e('s_mov_b32 s60, s69')
    wload(DwA)
    waittiles('L_waitown', 8 * NIT + 2, sl=0)
    lab('L_fin')
    stamp(5)
    gather('L_g0', O1, M1, 84, 74, True)
    stamp(6)
    if DIAG == 4: e('v_writelane_b32 v1, s60, 14')
    c('v62 = maximum of the head, v63 = weight of the own record')
    for b in range(2):
        for k in range(4): e(f'v_mul_f32_dpp v{AC+4*b+k}, v63, v{O1+8*b+k} row_newbcast:{8*b} row_mask:0xf bank_mask:0xf')
    for b in range(2):
        for k in range(4): e(f'v_fmac_f32_dpp v{AC+4*b+k}, v63, v{O1+8*b+4+k} row_newbcast:{8*b+4} row_mask:0xf bank_mask:0xf')
    e(f'v_mul_f32 v61, v{M1+1}, v63')
    e('s_cmp_eq_u32 s64, 0'); e('s_cbranch_scc1 L_m3')
    e(f'v_sub_f32 v56, v{M2}, v62'); e('v_exp_f32 v56, v56'); e('s_nop 0'); e(f'v_fmac_f32 v61, v{M2+1}, v56'); e('s_nop 0')
    for n0 in range(2):
        for b in range(2):
            for k in range(4): e(f'v_fmac_f32_dpp v{AC+4*b+k}, v56, v{O2+8*b+4*n0+k} row_newbcast:{8*b+4*n0} row_mask:0xf bank_mask:0xf')
    lab('L_m3')
    for k in range(4): e(f'v_permlane32_swap_b32 v{AC+k}, v{AC+4+k}')
    for k in range(4): e(f'v_add_f32 v{AC+k}, v{AC+k}, v{AC+4+k}')
    e(f'v_add_f32_dpp v61, v61, v61 {DP[0]} row_mask:0xf bank_mask:0xf')
    e(f'v_permlane16_swap_b32 v{AC}, v{AC+2}'); e(f'v_permlane16_swap_b32 v{AC+1}, v{AC+3}')
    e(f'v_add_f32 v{AC}, v{AC}, v{AC+2}'); e(f'v_add_f32 v{AC+1}, v{AC+1}, v{AC+3}')
    e(f'v_cvt_pk_bf16_f32 v8, v{AC}, v{AC+1}')
    e('ds_write_b32 v57, v8')
    e(f'ds_read_b128 v[{XP}:{XP+3}], v58'); e(f'ds_read_b128 v[{XP+4}:{XP+7}], v58 offset:16')
    e(f'v_add_f32_dpp v61, v61, v61 {DP[1]} row_mask:0xf bank_mask:0xf'); e('s_nop 1')
    e(f'v_add_f32_dpp v61, v61, v61 {DP[2]} row_mask:0xf bank_mask:0xf')
    e('v_rcp_f32 v61, v61')
    e('s_waitcnt lgkmcnt(0)')
    e('s_cbranch_scc1 L_projmm')
    waittiles('L_waityb', 8 * NIT - tYB, sl=1)
    e('s_mov_b32 s60, s69')
    wload(DwB)
    if not mmw: e('s_waitcnt vmcnt(0)')
    e('s_branch L_projmm')
    lab('L_ret_fin')
    stamp(7)
    e('s_cmp_eq_u32 s64, 0'); e('s_cbranch_scc0 L_yw1')
    e('v_mov_b32 v8, 1'); e('ds_write_b32 v59, v8 offset:20')
    e('s_cmp_lg_u32 s81, 0'); e('s_cbranch_scc1 L_done')
    e('s_branch L_yw2')
    lab('L_yw1')
    e('s_cmp_lg_u32 s81, 0'); e('s_cbranch_scc1 L_done')
    c('branch B polls only after branch A of this workgroup has published')
    waitlds('L_yw', 20, 1, sl=1)
    lab('L_yw2')
    assert NS * NY * 4 <= 96 and NY >= 2
    def yissue(s):
        for n in range(NY):
            if n == 0: so = 's80'
            else:
                e(f's_add_u32 s61, s80, {n*(256//NY)*STRIDE}'); so = 's61'
            r = WT + 4 * (s * NY + n)
            e(f'buffer_load_dwordx4 v[{r}:{r+3}], v12, s[{SWS}:{SWS+3}], {so} offen sc1')
    c('two staggered polls of the y records in flight')
    for s in range(NS):
        if s: e(f's_sleep {ysp}')
        yissue(s)
    lab('L_y')
    for s in range(NS):
        for n in range(NY):
            r = WT + 4 * (s * NY + n)
            e(f's_waitcnt vmcnt({(NS-1)*NY + NY-1-n})')
            untag(r, 4, 8, first=(n == 0))
            if n == 1:
                for k in range(4): e(f'v_add_f32 v{AC+k}, v{r-4+k}, v{r+k}')
            elif n > 1:
                for k in range(4): e(f'v_add_f32 v{AC+k}, v{AC+k}, v{r+k}')
        e('v_and_b32 v8, 0xff, v8'); e('v_cmp_ne_u32 vcc, 0, v8'); e('s_cbranch_vccz L_yok')
        yissue(s)
    e('s_sub_u32 s60, s60, 1'); e('s_cbranch_scc0 L_y')
    e('s_endpgm')
    lab('L_yok')
    stamp(8)
    e(f'v_permlane32_swap_b32 v{AC}, v{AC+1}'); e(f'v_permlane32_swap_b32 v{AC+2}, v{AC+3}')
    e(f'v_add_f32 v{AC}, v{AC}, v{AC+1}'); e(f'v_add_f32 v{AC+2}, v{AC+2}, v{AC+3}'); e('s_nop 1')
    e(f'v_permlane16_swap_b32 v{AC}, v{AC+2}'); e(f'v_add_f32 v8, v{AC}, v{AC+2}')
    for d in (8, 4, 2, 1):
        if d >= NY:
            e('s_nop 1'); e(f'v_add_f32_dpp v8, v8, v8 row_ror:{d} row_mask:0xf bank_mask:0xf')
    e('v_cvt_pk_bf16_f32 v8, v8, v8')
    m = ((1 << NY) - 1) * 0x00010001
    e(f's_mov_b32 exec_lo, 0x{m:08x}'); e(f's_mov_b32 exec_hi, 0x{m:08x}')
    e(f'buffer_store_short v8, v11, s[{SX}:{SX+3}], s77 offen')
    c('every workgroup has read the tag word by now: leave the tag of this launch behind')
    e('s_or_b32 s60, s2, s64'); e('s_cbranch_scc1 L_done')
    if fulln:
        e('s_mov_b64 exec, 0xffffffff'); e('v_mov_b32 v9, s94'); e('v_lshlrev_b32 v10, 2, v0')
    else:
        e('s_mov_b64 exec, 1'); e('v_mov_b32 v9, s94'); e('v_mov_b32 v10, 0')
    e(f'buffer_store_dword v9, v10, s[{SWS}:{SWS+3}], 0 offen')
    lab('L_done')
    if DIAG:
        e('s_mov_b64 exec, -1')
        e('ds_read_b64 v[8:9], v59 offset:56'); e('s_waitcnt lgkmcnt(0)'); e('v_readfirstlane_b32 s60, v8'); e('v_readfirstlane_b32 s61, v9'); e('s_nop 3')
        e('v_writelane_b32 v1, s60, 12'); e('v_writelane_b32 v1, s61, 13'); e('s_getreg_b32 s60, hwreg(HW_REG_XCC_ID, 0, 3)'); e('v_writelane_b32 v1, s60, 15')
        e('s_memrealtime s[70:71]'); e('s_waitcnt lgkmcnt(0)'); e('v_writelane_b32 v1, s70, 9'); e('v_writelane_b32 v1, s72, 0')
        e('s_add_u32 s48, s28, 0x4000000'); e('s_addc_u32 s49, s29, 0'); e('s_mov_b32 s50, 0x100000'); e('s_mov_b32 s51, 0x20000')
        e('s_lshl_b32 s60, s2, 4'); e('s_add_u32 s60, s60, s3'); e('s_lshl_b32 s60, s60, 7')
        e('v_lshlrev_b32 v2, 2, v0')
        e('s_mov_b64 exec, 0xffffffff')
        e(f'buffer_store_dword v1, v2, s[{SWS}:{SWS+3}], s60 offen')
    lab('L_end')
    e('s_endpgm')
    L.append('.section .rodata,"a"'); L.append('.p2align 6'); L.append(f'.amdhsa_kernel {NAME}')
    L.append('  .amdhsa_next_free_vgpr 168'); L.append('  .amdhsa_next_free_sgpr 99'); L.append('  .amdhsa_accum_offset 168')
    L.append('  .amdhsa_group_segment_fixed_size 0'); L.append('  .amdhsa_kernarg_size 104'); L.append('  .amdhsa_user_sgpr_count 2')
    L.append('  .amdhsa_user_sgpr_kernarg_segment_ptr 1'); L.append('  .amdhsa_system_sgpr_workgroup_id_x 1'); L.append('.end_amdhsa_kernel')
    return '\n'.join(L) + '\n'

if __name__ == '__main__':
    kw = {}
    for a in sys.argv[2:]:
        k, v = a.split('=')
        kw[k] = int(v, 0)
    open(sys.argv[1], 'w').write(gen(**kw))
```

```python
import sys
def padx(src, allwg=True):
    s = src.replace("    s_load_dwordx2 s[28:29], s[0:1], 96\n", "    s_load_dwordx2 s[28:29], s[0:1], 96\n    s_memrealtime s[72:73]\n", 1)
    code = """L_done:
    s_memrealtime s[70:71]
    s_waitcnt lgkmcnt(0)
""" + ("" if allwg else "    s_cmp_lg_u32 s2, 0\n    s_cbranch_scc1 L_end\n") + """    s_sub_u32 s60, s70, s72
    s_max_u32 s60, s60, 8500
    s_min_u32 s60, s60, 12000
    s_sub_u32 s60, s60, 8500
    s_mul_i32 s60, s60, 10
    s_add_u32 s60, s60, 15000
L_padx:
    s_sleep 1
    s_memrealtime s[70:71]
    s_waitcnt lgkmcnt(0)
    s_sub_u32 s61, s70, s72
    s_cmp_lt_u32 s61, s60
    s_cbranch_scc1 L_padx
"""
    assert "L_done:\n" in s
    return s.replace("L_done:\n", code, 1)
if __name__ == '__main__':
    open(sys.argv[2], 'w').write(padx(open(sys.argv[1]).read()))
```

```python
import sys, genF, padx, importlib
cfgs = eval(sys.argv[1])
for f, kw in zip('abcdef', cfgs):
    kw = dict(kw); g = importlib.import_module(kw.pop('g', 'genF'))
    open(f't_{f}.s', 'w').write(padx.padx(g.gen(**kw)))
    print(f, kw)
```
